```python
import torch

def _softmax(x, axis=-1):
    return torch.softmax(x, dim=axis)
def _gelu(x):
    return torch.nn.functional.gelu(x, approximate="tanh")
def _silu(x):
    return torch.nn.functional.silu(x)
def _sigmoid(x):
    return torch.sigmoid(x)
def _layernorm(x, axis=-1, eps=1e-5):
    m = x.mean(dim=axis, keepdim=True)
    v = x.var(dim=axis, keepdim=True, unbiased=False)
    return (x - m) / torch.sqrt(v + eps)
def _scatter_add(tgt, idx, src, axis=0):
    return tgt.clone().index_add_(axis, idx, src)
def _segment_sum(src, seg, n):
    out = torch.zeros((n,) + src.shape[1:], dtype=src.dtype)
    return out.index_add_(0, seg, src)
def _pad(x, pw):
    flat = tuple(v for pair in reversed(pw) for v in pair)
    return torch.nn.functional.pad(x, flat)

kernel_name = 'interleave_layers__sliding_local_dilated__glu_gated_reglu__prompt'

def setup_inputs():

    _w = (lambda a: (lambda t: t.to(torch.bfloat16) if t.is_floating_point() else t)(torch.as_tensor(a)))
    def _A_setup():
        B, S, D = 1, 2048, 576
        return {
            "x": _w((lambda *s: torch.randn(*s, dtype=torch.bfloat16) * 0.05)(B, S, D)),
            "wqkv": _w((lambda *s: torch.randn(*s, dtype=torch.bfloat16) * 0.05)(D, 3 * D)),
            "wo": _w((lambda *s: torch.randn(*s, dtype=torch.bfloat16) * 0.05)(D, D)),
        }
    _A_in = _A_setup()

    def _B_setup():
        B, S, D, F = 1, 2048, 576, 4608
        return {
            "x": _w((lambda *s: torch.randn(*s, dtype=torch.bfloat16) * 0.05)(B, S, D)),
            "W_gate": _w((lambda *s: torch.randn(*s, dtype=torch.bfloat16) * 0.8)(D, F) * (2.0 / D) ** 0.5),
            "W_up": _w((lambda *s: torch.randn(*s, dtype=torch.bfloat16) * 0.8)(D, F) * (2.0 / D) ** 0.5),
            "W_down": _w((lambda *s: torch.randn(*s, dtype=torch.bfloat16) * 0.8)(F, D) * (1.0 / F) ** 0.5),
        }
    _B_in = _B_setup()

    return {
        "A_x": _A_in["x"],
        "A_wqkv": _A_in["wqkv"],
        "A_wo": _A_in["wo"],
        "B_x": _B_in["x"],
        "B_W_gate": _B_in["W_gate"],
        "B_W_up": _B_in["W_up"],
        "B_W_down": _B_in["W_down"],
    }

def reference(A_x, A_wqkv, A_wo, B_x, B_W_gate, B_W_up, B_W_down):
    def _A_ref(x, wqkv, wo):
        B, S, D = x.shape
        H = 32; Dh = D // H
        W, dil = 8, 2
        qkv = (lambda x, *d: x.permute(*d))((x @ wqkv).reshape(B, S, 3, H, Dh), 2, 0, 3, 1, 4)
        q, k, v = qkv[0], qkv[1], qkv[2]
        scale = Dh ** -0.5
        pos = torch.arange(S)
        off = torch.arange(W) * dil
        idx = pos[:, None] - off[None, :]
        mask = idx >= 0
        idx_c = torch.where(mask, idx, 0).reshape(-1)
        kg = k[:, :, idx_c, :].reshape(B, H, S, W, Dh)
        vg = v[:, :, idx_c, :].reshape(B, H, S, W, Dh)
        logits = torch.einsum("bhsd,bhswd->bhsw", q, kg) * scale
        logits = torch.where(mask[None, None, :, :], logits, -1e9)
        attn = _softmax(logits, axis=-1)
        o = torch.einsum("bhsw,bhswd->bhsd", attn, vg)
        return (lambda x, *d: x.permute(*d))(o, 0, 2, 1, 3).reshape(B, S, D) @ wo

    def _B_ref(x, W_gate, W_up, W_down):
        gate = torch.einsum("bsd,df->bsf", x, W_gate)
        up = torch.einsum("bsd,df->bsf", x, W_up)
        gate = gate * (lambda x, dt: x.to(dt))(gate > 0, gate.dtype)
        h = gate * up
        return torch.einsum("bsf,fd->bsd", h, W_down)

    x = A_x
    x = x + _A_ref(_layernorm(x, axis=-1), A_wqkv, A_wo)
    x = x + _B_ref(_layernorm(x, axis=-1), B_W_gate, B_W_up, B_W_down)
    x = x + _A_ref(_layernorm(x, axis=-1), A_wqkv, A_wo)
    x = x + _B_ref(_layernorm(x, axis=-1), B_W_gate, B_W_up, B_W_down)
    return x
```

```python
S, D, F, H, DH = 2048, 576, 4608, 32, 18
ACT = S * D * 2
WS_XN   = 0 * ACT
WS_XR   = 1 * ACT
WS_O    = 2 * ACT
WS_X1   = 3 * ACT
WS_XC   = 4 * ACT
WS_MEAN = 5 * ACT
WS_WBAR = WS_MEAN + 8192
WS_SSQ  = WS_WBAR + 4096
WS_OB   = WS_SSQ + 2048 * 32
WS_WQ   = WS_OB + 2048 * 64
WQ_BYTES = 16 * 7 * 18 * 1024
WS_WO   = WS_WQ + WQ_BYTES
WO_BYTES = 36 * 18 * 1024
WS_P    = (WS_WO + WO_BYTES + 0xfffff) & ~0xfffff
WS_END  = WS_P + 16 * ACT

class Asm:
    def __init__(self):
        self.lines = []
    def __call__(self, s):
        for l in s.strip("\n").split("\n"):
            self.lines.append("  " + l.strip())
    def label(self, l):
        self.lines.append(l + ":")
    def comment(self, c):
        self.lines.append("  ; " + c)
    def raw(self, s):
        self.lines.append(s)
    def text(self):
        return "\n".join(self.lines) + "\n"

def kernel_begin(a, name):
    a.raw(".globl %s" % name)
    a.raw(".p2align 8")
    a.raw(".type %s,@function" % name)
    a.label(name)

def kernel_desc(name, vgpr, accum, sgpr=102):
    return """.amdhsa_kernel %s
  .amdhsa_next_free_vgpr %d
  .amdhsa_next_free_sgpr %d
  .amdhsa_accum_offset %d
  .amdhsa_group_segment_fixed_size 0
  .amdhsa_kernarg_size 80
  .amdhsa_user_sgpr_count 2
  .amdhsa_user_sgpr_kernarg_segment_ptr 1
  .amdhsa_system_sgpr_workgroup_id_x 1
.end_amdhsa_kernel
""" % (name, vgpr, sgpr, accum)

def srd(a, d, b, nbytes):
    a("s_mov_b32 s%d, s%d" % (d, b))
    a("s_and_b32 s%d, s%d, 0xffff" % (d + 1, b + 1))
    a("s_mov_b32 s%d, 0x%x" % (d + 2, nbytes))
    a("s_mov_b32 s%d, 0x20000" % (d + 3))

def vr(base, n):
    return "v[%d:%d]" % (base, base + n - 1) if n > 1 else "v%d" % base
def ar(base, n):
    return "a[%d:%d]" % (base, base + n - 1) if n > 1 else "a%d" % base

class Stamper:
    def __init__(self, a, on, sbase=76, region=0):
        self.a, self.on, self.n, self.sb, self.region = a, on, 0, sbase, region
    def start(self):
        if self.on:
            self.a("s_load_dwordx2 s[%d:%d], s[0:1], 56" % (self.sb, self.sb + 1))
            self.stamp(wait=False)
    def stamp(self, wait=True):
        if not self.on: return
        r = self.sb + 6 + 4 * self.n
        assert r + 3 < 102
        self.a("s_memtime s[%d:%d]" % (r, r + 1))
        self.a("s_memrealtime s[%d:%d]" % (r + 2, r + 3))
        if wait: self.a("s_waitcnt lgkmcnt(0)")
        self.n += 1
    def finish(self, swave, nwaves):
        if not self.on: return
        a, sb = self.a, self.sb
        a("s_waitcnt vmcnt(0) lgkmcnt(0)")
        self.stamp()
        a("s_and_b32 s%d, s%d, 0xffff" % (sb + 1, sb + 1))
        a("s_mov_b32 s%d, 0x%x" % (sb + 2, ACT))
        a("s_mov_b32 s%d, 0x20000" % (sb + 3))
        a("s_mul_i32 s%d, s2, %d" % (sb + 4, nwaves))
        a("s_add_u32 s%d, s%d, s%d" % (sb + 4, sb + 4, swave))
        a("s_lshl_b32 s%d, s%d, 6" % (sb + 4, sb + 4))
        a("s_add_u32 s%d, s%d, 0x%x" % (sb + 4, sb + 4, self.region))
        a("v_mov_b32 v0, 0")
        for k in range(self.n):
            r = sb + 6 + 4 * k
            a("v_mov_b32 v2, s%d" % r)
            a("v_mov_b32 v3, s%d" % (r + 2))
            a("buffer_store_dwordx2 v[2:3], v0, s[%d:%d], s%d offen offset:%d" % (sb, sb + 3, sb + 4, 8 * k))
            a("s_nop 1")

def xl_sum(a, regs, tmp, bits):
    for b in bits:
        if b == 8:
            a("s_nop 1")
            for r in regs: a("v_add_f32_dpp v%d, v%d, v%d row_ror:8 row_mask:0xf bank_mask:0xf" % (r, r, r))
        elif b in (1, 2):
            a("s_nop 1")
            qp = "[1,0,3,2]" if b == 1 else "[2,3,0,1]"
            for r in regs: a("v_add_f32_dpp v%d, v%d, v%d quad_perm:%s row_mask:0xf bank_mask:0xf" % (r, r, r, qp))
        elif b == 4:
            a("s_nop 1")
            for r in regs: a("v_add_f32_dpp v%d, v%d, v%d row_ror:4 row_mask:0xf bank_mask:0xf" % (r, r, r))
        else:
            for r, t in zip(regs, tmp): a("v_mov_b32 v%d, v%d" % (t, r))
            a("s_nop 1")
            for r, t in zip(regs, tmp): a("v_permlane%d_swap_b32 v%d, v%d" % (b, r, t))
            a("s_nop 1")
            for r, t in zip(regs, tmp): a("v_add_f32 v%d, v%d, v%d" % (r, r, t))

def xmap(a, X, sJ, sI, sT):
    lx = {2: 1, 4: 2, 8: 3, 16: 4}[X]
    lj = 4 - lx
    if lj > 0:
        a("s_and_b32 s%d, s2, %d" % (sJ, (1 << lj) - 1))
        a("s_lshl_b32 s%d, s%d, %d" % (sJ, sJ, lx))
        a("s_bfe_u32 s%d, s2, 0x%x" % (sT, (lx << 16) | 3))
        a("s_add_u32 s%d, s%d, s%d" % (sJ, sJ, sT))
    else:
        a("s_bfe_u32 s%d, s2, 0x%x" % (sJ, (lx << 16) | 3))
    li = 3 - lj
    if li > 0:
        a("s_bfe_u32 s%d, s2, 0x%x" % (sI, (li << 16) | lj))
        a("s_lshl_b32 s%d, s%d, %d" % (sI, sI, 4 - li))
        a("s_lshr_b32 s%d, s2, %d" % (sT, 3 + lx))
        a("s_add_u32 s%d, s%d, s%d" % (sI, sI, sT))
    else:
        a("s_lshr_b32 s%d, s2, %d" % (sI, 3 + lx))
```

```python
from common import *
from k4 import f2u
import math

def gen_k1(a, name, opt=None):
    opt = opt or {}
    LD = opt.get("ld_flags", ""); ST = opt.get("st_flags", "")
    STAMP = opt.get("stamp", False)
    kernel_begin(a, name)
    L = name
    st = Stamper(a, STAMP, 60, opt.get("region", 0))
    sW, sH, sI, sT = 20, 21, 22, 23
    B0, AF = 0, 144
    NB = 12
    ACC = 0
    WB = 196
    vL, vLb, vLv = 216, 217, [218, 219, 220]
    vHv = [221, 222, 223]
    vLane = 224
    P = 336
    a("s_cmp_ge_u32 s2, 256")
    a("s_cbranch_scc1 %s_end" % L)
    a("s_load_dwordx2 s[12:13], s[0:1], 72")
    st.start()
    a("v_lshrrev_b32 v1, 6, v0")
    a("v_and_b32 v%d, 63, v0" % vLane)
    a("v_readfirstlane_b32 s%d, v1" % sW)
    xmap(a, opt.get("xmap", 8), sH, sI, sT)
    a("v_lshlrev_b32 v%d, 4, v%d" % (vL, vLane))
    a("v_add_u32 v%d, 18432, v%d" % (vLb, vL))
    a("s_lshl_b32 s24, s%d, 10" % sW)
    a("s_mul_i32 s25, s%d, %d" % (sH, 126 * 1024))
    a("s_add_u32 s25, s25, 0x%x" % WS_WQ)
    a("s_add_u32 s25, s25, s24")
    a("s_add_u32 s26, s25, 4096")
    a("s_lshl_b32 s27, s%d, 3" % sI)
    a("s_max_u32 s28, s27, 1")
    a("s_sub_u32 s28, s28, 1")
    a("s_mul_i32 s28, s28, 18432")
    a("s_add_u32 s28, s28, 0x%x" % WS_XN)
    a("s_movk_i32 s29, 7168")
    a("s_cmp_eq_u32 s%d, 3" % sW)
    a("s_cselect_b32 s26, s28, s26")
    a("s_cselect_b32 s29, 1024, s29")
    a("s_lshl_b32 s30, s%d, 1" % sW)
    a("s_add_u32 s30, s30, s27")
    a("s_mul_i32 s31, s30, 18432")
    a("s_add_u32 s32, s31, 0x%x" % WS_XN)
    a("s_mov_b32 m0, s24")
    a("v_lshrrev_b32 v2, 5, v%d" % vLane)
    a("v_mul_u32_u24 v233, 72, v2")
    a("s_mul_i32 s33, s%d, 144" % sH)
    a("s_add_u32 s33, s33, 0x%x" % WS_WBAR)
    LVL = 49152
    for lv in range(3):
        a("v_add_u32 v%d, 0x%x, v%d" % (vLv[lv], lv * LVL, vL))
        a("v_add_u32 v%d, s24, v%d" % (vHv[lv], vLv[lv]))
    a("s_waitcnt lgkmcnt(0)")
    srd(a, 4, 12, WS_END)
    log = []
    def loads(t):
        o = [["buffer_load_dwordx4 v%d, s[4:7], s25 offen lds" % vL, "s_add_u32 m0, m0, 4096", "s_add_u32 s25, s25, 7168"],
             ["buffer_load_dwordx4 v%d, s[4:7], s26 offen lds %s" % (vL, LD), "s_add_u32 m0, m0, 4096", "s_add_u32 s26, s26, s29"]]
        for mb in range(2):
            g = []
            if mb == 0 and t % 4 == 0 and t: g.append("s_add_u32 s32, s32, 4096")
            g.append("buffer_load_dwordx4 %s, v%d, s[4:7], s32 offen offset:%d %s" % (ar(B0 + 4 * (18 * mb + t), 4), (vL, vLb)[mb], (t % 4) * 1024, LD))
            o.append(g)
        return o
    def em(lst, tag):
        for s_ in lst:
            a(s_)
            if s_.startswith("buffer_"): log.append(tag)
    def need(tag):
        idx = max(k for k, t_ in enumerate(log) if t_ == tag)
        return min(63, len(log) - 1 - idx)
    TG = opt.get("tg", 3)
    PRE = opt.get("pre", 9)
    for t in range(PRE):
        for g in loads(t): em(g, t)
    def rd(f):
        t, k = f // 9, f % 9
        if k < 8:
            o = t * 8192 + k * 1024; vs = vLv
        else:
            o = t * 8192; vs = vHv
        lv = min(o // LVL, 2)
        return "ds_read_b128 %s, v%d offset:%d" % (ar(AF + 4 * (f % NB), 4), vs[lv], o - lv * LVL)
    def fb(f): return ar(AF + 4 * (f % NB), 4)
    pend = [(g, t) for t in range(PRE, 18) for g in loads(t)]
    pend += [(["buffer_load_dwordx4 %s, v233, s[4:7], s33 offen offset:%d" % (vr(WB + 4 * q, 4), 16 * q)], "wb") for q in range(4)]
    pend += [(["buffer_load_dwordx2 %s, v233, s[4:7], s33 offen offset:64" % vr(WB + 16, 2)], "wb")]
    DIST = NB - 4
    for gi in range(18 // TG):
        t0 = gi * TG
        a("s_waitcnt vmcnt(%d)" % need(t0 + TG - 1))
        a("s_barrier")
        if gi == 0: st.stamp()
        f0, f1 = 9 * t0, 9 * (t0 + TG)
        nxt = f0
        for _ in range(DIST):
            a(rd(nxt)); nxt += 1
        for t in range(t0, t0 + TG):
            first = (t == 0)
            def mf(acc, A, B):
                return "v_mfma_f32_16x16x32_bf16 %s, %s, %s, %s" % (vr(acc, 4), A, B, "0" if first else vr(acc, 4))
            for k in range(8):
                f = 9 * t + k
                lastneeded = f if k < 7 else f + 1
                a("s_waitcnt lgkmcnt(%d)" % (nxt - 1 - lastneeded))
                if k < 7:
                    ms = [mf(ACC + 4 * (7 * mb + k), fb(f), ar(B0 + 4 * (18 * mb + t), 4)) for mb in range(2)]
                else:
                    ms = [mf(ACC + 60, fb(f - 1), fb(f)), mf(ACC + 56, fb(f + 1), fb(f))]
                a(ms[0])
                for _ in range(1 if k < 7 else 2):
                    if nxt < f1: a(rd(nxt)); nxt += 1
                a(ms[1])
                if pend and k % 2 == 0:
                    g, tag = pend.pop(0); em(g, tag)
    assert not pend
    st.stamp()
    a("v_and_b32 v64, 15, v%d" % vLane)
    a("v_lshrrev_b32 v65, 4, v%d" % vLane)
    a("v_mul_u32_u24 v64, %d, v64" % P)
    a("v_lshl_add_u32 v66, v65, 3, v64")
    a("v_lshl_add_u32 v67, v65, 4, v64")
    a("s_mul_i32 s34, s%d, %d" % (sW, 32 * P))
    a("s_add_u32 s34, s34, %d" % (16 * P))
    a("v_add_u32 v68, s34, v66")
    a("v_add_u32 v69, s34, v67")
    a("s_barrier")
    for mb in range(2):
        for nb, off in ((0, 0), (1, 32), (4, 64), (5, 96)):
            r = ACC + 4 * (7 * mb + nb)
            a("v_cvt_pk_bf16_f32 v%d, v%d, v%d" % (r, r, r + 1))
            a("v_cvt_pk_bf16_f32 v%d, v%d, v%d" % (r + 1, r + 2, r + 3))
            a("ds_write_b64 v68, %s offset:%d" % (vr(r, 2), off + mb * 16 * P))
        for nb, off in ((2, 128), (3, 192), (6, 256)):
            r = ACC + 4 * (7 * mb + nb)
            a("ds_write_b128 v69, %s offset:%d" % (vr(r, 4), off + mb * 16 * P))
    a("ds_write_b128 v67, v[60:63] offset:256")
    a("s_cmp_ge_u32 s%d, 2" % sW)
    a("s_cbranch_scc1 %s_hv" % L)
    a("s_lshl_b32 s35, s%d, 5" % sW)
    a("v_add_u32 v66, s35, v66")
    a("v_cvt_pk_bf16_f32 v56, v56, v57")
    a("v_cvt_pk_bf16_f32 v57, v58, v59")
    a("ds_write_b64 v66, v[56:57]")
    a("s_branch %s_hd" % L)
    a.label("%s_hv" % L)
    a("s_lshl_b32 s35, s%d, 6" % sW)
    a("v_add_u32 v67, s35, v67")
    a("ds_write_b128 v67, v[56:59]")
    a.label("%s_hd" % L)
    vK, vV, vTt, vQt, vGR = 225, 226, 227, 228, 229
    a("v_and_b32 v64, 31, v%d" % vLane)
    a("v_lshrrev_b32 v65, 5, v%d" % vLane)
    a("v_mul_u32_u24 v66, %d, v64" % P)
    a("s_sub_u32 s34, s34, %d" % (14 * P))
    a("v_add_u32 v66, s34, v66")
    a("v_lshl_add_u32 v%d, v65, 5, v66" % vK)
    a("v_lshl_add_u32 v%d, v65, 6, v66" % vV)
    a("v_lshl_add_u32 v%d, v65, 4, v66" % vTt)
    a("v_lshl_add_u32 v%d, v65, 3, v66" % vQt)
    a("s_lshl_b32 s35, s30, 4")
    a("v_add_u32 v%d, s35, v64" % vGR)
    vO, vO2, vOB = 230, 231, 232
    a("v_lshrrev_b32 v66, 4, v64")
    a("v_mul_u32_u24 v66, 18432, v66")
    a("v_and_b32 v67, 15, v64")
    a("v_lshl_add_u32 v66, v67, 4, v66")
    a("v_lshl_add_u32 v%d, v65, 9, v66" % vO)
    a("v_lshl_add_u32 v%d, v65, 2, v66" % vO2)
    a("v_lshlrev_b32 v%d, 6, v%d" % (vOB, vGR))
    a("s_lshr_b32 s36, s%d, 1" % sH)
    a("s_mul_i32 s36, s36, 2304")
    a("s_add_u32 s36, s36, s31")
    a("s_add_u32 s36, s36, 0x%x" % WS_O)
    a("s_and_b32 s37, s%d, 1" % sH)
    a("s_lshl_b32 s38, s37, 3")
    a("s_add_u32 s38, s38, s36")
    a("s_lshl_b32 s37, s37, 10")
    a("s_add_u32 s36, s36, s37")
    a("s_lshl_b32 s39, s%d, 2" % sH)
    a("s_add_u32 s39, s39, 0x%x" % WS_OB)
    a("s_waitcnt lgkmcnt(0)")
    a("s_barrier")
    st.stamp()
    KR, TR, VA, Q, S_, O = 0, 64, 96, 160, 170, 178
    dl = []
    def ds(s_, tag):
        a(s_); dl.append(tag)
    def dwait(tag):
        idx = max(k for k, t_ in enumerate(dl) if t_ == tag)
        a("s_waitcnt lgkmcnt(%d)" % min(15, len(dl) - 1 - idx))
    ds("ds_read_b128 %s, v%d offset:%d" % (vr(Q, 4), vK, 14 * P + 64), "q")
    ds("ds_read_b128 %s, v%d offset:%d" % (vr(Q + 4, 4), vK, 14 * P + 80), "q")
    ds("ds_read_b64 %s, v%d offset:%d" % (vr(Q + 8, 2), vQt, 14 * P + 288), "q")
    def kread(j):
        o = (14 - 2 * j) * P
        ds("ds_read_b128 %s, v%d offset:%d" % (vr(KR + 8 * j, 4), vK, o), "k%d" % j)
        ds("ds_read_b128 %s, v%d offset:%d" % (vr(KR + 8 * j + 4, 4), vK, o + 16), "k%d" % j)
        ds("ds_read_b128 %s, v%d offset:%d" % (vr(TR + 4 * j, 4), vTt, o + 256), "k%d" % j)
    def vreg(j): return (VA + 16 * j) if j < 4 else (KR + 16 * (j - 4))
    def vread(j):
        o = (14 - 2 * j) * P + 128
        for q in range(4):
            ds("ds_read_b128 %s, v%d offset:%d" % (vr(vreg(j) + 4 * q, 4), vV, o + 16 * q), "v%d" % j)
    for j in range(4): kread(j)
    a("v_mov_b32 v%d, 0xff7fffff" % (O + 1))
    for j in range(8):
        dwait("k%d" % j)
        if j < 4: kread(j + 4)
        else: vread(j - 4)
        a("v_mul_f32 v%d, v%d, v%d" % (S_ + j, Q + 8, TR + 4 * j))
        a("v_fmac_f32 v%d, v%d, v%d" % (S_ + j, Q + 9, TR + 4 * j + 1))
        for p in range(8):
            a("v_dot2_f32_bf16 v%d, v%d, v%d, v%d" % (S_ + j, Q + p, KR + 8 * j + p, S_ + j))
        if j > 0:
            a("v_cmp_le_u32 vcc, %d, v%d" % (2 * j, vGR))
            a("s_nop 1")
            a("v_cndmask_b32 v%d, v%d, v%d, vcc" % (S_ + j, O + 1, S_ + j))
    for j in range(4, 8): vread(j)
    a("v_max3_f32 v%d, v%d, v%d, v%d" % (O, S_, S_ + 1, S_ + 2))
    a("v_max3_f32 v%d, v%d, v%d, v%d" % (O, O, S_ + 3, S_ + 4))
    a("v_max3_f32 v%d, v%d, v%d, v%d" % (O, O, S_ + 5, S_ + 6))
    a("v_max_f32 v%d, v%d, v%d" % (O, O, S_ + 7))
    a("s_mov_b32 s40, 0x%x" % f2u(18 ** -0.5 * math.log2(math.e)))
    for j in range(8):
        a("v_sub_f32 v%d, v%d, v%d" % (S_ + j, S_ + j, O))
    for j in range(8):
        a("v_mul_f32 v%d, s40, v%d" % (S_ + j, S_ + j))
    for j in range(8):
        a("v_exp_f32 v%d, v%d" % (S_ + j, S_ + j))
    SUM = Q
    a("v_add_f32 v%d, v%d, v%d" % (SUM, S_, S_ + 1))
    for j in range(2, 8):
        a("v_add_f32 v%d, v%d, v%d" % (SUM, SUM, S_ + j))
    a("v_rcp_f32 v%d, v%d" % (SUM, SUM))
    a("s_nop 0")
    for j in range(8):
        a("v_mul_f32 v%d, v%d, v%d" % (S_ + j, S_ + j, SUM))
    for j in range(8):
        dwait("v%d" % j)
        pj = vr(S_ + (j & ~1), 2)
        sel = "op_sel:[0,%d,0] op_sel_hi:[1,%d,1]" % (j & 1, j & 1)
        for p in range(9):
            src = vr(vreg(j) + 2 * p, 2) if p < 8 else vr(TR + 4 * j + 2, 2)
            if j == 0:
                a("v_pk_mul_f32 %s, %s, %s op_sel:[0,0] op_sel_hi:[1,0]" % (vr(O + 2 * p, 2), src, pj))
            else:
                a("v_pk_fma_f32 %s, %s, %s, %s %s" % (vr(O + 2 * p, 2), src, pj, vr(O + 2 * p, 2), sel))
    for p in range(9):
        a("v_cvt_pk_bf16_f32 v%d, v%d, v%d" % (VA + p, O + 2 * p, O + 2 * p + 1))
    a("buffer_store_dwordx4 %s, v%d, s[4:7], s36 offen %s" % (vr(VA, 4), vO, ST))
    a("buffer_store_dwordx4 %s, v%d, s[4:7], s36 offen offset:256 %s" % (vr(VA + 4, 4), vO, ST))
    a("buffer_store_dword v%d, v%d, s[4:7], s38 offen offset:2048 %s" % (VA + 8, vO2, ST))
    a("s_waitcnt vmcnt(3)")
    a("v_mul_f32 v%d, v%d, v%d" % (Q, O, WB))
    for p in range(1, 18):
        a("v_fmac_f32 v%d, v%d, v%d" % (Q, O + p, WB + p))
    xl_sum(a, [Q], [Q + 1], [32])
    a("s_mov_b64 exec, 0xffffffff")
    a("buffer_store_dword v%d, v%d, s[4:7], s39 offen %s" % (Q, vOB, ST))
    a("s_mov_b64 exec, -1")
    st.finish(sW, 4)
    a.label("%s_end" % L)
    a("s_endpgm")
    return kernel_desc(name, 236 + AF + 4 * NB, 236)
```

```python
from common import *
from k4 import f2u

def gen_k2(a, name, opt=None):
    opt = opt or {}
    LD = opt.get("ld_flags", ""); ST = opt.get("st_flags", "")
    STAMP = opt.get("stamp", False)
    kernel_begin(a, name)
    L = name
    st = Stamper(a, STAMP, 60, opt.get("region", 0))
    sWS = 4
    sW, sN, sR = 20, 21, 22
    B0 = 0
    AF = 72
    NB = 8
    ACC = 32
    XR = 56
    a("s_cmp_ge_u32 s2, 192")
    a("s_cbranch_scc1 %s_end" % L)
    a("s_load_dwordx2 s[12:13], s[0:1], 72")
    st.start()
    a("v_lshrrev_b32 v1, 6, v0")
    a("v_and_b32 v2, 63, v0")
    a("v_readfirstlane_b32 s%d, v1" % sW)
    a("v_lshlrev_b32 v3, 4, v2")
    a("s_lshr_b32 s16, s2, 3")
    a("s_mul_i32 s17, s16, 43")
    a("s_lshr_b32 s17, s17, 8")
    a("s_mul_i32 s18, s17, 6")
    a("s_sub_u32 s%d, s16, s18" % sN)
    a("s_and_b32 s16, s2, 7")
    a("s_lshl_b32 s16, s16, 2")
    a("s_add_u32 s%d, s16, s17" % sR)
    a("s_lshl_b32 s16, s%d, 2" % sR)
    a("s_add_u32 s16, s16, s%d" % sW)
    a("s_mul_i32 s17, s16, 18432")
    a("s_mul_i32 s18, s%d, %d" % (sN, 108 * 1024))
    a("s_lshl_b32 s19, s%d, 10" % sW)
    a("s_add_u32 s18, s18, s19")
    a("s_add_u32 s18, s18, 0x%x" % WS_WO)
    a("s_add_u32 s23, s17, 0x%x" % WS_O)
    a("s_mul_i32 s24, s%d, 3072" % sN)
    a("s_add_u32 s24, s24, s17")
    a("v_and_b32 v4, 15, v2")
    a("v_lshrrev_b32 v5, 4, v2")
    a("v_lshlrev_b32 v6, 6, v4")
    a("v_lshl_add_u32 v6, v5, 4, v6")
    a("v_lshlrev_b32 v7, 2, v4")
    a("s_lshl_b32 s25, s16, 10")
    a("s_add_u32 s25, s25, 0x%x" % WS_OB)
    a("s_lshl_b32 s26, s16, 6")
    a("s_add_u32 s26, s26, 0x%x" % WS_MEAN)
    a("s_add_u32 s27, s24, 0x%x" % WS_XR)
    a("s_mov_b32 m0, s19")
    a("s_waitcnt lgkmcnt(0)")
    srd(a, sWS, 12, WS_END)
    NG = 3
    for g in range(NG):
        for q in range(9):
            a("buffer_load_dwordx4 v3, s[4:7], s18 offen lds")
            a("s_add_u32 m0, m0, 4096")
            a("s_add_u32 s18, s18, 4096")
        for tt in range(6):
            t = 6 * g + tt
            if t % 4 == 0 and t: a("s_add_u32 s23, s23, 4096")
            a("buffer_load_dwordx4 %s, v3, s[4:7], s23 offen offset:%d %s" % (ar(B0 + 4 * t, 4), (t % 4) * 1024, LD))
    for u in range(3):
        a("buffer_load_dwordx4 %s, v3, s[4:7], s27 offen offset:%d %s" % (vr(XR + 4 * u, 4), u * 1024, LD))
    a("buffer_load_dwordx4 v[8:11], v6, s[4:7], s25 offen %s" % LD)
    a("buffer_load_dword v12, v7, s[4:7], s26 offen %s" % LD)
    a("v_add_u32 v13, 0xd800, v3")
    def rd(i):
        o = i * 1024
        v = 3
        if o >= 0xd800: v, o = 13, o - 0xd800
        return "ds_read_b128 %s, v%d offset:%d" % (ar(AF + 4 * (i % NB), 4), v, o)
    for g in range(NG):
        a("s_waitcnt vmcnt(%d)" % ((NG - 1 - g) * 15 + 5))
        a("s_barrier")
        if g == 0: st.stamp()
        base = 36 * g
        for i in range(NB - 1): a(rd(base + i))
        for i in range(36):
            left = min(NB - 2, 35 - i)
            a("s_waitcnt lgkmcnt(%d)" % left)
            f = base + i
            t, db = f // 6, f % 6
            c = "0" if t == 0 else vr(ACC + 4 * db, 4)
            a("v_mfma_f32_16x16x32_bf16 %s, %s, %s, %s" % (vr(ACC + 4 * db, 4), ar(AF + 4 * (f % NB), 4), ar(B0 + 4 * t, 4), c))
            if i + NB - 1 < 36: a(rd(f + NB - 1))
    st.stamp()
    a("s_waitcnt vmcnt(0)")
    a("v_add_f32 v8, v8, v9")
    a("v_add_f32 v10, v10, v11")
    a("v_add_f32 v8, v8, v10")
    xl_sum(a, [8], [9], [16, 32])
    a("v_add_f32 v8, v8, v12")
    a("v_mov_b32 v9, 0")
    a("s_add_u32 s27, s24, 0x%x" % WS_X1)
    a("s_add_u32 s28, s24, 0x%x" % WS_XC)
    for u in range(3):
        for k in range(4):
            a("v_lshlrev_b32 v16, 16, v%d" % (XR + 4 * u + k))
            a("v_and_b32 v17, 0xffff0000, v%d" % (XR + 4 * u + k))
            a("v_add_f32 v16, v16, v%d" % (ACC + 8 * u + 2 * k))
            a("v_add_f32 v17, v17, v%d" % (ACC + 8 * u + 2 * k + 1))
            a("v_cvt_pk_bf16_f32 v%d, v16, v17" % (XR + 4 * u + k))
            a("v_lshlrev_b32 v16, 16, v%d" % (XR + 4 * u + k))
            a("v_and_b32 v17, 0xffff0000, v%d" % (XR + 4 * u + k))
            a("v_sub_f32 v16, v16, v8")
            a("v_sub_f32 v17, v17, v8")
            a("v_fmac_f32 v9, v16, v16")
            a("v_fmac_f32 v9, v17, v17")
            a("v_cvt_pk_bf16_f32 v%d, v16, v17" % (20 + 4 * u + k))
        a("buffer_store_dwordx4 %s, v3, s[4:7], s28 offen offset:%d %s" % (vr(20 + 4 * u, 4), u * 1024, ST))
        a("buffer_store_dwordx4 %s, v3, s[4:7], s27 offen offset:%d %s" % (vr(XR + 4 * u, 4), u * 1024, ST))
    xl_sum(a, [9], [10], [16, 32])
    a("v_lshlrev_b32 v6, 5, v4")
    a("s_lshl_b32 s25, s16, 9")
    a("s_lshl_b32 s26, s%d, 2" % sN)
    a("s_add_u32 s25, s25, s26")
    a("s_add_u32 s25, s25, 0x%x" % WS_SSQ)
    a("s_mov_b64 exec, 0xffff")
    a("buffer_store_dword v9, v6, s[4:7], s25 offen %s" % ST)
    a("s_mov_b64 exec, -1")
    st.finish(sW, 4)
    a.label("%s_end" % L)
    a("s_endpgm")
    return kernel_desc(name, 72 + AF + 4 * NB, 72)
```

```python
from common import *

SLOT = 36 * 1024

def gen_k3(a, name="k3_kernel", opt=None):
    opt = opt or {}
    STAMP = opt.get("stamp", False)
    ST_FLAGS = opt.get("st_flags", "")
    LD_FLAGS = opt.get("ld_flags", "")
    XMAP = opt.get("xmap", 2)
    NB = opt.get("nb", 6)
    kernel_begin(a, name)
    L = name
    st = Stamper(a, STAMP, 60)
    T0, AG, AU, HB = 0, 32, 64, 96
    H0 = HB + 8
    vDX = [176, 177, 178, 179]
    vDW = [180, 181, 182, 183]
    vL16, vL16b = 184, 185
    vR = [[186 + 4 * lv + fb for fb in range(4)] for lv in range(3)]
    vN = [198, 199]
    NV = 200
    LVL = 49152
    X0, AF = 0, 144
    NA = AF + 4 * NB
    sDG, sDU, sWS = 4, 8, 12
    sW, sJ, sI = 20, 21, 22
    sWB = 24
    sRG, sRU = 25, 26
    sD0, sD1, sD2l, sD2h = 27, 28, 29, 30
    sCnt, sHI = 32, 33
    sSt, sStB = 34, 35
    sSlotN, sSlotD, sSlotC = 44, 45, 48
    sW0, sWd0 = 46, 47
    sT, sS, sX = 49, 50, 51

    a("s_cmp_ge_u32 s2, 256")
    a("s_cbranch_scc1 %s_end" % L)
    a("s_load_dwordx4 s[36:39], s[0:1], 32")
    a("s_load_dwordx2 s[40:41], s[0:1], 48")
    a("s_load_dwordx2 s[42:43], s[0:1], 72")
    st.start()
    a("v_lshrrev_b32 v1, 6, v0")
    a("v_and_b32 v2, 63, v0")
    a("v_readfirstlane_b32 s%d, v1" % sW)
    if XMAP == 2:
        a("s_and_b32 s%d, s2, 7" % sJ)
        a("s_lshl_b32 s%d, s%d, 1" % (sJ, sJ))
        a("s_bfe_u32 s%d, s2, 0x10003" % sT)
        a("s_add_u32 s%d, s%d, s%d" % (sJ, sJ, sT))
        a("s_lshr_b32 s%d, s2, 4" % sI)
    elif XMAP == 4:
        a("s_and_b32 s%d, s2, 3" % sJ)
        a("s_lshl_b32 s%d, s%d, 2" % (sJ, sJ))
        a("s_bfe_u32 s%d, s2, 0x20003" % sT)
        a("s_add_u32 s%d, s%d, s%d" % (sJ, sJ, sT))
        a("s_bfe_u32 s%d, s2, 0x10002" % sI)
        a("s_lshl_b32 s%d, s%d, 3" % (sI, sI))
        a("s_lshr_b32 s%d, s2, 5" % sT)
        a("s_add_u32 s%d, s%d, s%d" % (sI, sI, sT))
    elif XMAP == 8:
        a("s_and_b32 s%d, s2, 1" % sJ)
        a("s_lshl_b32 s%d, s%d, 3" % (sJ, sJ))
        a("s_bfe_u32 s%d, s2, 0x30003" % sT)
        a("s_add_u32 s%d, s%d, s%d" % (sJ, sJ, sT))
        a("s_bfe_u32 s%d, s2, 0x20001" % sI)
        a("s_lshl_b32 s%d, s%d, 2" % (sI, sI))
        a("s_lshr_b32 s%d, s2, 6" % sT)
        a("s_add_u32 s%d, s%d, s%d" % (sI, sI, sT))
    a("s_mul_i32 s%d, s%d, 9216" % (sWB, sW))
    a("v_lshlrev_b32 v%d, 4, v2" % vL16)
    a("v_add_u32 v%d, 18432, v%d" % (vL16b, vL16))
    a("v_lshrrev_b32 v3, 3, v2")
    a("v_and_b32 v4, 7, v2")
    a("v_bfe_u32 v5, v2, 4, 2")
    a("v_lshlrev_b32 v5, 1, v5")
    a("v_xor_b32 v4, v4, v5")
    a("v_and_b32 v6, 3, v4")
    a("v_lshlrev_b32 v4, 4, v4")
    a("v_lshlrev_b32 v6, 4, v6")
    a("s_movk_i32 s%d, 9216" % sT)
    a("v_mad_u32_u24 v%d, v3, s%d, v4" % (vDX[0], sT))
    a("v_mad_u32_u24 v8, v3, s%d, v6" % sT)
    a("s_movk_i32 s%d, 1152" % sT)
    a("v_mad_u32_u24 v%d, v3, s%d, v4" % (vDW[0], sT))
    for q in (1, 2, 3):
        a("v_add_u32 v%d, 0x%x, v%d" % (vDX[q], q * (8 * 9216 - 1024), vDX[0]))
        a("v_add_u32 v%d, 0x%x, v8" % (8 + q, q * (8 * 9216 - 1024)))
        a("v_add_u32 v%d, 0x%x, v%d" % (vDW[q], q * (8 * 1152 - 1024), vDW[0]))
    a("v_lshrrev_b32 v3, 2, v2")
    a("v_and_b32 v4, 3, v2")
    a("v_lshlrev_b32 v4, 3, v4")
    a("v_lshl_add_u32 v4, v3, 7, v4")
    a("v_bfe_u32 v5, v2, 3, 2")
    a("v_lshl_add_u32 v%d, v5, 5, v4" % vR[0][0])
    for fb in (1, 2, 3):
        a("v_xor_b32 v%d, %d, v%d" % (vR[0][fb], fb << 5, vR[0][0]))
    for lv in (1, 2):
        for fb in range(4):
            a("v_add_u32 v%d, 0x%x, v%d" % (vR[lv][fb], lv * LVL, vR[0][fb]))
    a("s_mul_i32 s%d, s%d, 576" % (sRG, sJ))
    a("s_mul_i32 s%d, s%d, %d" % (sT, sW, 72 * 9216))
    a("s_add_u32 s%d, s%d, s%d" % (sRG, sRG, sT))
    a("s_mul_i32 s%d, s%d, %d" % (sW0, sJ, 288 * 1152))
    a("s_mul_i32 s%d, s%d, %d" % (sT, sW, 72 * 1152))
    a("s_add_u32 s%d, s%d, s%d" % (sW0, sW0, sT))
    a("s_mov_b32 s%d, %d" % (sWd0, 32 * 1152))
    a("s_cmp_eq_u32 s%d, 0" % sW)
    a("s_cselect_b32 s52, %d, %d" % (256 * 1152, -32 * 1152 & 0xffffffff) if False else "s_cselect_b32 s52, 8, -1")
    a("s_cselect_b32 s53, -8, 1")
    a("s_mul_i32 s52, s52, %d" % (32 * 1152))
    a("s_mul_i32 s53, s53, %d" % (32 * 1152))
    a("s_bitcmp0_b32 s%d, 0" % sJ)
    a("s_cselect_b32 s%d, 512, 0" % sS)
    a("s_cselect_b32 s54, 0, 64")
    a("s_cselect_b32 s52, s52, 0")
    a("s_cselect_b32 s%d, s53, s%d" % (sWd0, sWd0))
    a("s_add_u32 s%d, s%d, s%d" % (sS, sS, sRG))
    a("s_add_u32 s%d, s%d, s54" % (sRG, sRG))
    a("s_mov_b32 s%d, s%d" % (sRU, sRG))
    a("s_add_u32 s%d, s%d, s52" % (sW0, sW0))
    a("s_mov_b32 s%d, 0x%x" % (sD0, 32 * 9216))
    a("s_mov_b32 s%d, 0x%x" % (sD1, 32 * 9216))
    a("s_mov_b32 s%d, 0x%x" % (sD2l, (288 - 64) * 9216))
    a("s_mov_b32 s%d, 0x%x" % (sD2h, (-(288 + 64) * 9216 + 128) & 0xffffffff))
    a("s_lshl_b32 s%d, s%d, 2" % (sT, sI))
    a("s_add_u32 s%d, s%d, s%d" % (sT, sT, sW))
    a("s_mul_i32 s%d, s%d, %d" % (sT, sT, 36 * 1024))
    a("s_add_u32 s%d, s%d, 0x%x" % (sX, sT, WS_XC))
    a("s_mul_i32 s%d, s%d, %d" % (sSt, sJ, ACT))
    a("s_add_u32 s%d, s%d, s%d" % (sSt, sSt, sT))
    a("s_add_u32 s%d, s%d, 0x%x" % (sSt, sSt, WS_P))
    a("s_mov_b32 s%d, 0x7f000000" % sStB)
    a("s_mov_b32 s58, s%d" % sSt)
    a("v_lshlrev_b32 v%d, 7, v2" % vN[0])
    a("s_mov_b32 s%d, 0" % sHI)
    a("s_mov_b32 s%d, -1" % sCnt)
    a("s_mov_b32 s56, 0x0f0f0f0f")
    a("s_mov_b32 s57, 0xf0f0f0f0")
    a("s_mov_b64 vcc, -1")
    a("s_waitcnt lgkmcnt(0)")
    srd(a, sDG, 36, D * F * 2)
    srd(a, sDU, 38, D * F * 2)
    srd(a, sWS, 42, WS_END)

    def dma_stage(vo, srdn, run, m0f, deltas):
        out = []
        for g in range(3):
            n = 4 if g < 2 else 1
            out.append([m0f(g)])
            for q in range(n):
                grp = ["buffer_load_dwordx4 v%d, s[%d:%d], s%d offen offset:%d lds" % (vo[q], srdn, srdn + 3, run, q * 1024)]
                if q == n - 1:
                    grp.append("s_add_u32 s%d, s%d, %s" % (run, run, deltas[g]))
                out.append(grp)
        return out
    def m0s(slot):
        return lambda g: "s_add_u32 m0, s%d, 0x%x" % (sWB, slot * SLOT + g * 4096)
    def s_stage(slot, half):
        o = []
        for g in range(3):
            n = 4 if g < 2 else 1
            o.append("s_add_u32 s55, s%d, 0x%x" % (sS, (288 * half + 32 * g) * 9216))
            o.append(m0s(slot)(g))
            for (srdn, ex) in ((sDG, "s_mov_b64 exec, s[56:57]"), (sDU, "s_not_b64 exec, s[56:57]")):
                o.append(ex)
                for q in range(n):
                    o.append("buffer_load_dwordx4 v%d, s[%d:%d], s55 offen offset:%d lds" % (8 + q, srdn, srdn + 3, q * 1024))
            o.append("s_mov_b64 exec, -1")
        return o
    def xload(t):
        o = []
        if t % 4 == 0 and t:
            o.append("s_add_u32 s%d, s%d, 4096" % (sX, sX))
        for mb in range(2):
            o.append("buffer_load_dwordx4 %s, v%d, s[%d:%d], s%d offen offset:%d %s" % (ar(X0 + 4 * (18 * mb + t), 4), (vL16, vL16b)[mb], sWS, sWS + 3, sX, (t % 4) * 1024, LD_FLAGS))
        return o
    log = []
    def emit_logged(lst, tag, out=None):
        for s_ in lst:
            (out.append(s_) if out is not None else a(s_))
            if s_.startswith("buffer_"):
                log.append(tag)
    def need(tag):
        idx = max(k for k, t_ in enumerate(log) if t_ == tag)
        return min(63, len(log) - 1 - idx)

    emit_logged(s_stage(0, 0), "S0")
    for t in range(9):
        emit_logged(xload(t), "x%d" % t)

    def fr(i):
        return AF + 4 * (i % NB)
    def reads(i, desc):
        fb, t = desc[2](i)
        if desc[0] == "D":
            o = desc[1] * SLOT + t * 4096
            lv = min(o // LVL, 2)
            v = vR[lv][fb]; o -= lv * LVL
        else:
            v = desc[1][fb]; o = t * 4096
        assert o + 2048 < 65536
        return ["ds_read_b64_tr_b16 %s, v%d offset:%d" % (ar(fr(i), 2), v, o),
                "ds_read_b64_tr_b16 %s, v%d offset:%d" % (ar(fr(i) + 2, 2), v, o + 2048)]
    DIST = NB - 1
    BAR = 36 - DIST
    assert 36 % NB == 0
    IDXSPAN = opt.get("idxspan", False)
    DSP = opt.get("dsp", 5)
    POS = [(i, g) for i in range(36) for g in ((0, 1) if i % 2 == 0 else (0,))]
    class Fill:
        def __init__(s): s.d = {}
        def free(s, p): return p not in s.d
        def put(s, k, grp):
            s.d.setdefault(POS[k], []).extend(grp)
        def seq(s, items, start, step=1):
            k = start
            for g in items:
                while k < len(POS) and POS[k] in s.d: k += 1
                if k >= len(POS):
                    k = len(POS) - 1
                s.d.setdefault(POS[k], []).extend(g)
                k += step
            return k
        def nvm(s, lo, hi):
            return sum(1 for (i, g), l in s.d.items() if lo <= i < hi for x in l if x.startswith("buffer_"))
    def kpos(i):
        return POS.index((i, 0))
    def place_dma(fill, groups, start, step):
        k = start
        pend = []
        for g in groups:
            if "m0" in g[0]:
                pend = g; continue
            if pend:
                fill.put(k - 1, pend); pend = []
            fill.put(k, g[:1])
            if len(g) > 1: fill.put(k + 1, g[1:])
            k += step
    o1 = lambda i: (i % 4, i // 4)
    o2 = lambda i: (2 * (i // 18) + (i % 2), (i % 18) // 2)
    def mf_g1(acc, kbase, first):
        def f(i):
            fb, t = o1(i)
            r = []
            for mb in range(2):
                ac = acc + (fb * 2 + mb) * 4
                c = "0" if (first and t == 0) else vr(ac, 4)
                r.append("v_mfma_f32_16x16x32_bf16 %s, %s, %s, %s" % (vr(ac, 4), ar(fr(i), 4), ar(X0 + 4 * (18 * mb + kbase + t), 4), c))
            return r
        return f
    def cvts(hbase, src):
        cv = []
        for u in range(2):
            for mb in range(2):
                for k in range(4):
                    t = src + ((2 * u + k // 2) * 2 + mb) * 4 + 2 * (k % 2)
                    cv.append("v_cvt_pk_bf16_f32 v%d, v%d, v%d" % (hbase + 8 * u + 4 * mb + k, t, t + 1))
        return cv
    def em(s_):
        if opt.get("nodma") and s_.endswith(" lds"): return
        if opt.get("nost") and s_.startswith("buffer_store"): return
        (a.label(s_[:-1]) if s_.endswith(":") else a(s_))
    def gstage(cur, nxt, mf, fill, barwait):
        for i in range(36):
            if i == BAR and nxt is not None:
                for s_ in barwait: em(s_)
                a("s_barrier")
            if i % 2 == 0:
                a("s_waitcnt lgkmcnt(%d)" % (2 * (DIST - 2)))
            if i + DIST < 36: rd = reads(i + DIST, cur)
            elif nxt is not None: rd = reads(i + DIST - 36, nxt)
            else: rd = []
            m = mf(i)
            a(m[0])
            if rd: a(rd[0])
            for s_ in fill.d.get((i, 0), []): em(s_)
            a(m[1])
            if rd: a(rd[1])
            for s_ in fill.d.get((i, 1), []): em(s_)

    dl = ["s%d" % sD0, "s%d" % sD1, "s%d" % sD2l]
    dh = ["s%d" % sD0, "s%d" % sD1, "s%d" % sD2h]
    D_ = lambda s: ("D", s, o1)
    side = []
    a("s_waitcnt vmcnt(%d)" % need("S0"))
    a("s_barrier")
    st.stamp()
    for i in range(DIST):
        for s_ in reads(i, D_(0)): a(s_)
    work = [(s_stage(1, 1), "S1")] + [(xload(t), "x%d" % t) for t in range(9, 18)] + \
           [([s_ for g in dma_stage(vDX, sDG, sRG, m0s(2), dl) for s_ in (g + ["s_nop 0"] if "m0" in g[0] else g)], "G0")]
    sched = {0: work[0:1], 1: work[1:4], 2: work[4:7], 3: work[7:10], 4: work[10:11]}
    for (lst, tag) in sched[0]:
        emit_logged(lst, tag)
    a("s_waitcnt vmcnt(%d)" % need("x0"))
    a("s_branch %s_C" % L)

    fillC, fillD = Fill(), Fill()
    for (nm, fill) in (("C", fillC), ("D", fillD)):
        for t in range(1, 10 if nm == "C" else 9):
            lab = "%s_s%s%d" % (L, nm, t)
            fill.d[(4 * t - 1, 0)] = ["s_cbranch_vccnz %s" % lab, lab + "r:"]
    place_dma(fillC, dma_stage(vDX, sDG, sRG, m0s(3), dh), kpos(17), 3)
    place_dma(fillD, dma_stage(vDX, sDU, sRU, m0s(0), dl), 1, DSP)
    fillD.put(len(POS) - 2, ["s_add_u32 s%d, s%d, 1" % (sCnt, sCnt)])
    fillD.put(len(POS) - 1, ["s_cmp_lt_u32 s%d, 4" % sCnt])
    mx = [["v_max_f32 v%d, 0, v%d" % (T0 + r, AG + r)] for r in range(32)]
    if opt.get("pfp"):
        fillC.seq([["buffer_load_dword v%d, v%d, s[%d:%d], s58 offen %s" % (vN[1], vN[0], sWS, sWS + 3, opt.get("pfp_flags", ""))], ["s_add_u32 s58, s58, 8192"]], kpos(opt.get("pfp")))
    fillC.seq(mx[:14], 4)
    fillD.seq(mx[14:], 0)
    bars = {}
    for (nm, fill, kb) in (("C", fillC, 0), ("D", fillD, 9)):
        for i in range(36):
            if i == BAR:
                lab = "%s_b%s" % (L, nm)
                bars[nm] = ["s_cbranch_vccnz %s" % lab, "s_waitcnt vmcnt(%d)" % ((9 if nm == "C" else fillC.nvm(0, 36)) + fill.nvm(0, BAR)), lab + "r:"]
                side.append(lab + ":")
                side.append("s_waitcnt vmcnt(%d)" % need("S1" if nm == "C" else "G0"))
                side.append("s_branch %sr" % lab)
            for g in (0, 1):
                for s_ in fill.d.get((i, g), []):
                    if s_.startswith("buffer_"): log.append("f" + nm)
                    if s_.startswith("s_cbranch_vccnz"):
                        t = (i + 1) // 4
                        lab = s_.split()[1]
                        side.append(lab + ":")
                        if nm == "C":
                            for (lst, tag) in sched.get(t, []):
                                emit_logged(lst, tag, side)
                        side.append("s_waitcnt vmcnt(%d)" % need("x%d" % (kb + t)))
                        side.append("s_branch %sr" % lab)
    def barw(fill, prevn=9):
        return ["s_waitcnt vmcnt(%d)" % (prevn + fill.nvm(0, BAR))]

    a.label("%s_g1" % L)
    fill = Fill()
    place_dma(fill, dma_stage(vDX, sDU, sRU, m0s(1), dh), 1, DSP)
    fill.put(3, ["s_cbranch_vccnz %s_fix" % L, "%s_fixr:" % L])
    fill.seq([["v_mul_f32 v%d, v%d, v%d" % (T0 + r, T0 + r, AU + r)] for r in range(32)], 4)
    side.append("%s_fix:" % L)
    for r in range(16):
        side.append("v_max_f32 v%d, 0, v%d" % (T0 + 16 + r, AU + r))
    side.append("s_mov_b64 vcc, 0")
    if STAMP:
        r_ = st.sb + 6 + 4 * st.n; st.n += 1
        side += ["s_memtime s[%d:%d]" % (r_, r_ + 1), "s_memrealtime s[%d:%d]" % (r_ + 2, r_ + 3), "s_waitcnt lgkmcnt(0)"]
    side.append("s_branch %s_fixr" % L)
    gstage(D_(2), D_(3), mf_g1(AG, 0, True), fill, barw(fill))
    fill = Fill()
    cv = cvts(HB, T0)
    on, off = "s_set_gpr_idx_on s%d, 0x8" % sHI, "s_set_gpr_idx_off"
    if IDXSPAN:
        k = fill.seq([[on]] + [[c] for c in cv] + [[off]], 0)
    else:
        k = fill.seq([[on] + cv[4 * q:4 * q + 4] + [off] for q in range(4)], 0, 3)
    k = fill.seq([["s_add_u32 s%d, s%d, 16" % (sHI, sHI)], ["s_cmp_eq_u32 s%d, 3" % sCnt], ["s_cbranch_scc1 %s_sw" % L, "%s_swr:" % L]], k)
    place_dma(fill, dma_stage(vDX, sDG, sRG, m0s(2), dl), k + 1, (len(POS) - k - 3) // 8)
    side.append("%s_sw:" % L)
    if STAMP:
        r_ = st.sb + 6 + 4 * st.n; st.n += 1
        side += ["s_memtime s[%d:%d]" % (r_, r_ + 1), "s_memrealtime s[%d:%d]" % (r_ + 2, r_ + 3), "s_waitcnt lgkmcnt(0)"]
    for q in range(4):
        side.append("v_mov_b32 v%d, v%d" % (vDX[q], vDW[q]))
    side += ["s_mov_b32 s%d, s40" % sDG, "s_and_b32 s%d, s41, 0xffff" % (sDG + 1),
             "s_mov_b32 s%d, s40" % sDU, "s_and_b32 s%d, s41, 0xffff" % (sDU + 1),
             "s_mov_b32 s%d, s%d" % (sRG, sW0), "s_add_u32 s%d, s%d, 256" % (sRU, sW0),
             "s_mov_b32 s%d, s%d" % (sD0, sWd0), "s_mov_b32 s%d, %d" % (sD1, 32 * 1152),
             "s_sub_u32 s%d, %d, s%d" % (sD2l, 128 - 32 * 1152, sWd0), "s_mov_b32 s%d, s%d" % (sD2h, sD2l),
             "s_branch %s_swr" % L]
    gstage(D_(3), D_(0), mf_g1(AG, 9, False), fill, barw(fill))
    a.label("%s_C" % L)
    gstage(D_(0), D_(1), mf_g1(AU, 0, True), fillC, bars["C"])
    gstage(D_(1), D_(2), mf_g1(AU, 9, False), fillD, bars["D"])
    a("s_cbranch_scc1 %s_g1" % L)
    st.stamp()
    vC = vR[1]
    for fb in range(4):
        a("v_add_u32 v%d, 0x%x, v%d" % (vC[fb], 2 * SLOT, vR[0][fb]))
    V_ = lambda regs: ("V", regs, o2)
    a("s_waitcnt lgkmcnt(0)")
    for i in range(DIST):
        for s_ in reads(i, V_(vC)): a(s_)
    a("s_mov_b32 s%d, 0x%x" % (sSlotN, 3 * SLOT))
    a("s_mov_b32 s%d, 0x%x" % (sSlotC, 2 * SLOT))
    a("s_add_u32 s%d, s%d, 0x%x" % (sSlotD, sWB, 1 * SLOT))
    a("s_mov_b32 s%d, 0" % sCnt)
    for k in range(4):
        a("buffer_store_dword v0, v%d, s[%d:%d], s%d offen" % (vL16, sWS, sWS + 3, sStB))
    for r in range(32):
        a("v_mul_f32 v%d, v%d, v%d" % (T0 + r, T0 + r, AU + r))
    for s_ in cvts(HB + 64, T0): a(s_)
    a.label("%s_g2" % L)
    def mf2(i):
        db, t = o2(i)
        r = []
        for mb in range(2):
            ac = AG + (db * 2 + mb) * 4
            c = "0" if t == 0 else vr(ac, 4)
            r.append("v_mfma_f32_16x16x32_bf16 %s, %s, %s, %s" % (vr(ac, 4), ar(fr(i), 4), vr(H0 + 8 * t + 4 * mb, 4), c))
        return r
    def out_ep(u, soff):
        g = []
        for mb in range(2):
            tb = T0 + 8 * u + 4 * mb
            for k in range(4):
                s_ = AG + ((2 * u + k // 2) * 2 + mb) * 4 + 2 * (k % 2)
                g.append(["v_cvt_pk_bf16_f32 v%d, v%d, v%d" % (tb + k, s_, s_ + 1)])
            g.append(["buffer_store_dwordx4 %s, v%d, s[%d:%d], s%d offen offset:%d %s" % (vr(tb, 4), (vL16, vL16b)[mb], sWS, sWS + 3, soff, u * 1024, ST_FLAGS)])
        return g
    fill = Fill()
    n = len(POS)
    place_dma(fill, dma_stage(vDX, sDU, sRU, lambda g: "s_add_u32 m0, s%d, 0x%x" % (sSlotD, g * 4096), dl), 1, DSP)
    fill.put(n - 1, ["s_cmp_lt_u32 s%d, 9" % sCnt])
    k = fill.seq(out_ep(1, sStB), kpos(2))
    assert k <= kpos(18)
    fill.seq([["v_add_u32 v%d, s%d, v%d" % (vC[0], sSlotN, vR[0][0])], ["v_add_u32 v%d, s%d, v%d" % (vC[1], sSlotN, vR[0][1])]], kpos(18 - DIST + 1))
    fill.seq([["s_add_u32 s%d, s%d, 1" % (sCnt, sCnt)], ["s_mov_b32 s%d, s%d" % (sStB, sSt)]], k)
    k = fill.seq(out_ep(0, sSt), kpos(20))
    k = fill.seq([["s_add_u32 s%d, s%d, 2048" % (sSt, sSt)]], k)
    k = max(k, kpos(BAR), 1 + 8 * DSP + 2)
    fill.seq([["v_add_u32 v%d, s%d, v%d" % (vC[2], sSlotN, vR[0][2])], ["v_add_u32 v%d, s%d, v%d" % (vC[3], sSlotN, vR[0][3])],
              ["s_add_u32 s%d, s%d, s%d" % (sSlotD, sWB, sSlotC)], ["s_mov_b32 s%d, s%d" % (sSlotC, sSlotN),
               "s_add_u32 s%d, s%d, 0x%x" % (sSlotN, sSlotN, SLOT)],
              ["s_cmp_ge_u32 s%d, 0x%x" % (sSlotN, 4 * SLOT), "s_cselect_b32 s%d, 0, s%d" % (sSlotN, sSlotN)],
              ["s_cmp_lt_u32 s%d, 6" % sCnt, "s_cselect_b32 s%d, 0x%x, 0" % (sDU + 2, D * F * 2)]], k)
    assert fill.d[POS[n - 1]] == ["s_cmp_lt_u32 s%d, 9" % sCnt], fill.d[POS[n - 1]]
    gstage(V_(vC), V_(vC), mf2, fill, barw(fill, 13))
    a("s_cbranch_scc1 %s_g2" % L)
    a("s_nop 7")
    for grp in out_ep(1, sStB):
        for s_ in grp: a(s_)
    st.stamp()
    st.finish(sW, 4)
    a.label("%s_end" % L)
    a("s_endpgm")
    for s_ in side: em(s_)
    return kernel_desc(name, NV + NA, NV)
```

```python
from common import *

def unpack8(a, src, dst):
    for k in range(4):
        a("v_lshlrev_b32 v%d, 16, v%d" % (dst + 2 * k, src + k))
        a("v_and_b32 v%d, 0xffff0000, v%d" % (dst + 2 * k + 1, src + k))

def ln_tail(a, XB, XF, vOff, sWS, sBase, sRow, vTid, L, st_flags=""):
    unpack8(a, XB, XF)
    a("s_add_u32 s30, s%d, 0x%x" % (sBase, WS_XR))
    a("buffer_store_dwordx4 %s, v%d, s[%d:%d], s30 offen %s" % (vr(XB, 4), vOff, sWS, sWS + 3, st_flags))
    a("v_add_f32 v40, v%d, v%d" % (XF, XF + 1))
    a("v_mul_f32 v41, v%d, v%d" % (XF, XF))
    a("v_fmac_f32 v41, v%d, v%d" % (XF + 1, XF + 1))
    for k in range(2, 8):
        a("v_add_f32 v40, v40, v%d" % (XF + k))
        a("v_fmac_f32 v41, v%d, v%d" % (XF + k, XF + k))
    xl_sum(a, [40, 41], [42, 43], [8, 16, 32])
    a("v_and_b32 v44, 7, v%d" % vTid)
    a("v_mul_u32_u24 v44, 80, v44")
    a("v_lshrrev_b32 v45, 6, v%d" % vTid)
    a("v_lshl_add_u32 v45, v45, 3, v44")
    a("ds_write_b64 v45, v[40:41]")
    a("s_waitcnt lgkmcnt(0)")
    a("s_barrier")
    for q in range(4):
        a("ds_read_b128 %s, v44 offset:%d" % (vr(46 + 4 * q, 4), 16 * q))
    a("ds_read_b64 v[40:41], v44 offset:64")
    a("s_waitcnt lgkmcnt(0)")
    for q in range(8):
        a("v_add_f32 v40, v40, v%d" % (46 + 2 * q))
        a("v_add_f32 v41, v41, v%d" % (47 + 2 * q))
    a("s_mov_b32 s31, 0x%x" % f2u(1.0 / 576))
    a("v_mul_f32 v40, s31, v40")
    a("v_mul_f32 v42, v40, v40")
    a("v_fma_f32 v41, v41, s31, -v42")
    a("v_max_f32 v41, 0, v41")
    a("v_add_f32 v41, 0x%x, v41" % f2u(1e-5))
    a("v_rsq_f32 v41, v41")
    for k in range(8):
        a("v_sub_f32 v%d, v%d, v40" % (XF + k, XF + k))
    for k in range(8):
        a("v_mul_f32 v%d, v%d, v41" % (XF + k, XF + k))
    for k in range(4):
        a("v_cvt_pk_bf16_f32 v%d, v%d, v%d" % (46 + k, XF + 2 * k, XF + 2 * k + 1))
    a("s_add_u32 s30, s%d, 0x%x" % (sBase, WS_XN))
    a("buffer_store_dwordx4 v[46:49], v%d, s[%d:%d], s30 offen %s" % (vOff, sWS, sWS + 3, st_flags))
    a("v_lshlrev_b32 v44, 2, v%d" % vTid)
    a("v_cmp_gt_u32 vcc, 8, v%d" % vTid)
    a("s_lshl_b32 s30, s%d, 2" % sRow)
    a("s_add_u32 s30, s30, 0x%x" % WS_MEAN)
    a("s_and_saveexec_b64 s[32:33], vcc")
    a("s_cbranch_execz %s_nomean" % L)
    a("buffer_store_dword v40, v44, s[%d:%d], s30 offen %s" % (sWS, sWS + 3, st_flags))
    a.label("%s_nomean" % L)

import struct
def f2u(x): return struct.unpack("<I", struct.pack("<f", x))[0]

def gen_k4(a, name, final, opt=None):
    opt = opt or {}
    LD = opt.get("ld_flags", "")
    kernel_begin(a, name)
    L = name
    sWS, sOUT = 4, 8
    a("s_cmp_ge_u32 s2, 256")
    a("s_cbranch_scc1 %s_end" % L)
    a("s_load_dwordx2 s[12:13], s[0:1], 72")
    a("s_load_dwordx2 s[14:15], s[0:1], 56")
    a("v_and_b32 v1, 7, v0")
    a("v_lshrrev_b32 v2, 3, v0")
    a("v_lshlrev_b32 v3, 4, v1")
    a("v_lshl_add_u32 v3, v2, 8, v3")
    a("s_lshr_b32 s16, s2, 1")
    a("s_mul_i32 s16, s16, 18432")
    a("s_and_b32 s17, s2, 1")
    a("s_lshl_b32 s17, s17, 7")
    a("s_add_u32 s16, s16, s17")
    a("s_lshl_b32 s18, s2, 3")
    a("v_lshlrev_b32 v4, 5, v1")
    a("s_lshl_b32 s19, s18, 5")
    a("s_add_u32 s19, s19, 0x%x" % WS_SSQ)
    a("s_add_u32 s20, s16, 0x%x" % WS_P)
    a("s_add_u32 s21, s16, 0x%x" % WS_X1)
    a("s_waitcnt lgkmcnt(0)")
    srd(a, sWS, 12, WS_END)
    P0 = 64
    for j in range(16):
        a("buffer_load_dwordx4 %s, v3, s[4:7], s20 offen %s" % (vr(P0 + 4 * j, 4), LD))
        if j < 15: a("s_add_u32 s20, s20, 0x%x" % ACT)
    a("buffer_load_dwordx4 v[8:11], v3, s[4:7], s21 offen %s" % LD)
    a("buffer_load_dwordx4 v[12:15], v4, s[4:7], s19 offen %s" % LD)
    a("buffer_load_dwordx2 v[16:17], v4, s[4:7], s19 offen offset:16 %s" % LD)
    if final: srd(a, sOUT, 14, ACT)
    ACC, TM = 24, 32
    for j in range(16):
        a("s_waitcnt vmcnt(%d)" % (15 - j + 3))
        if j == 0:
            unpack8(a, P0, ACC)
        else:
            unpack8(a, P0 + 4 * j, TM)
            for k in range(8):
                a("v_add_f32 v%d, v%d, v%d" % (ACC + k, ACC + k, TM + k))
    a("s_waitcnt vmcnt(0)")
    a("v_add_f32 v12, v12, v13")
    a("v_add_f32 v14, v14, v15")
    a("v_add_f32 v16, v16, v17")
    a("v_add_f32 v12, v12, v14")
    a("v_add_f32 v12, v12, v16")
    a("v_mov_b32 v13, 0x%x" % f2u(1e-5))
    a("s_mov_b32 s31, 0x%x" % f2u(1.0 / 576))
    a("v_fma_f32 v12, v12, s31, v13")
    a("v_rcp_f32 v12, v12")
    unpack8(a, 8, TM)
    for k in range(8):
        a("v_fmac_f32 v%d, v%d, v12" % (TM + k, ACC + k))
    for k in range(4):
        a("v_cvt_pk_bf16_f32 v%d, v%d, v%d" % (8 + k, TM + 2 * k, TM + 2 * k + 1))
    if not final:
        ln_tail(a, 8, TM, 3, sWS, 16, 18, 0, L, opt.get("st_flags", ""))
    else:
        a("v_and_b32 v5, 8, v0")
        a("v_cmp_eq_u32 vcc, 0, v5")
        a("v_mov_b32_dpp v20, v8 row_ror:8 row_mask:0xf bank_mask:0xf")
        a("v_mov_b32_dpp v21, v9 row_ror:8 row_mask:0xf bank_mask:0xf")
        a("v_mov_b32_dpp v22, v10 row_ror:8 row_mask:0xf bank_mask:0xf")
        a("v_mov_b32_dpp v23, v11 row_ror:8 row_mask:0xf bank_mask:0xf")
        a("v_cndmask_b32 v24, v22, v8, vcc")
        a("v_cndmask_b32 v25, v23, v9, vcc")
        a("v_cndmask_b32 v26, v10, v20, vcc")
        a("v_cndmask_b32 v27, v11, v21, vcc")
        a("v_lshrrev_b32 v6, 2, v2")
        a("v_lshlrev_b32 v6, 6, v6")
        a("v_lshl_add_u32 v6, v5, 2, v6")
        a("v_and_b32 v7, 16, v0")
        a("v_add_u32 v6, v6, v7")
        a("v_mul_u32_u24 v7, 1152, v1")
        a("v_add_u32 v6, v6, v7")
        a("s_mul_i32 s22, s18, 1152")
        a("buffer_store_dwordx4 v[24:27], v6, s[8:11], s22 offen")
    a.label("%s_end" % L)
    a("s_endpgm")
    return kernel_desc(name, 128, 128)

def gen_k0(a, name, opt=None):
    opt = opt or {}
    kernel_begin(a, name)
    L = name
    sWS, sIN = 4, 8
    a("s_cmp_ge_u32 s2, 616")
    a("s_cbranch_scc1 %s_end" % L)
    a("s_load_dwordx2 s[12:13], s[0:1], 72")
    a("s_load_dwordx4 s[24:27], s[0:1], 0")
    a("s_load_dwordx2 s[28:29], s[0:1], 16")
    a("v_lshrrev_b32 v1, 6, v0")
    a("v_and_b32 v2, 63, v0")
    a("v_readfirstlane_b32 s23, v1")
    a("s_cmp_ge_u32 s2, 256")
    a("s_cbranch_scc1 %s_pack" % L)
    a("v_and_b32 v1, 7, v0")
    a("v_lshrrev_b32 v2, 3, v0")
    a("v_lshlrev_b32 v3, 4, v1")
    a("v_lshl_add_u32 v3, v2, 8, v3")
    a("s_lshr_b32 s16, s2, 1")
    a("s_mul_i32 s16, s16, 18432")
    a("s_and_b32 s17, s2, 1")
    a("s_lshl_b32 s17, s17, 7")
    a("s_add_u32 s16, s16, s17")
    a("s_lshl_b32 s18, s2, 3")
    a("v_lshrrev_b32 v5, 2, v2")
    a("v_lshlrev_b32 v5, 6, v5")
    a("v_and_b32 v6, 3, v2")
    a("v_lshl_add_u32 v5, v6, 3, v5")
    a("v_mul_u32_u24 v6, 1152, v1")
    a("v_add_u32 v5, v5, v6")
    a("s_mul_i32 s22, s18, 1152")
    a("s_waitcnt lgkmcnt(0)")
    srd(a, sWS, 12, WS_END)
    srd(a, sIN, 24, ACT)
    a("buffer_load_dwordx2 v[8:9], v5, s[8:11], s22 offen")
    a("buffer_load_dwordx2 v[10:11], v5, s[8:11], s22 offen offset:32")
    a("s_waitcnt vmcnt(0)")
    ln_tail(a, 8, 32, 3, sWS, 16, 18, 0, L, opt.get("st_flags", ""))
    a("s_endpgm")
    a.label("%s_pack" % L)
    a("v_and_b32 v3, 15, v2")
    a("v_lshrrev_b32 v4, 4, v2")
    a("v_lshlrev_b32 v5, 4, v2")
    a("s_sub_u32 s16, s2, 256")
    a("s_mul_i32 s16, s16, 9")
    a("s_add_u32 s16, s16, s23")
    a("s_waitcnt lgkmcnt(0)")
    srd(a, sWS, 12, WS_END)
    a("s_cmp_ge_u32 s2, 480")
    a("s_cbranch_scc1 %s_wo" % L)
    srd(a, sIN, 26, 576 * 1728 * 2)
    a("s_mul_i32 s17, s16, 9363")
    a("s_lshr_b32 s17, s17, 16")
    a("s_mul_i32 s18, s17, 7")
    a("s_sub_u32 s18, s16, s18")
    a("s_mul_i32 s19, s17, 3641")
    a("s_lshr_b32 s19, s19, 16")
    a("s_mul_i32 s20, s19, 18")
    a("s_sub_u32 s20, s17, s20")
    a("s_lshr_b32 s21, s18, 1")
    a("s_add_u32 s21, s21, 1")
    a("s_cmp_eq_u32 s21, 3")
    a("s_cselect_b32 s21, 0, s21")
    a("s_mul_i32 s21, s21, 576")
    a("s_and_b32 s22, s18, 1")
    a("s_mul_i32 s22, s22, 18")
    a("s_add_u32 s21, s21, s22")
    a("v_add_u32 v6, s21, v3")
    a("v_bfe_u32 v7, v3, 1, 1")
    a("v_bfe_u32 v8, v3, 2, 1")
    a("v_mul_u32_u24 v9, 576, v7")
    a("v_mul_u32_u24 v8, 18, v8")
    a("v_add3_u32 v9, v9, v8, 576" if False else "v_add_u32 v9, v9, v8")
    a("v_add_u32 v9, 576, v9")
    a("v_mul_u32_u24 v8, 18, v7")
    a("v_cmp_gt_u32 vcc, 8, v3")
    a("s_nop 1")
    a("v_cndmask_b32 v9, v8, v9, vcc")
    a("v_and_b32 v8, 1, v3")
    a("v_add3_u32 v9, v9, v8, 16")
    a("v_mov_b32 v8, 0x1000000")
    a("v_cmp_gt_u32 vcc, 12, v3")
    a("s_nop 1")
    a("v_cndmask_b32 v9, v8, v9, vcc")
    a("s_cmp_eq_u32 s18, 6")
    a("s_cselect_b64 vcc, -1, 0")
    a("v_cndmask_b32 v6, v6, v9, vcc")
    a("v_lshlrev_b32 v6, 1, v6")
    a("s_movk_i32 s21, %d" % (4 * 3456))
    a("v_mad_u32_u24 v6, v4, s21, v6")
    a("s_mul_i32 s21, s20, %d" % (32 * 3456))
    a("s_mul_i32 s22, s19, 72")
    a("s_add_u32 s21, s21, s22")
    for e in range(8):
        row = e if e < 4 else 16 + e - 4
        a("s_add_u32 s22, s21, %d" % (row * 3456))
        a("buffer_load_ushort v%d, v6, s[8:11], s22 offen" % (20 + e))
    a("s_lshl_b32 s16, s16, 10")
    a("s_add_u32 s16, s16, 0x%x" % WS_WQ)
    a("s_waitcnt vmcnt(0)")
    for p in range(4):
        a("v_lshl_or_b32 v%d, v%d, 16, v%d" % (12 + p, 21 + 2 * p, 20 + 2 * p))
    a("buffer_store_dwordx4 v[12:15], v5, s[4:7], s16 offen")
    a("s_endpgm")
    a.label("%s_wo" % L)
    srd(a, sIN, 28, 576 * 576 * 2)
    a("s_cmp_ge_u32 s2, 552")
    a("s_cbranch_scc1 %s_wbar" % L)
    a("s_sub_u32 s16, s16, 2016")
    a("s_mul_i32 s17, s16, 10923")
    a("s_lshr_b32 s17, s17, 16")
    a("s_mul_i32 s18, s17, 6")
    a("s_sub_u32 s18, s16, s18")
    a("s_mul_i32 s19, s17, 3641")
    a("s_lshr_b32 s19, s19, 16")
    a("s_mul_i32 s20, s19, 18")
    a("s_sub_u32 s20, s17, s20")
    a("s_lshl_b32 s20, s20, 2")
    a("v_add_u32 v6, s20, v4")
    a("v_mul_u32_u24 v7, 7282, v6")
    a("v_lshrrev_b32 v7, 16, v7")
    a("v_mul_u32_u24 v8, 9, v7")
    a("v_sub_u32 v8, v6, v8")
    a("v_lshrrev_b32 v9, 1, v8")
    a("v_mul_u32_u24 v9, 18, v9")
    a("v_and_b32 v10, 1, v8")
    a("v_lshl_add_u32 v9, v10, 3, v9")
    a("v_cmp_eq_u32 vcc, 8, v8")
    a("v_mov_b32 v10, 16")
    a("v_mov_b32 v11, %d" % (2 * 1152))
    a("v_mov_b32 v16, %d" % (18 * 1152))
    a("v_cndmask_b32 v9, v9, v10, vcc")
    a("v_cndmask_b32 v11, v11, v16, vcc")
    a("v_mad_u32_u24 v9, v7, 64, v9")
    a("v_lshl_add_u32 v9, v7, 3, v9")
    a("v_mul_u32_u24 v9, 1152, v9")
    a("v_lshl_add_u32 v9, v3, 1, v9")
    a("s_mul_i32 s21, s19, 6")
    a("s_add_u32 s21, s21, s18")
    a("s_lshl_b32 s21, s21, 5")
    for p in range(4):
        a("buffer_load_ushort v%d, v9, s[8:11], s21 offen" % (20 + 2 * p))
        a("buffer_load_ushort v%d, v9, s[8:11], s21 offen offset:1152" % (21 + 2 * p))
        if p < 3: a("v_add_u32 v9, v9, v11")
    a("s_lshl_b32 s16, s16, 10")
    a("s_add_u32 s16, s16, 0x%x" % WS_WO)
    a("s_waitcnt vmcnt(0)")
    for p in range(4):
        a("v_lshl_or_b32 v%d, v%d, 16, v%d" % (12 + p, 21 + 2 * p, 20 + 2 * p))
    a("buffer_store_dwordx4 v[12:15], v5, s[4:7], s16 offen")
    a("s_endpgm")
    a.label("%s_wbar" % L)
    a("s_sub_u32 s16, s16, 2664")
    a("s_mul_i32 s21, s16, 1152")
    a("v_lshlrev_b32 v6, 5, v2")
    a("v_mov_b32 v7, 0x1000000")
    a("v_cmp_gt_u32 vcc, 36, v2")
    a("s_nop 1")
    a("v_cndmask_b32 v6, v7, v6, vcc")
    a("buffer_load_dwordx4 v[8:11], v6, s[8:11], s21 offen")
    a("buffer_load_dwordx4 v[12:15], v6, s[8:11], s21 offen offset:16")
    a("s_waitcnt vmcnt(0)")
    unpack8(a, 8, 16)
    unpack8(a, 12, 24)
    for k in range(1, 16):
        a("v_add_f32 v16, v16, v%d" % (16 + k))
    xl_sum(a, [16], [17], [8, 4, 2, 1, 16, 32])
    a("v_mul_f32 v16, 0x%x, v16" % f2u(1.0 / 576))
    a("s_lshl_b32 s16, s16, 2")
    a("s_add_u32 s16, s16, 0x%x" % WS_WBAR)
    a("v_mov_b32 v6, 0")
    a("s_mov_b64 exec, 1")
    a("buffer_store_dword v16, v6, s[4:7], s16 offen")
    a.label("%s_end" % L)
    a("s_endpgm")
    return kernel_desc(name, 64, 64)
```

```python
import sys
from common import *
from k1 import gen_k1
from k2 import gen_k2
from k3 import gen_k3
from k4 import gen_k4, gen_k0
out = sys.argv[1]
opt = eval(sys.argv[2]) if len(sys.argv) > 2 else {}
ref = open("interleave_layers__sliding_local_dilated__glu_gated_reglu__prompt.s.ref").read().split("\n")
hdr = [l for l in ref if l.startswith(";") and "@launch" not in l and "Override" not in l and "grid=ceil" not in l]
K = {"k0": "k0_kernel grid=(616,1,1) block=(576,1,1) lds=1024",
     "k1": "k1_kernel grid=(256,1,1) block=(256,1,1) lds=147456",
     "k2": "k2_kernel grid=(192,1,1) block=(256,1,1) lds=110592",
     "k3": "k3_kernel grid=(256,1,1) block=(256,1,1) lds=147456",
     "k4a": "k4a_kernel grid=(256,1,1) block=(576,1,1) lds=1024",
     "k4b": "k4b_kernel grid=(256,1,1) block=(576,1,1) lds=1024",
     "nop": "nop_kernel grid=(256,1,1) block=(256,1,1) lds=0"}
seq = opt.get("seq", ["k0", "k1", "k2", "k3", "k4a", "k1", "k2", "k3", "k4b"])
a = Asm()
for l in hdr: a.raw(l)
for k in seq: a.raw("; @launch kernel=" + K[k])
a.raw('.amdgcn_target "amdgcn-amd-amdhsa--gfx950"')
a.raw(".text")
d = []
d.append(gen_k0(a, "k0_kernel", opt.get("k0")))
d.append(gen_k1(a, "k1_kernel", opt.get("k1")))
d.append(gen_k2(a, "k2_kernel", opt.get("k2")))
k3o = {"xmap": 4}; k3o.update(opt.get("k3", {}))
d.append(gen_k3(a, "k3_kernel", k3o))
d.append(gen_k4(a, "k4a_kernel", False, opt.get("k4")))
d.append(gen_k4(a, "k4b_kernel", True, opt.get("k4")))
if "nop" in seq:
    kernel_begin(a, "nop_kernel"); a("s_endpgm"); d.append(kernel_desc("nop_kernel", 8, 8))
a.raw('.section .rodata,"a"')
for x in d:
    a.raw(".p2align 6"); a.raw(x)
open(out, "w").write(a.text())
```

```python
from mcommon import *
WS_XN, WS_XR, WS_MEAN = L_XN, L_XR, L_MEAN

def unpack8(a, src, dst):
    for k in range(4):
        a("v_lshlrev_b32 v%d, 16, v%d" % (dst + 2 * k, src + k))
        a("v_and_b32 v%d, 0xffff0000, v%d" % (dst + 2 * k + 1, src + k))

def ln_tail(a, XB, XF, vOff, sWS, sBase, sRow, vTid, L, st_flags=""):
    unpack8(a, XB, XF)
    a("s_add_u32 s30, s%d, 0x%x" % (sBase, WS_XR))
    a("buffer_store_dwordx4 %s, v%d, s[%d:%d], s30 offen %s" % (vr(XB, 4), vOff, sWS, sWS + 3, st_flags))
    a("v_add_f32 v40, v%d, v%d" % (XF, XF + 1))
    a("v_mul_f32 v41, v%d, v%d" % (XF, XF))
    a("v_fmac_f32 v41, v%d, v%d" % (XF + 1, XF + 1))
    for k in range(2, 8):
        a("v_add_f32 v40, v40, v%d" % (XF + k))
        a("v_fmac_f32 v41, v%d, v%d" % (XF + k, XF + k))
    xl_sum(a, [40, 41], [42, 43], [8, 16, 32])
    a("v_and_b32 v44, 7, v%d" % vTid)
    a("v_mul_u32_u24 v44, 80, v44")
    a("v_lshrrev_b32 v45, 6, v%d" % vTid)
    a("v_lshl_add_u32 v45, v45, 3, v44")
    a("ds_write_b64 v45, v[40:41]")
    a("s_waitcnt lgkmcnt(0)")
    a("s_barrier")
    for q in range(4):
        a("ds_read_b128 %s, v44 offset:%d" % (vr(46 + 4 * q, 4), 16 * q))
    a("ds_read_b64 v[40:41], v44 offset:64")
    a("s_waitcnt lgkmcnt(0)")
    for q in range(8):
        a("v_add_f32 v40, v40, v%d" % (46 + 2 * q))
        a("v_add_f32 v41, v41, v%d" % (47 + 2 * q))
    a("s_mov_b32 s31, 0x%x" % f2u(1.0 / 576))
    a("v_mul_f32 v40, s31, v40")
    a("v_mul_f32 v42, v40, v40")
    a("v_fma_f32 v41, v41, s31, -v42")
    a("v_max_f32 v41, 0, v41")
    a("v_add_f32 v41, 0x%x, v41" % f2u(1e-5))
    a("v_rsq_f32 v41, v41")
    for k in range(8):
        a("v_sub_f32 v%d, v%d, v40" % (XF + k, XF + k))
    for k in range(8):
        a("v_mul_f32 v%d, v%d, v41" % (XF + k, XF + k))
    for k in range(4):
        a("v_cvt_pk_bf16_f32 v%d, v%d, v%d" % (46 + k, XF + 2 * k, XF + 2 * k + 1))
    a("s_add_u32 s30, s%d, 0x%x" % (sBase, WS_XN))
    a("buffer_store_dwordx4 v[46:49], v%d, s[%d:%d], s30 offen %s" % (vOff, sWS, sWS + 3, st_flags))
    a("v_lshlrev_b32 v44, 2, v%d" % vTid)
    a("v_cmp_gt_u32 vcc, 8, v%d" % vTid)
    a("s_lshl_b32 s30, s%d, 2" % sRow)
    a("s_add_u32 s30, s30, 0x%x" % WS_MEAN)
    a("s_and_saveexec_b64 s[32:33], vcc")
    a("s_cbranch_execz %s_nomean" % L)
    a("buffer_store_dword v40, v44, s[%d:%d], s30 offen %s" % (sWS, sWS + 3, st_flags))
    a.label("%s_nomean" % L)

import struct
def f2u(x): return struct.unpack("<I", struct.pack("<f", x))[0]

def gen_k0(a, name, opt=None):
    opt = opt or {}
    kernel_begin(a, name)
    L = name
    sWS, sIN = 4, 8
    a("s_cmp_ge_u32 s2, 616")
    a("s_cbranch_scc1 %s_end" % L)
    a("s_load_dwordx2 s[12:13], s[0:1], 72")
    a("s_load_dwordx4 s[24:27], s[0:1], 0")
    a("s_load_dwordx2 s[28:29], s[0:1], 16")
    a("v_lshrrev_b32 v1, 6, v0")
    a("v_and_b32 v2, 63, v0")
    a("v_readfirstlane_b32 s23, v1")
    a("s_cmp_ge_u32 s2, 256")
    a("s_cbranch_scc1 %s_pack" % L)
    a("v_and_b32 v1, 7, v0")
    a("v_lshrrev_b32 v2, 3, v0")
    a("v_lshlrev_b32 v3, 4, v1")
    a("v_lshl_add_u32 v3, v2, 8, v3")
    a("s_lshr_b32 s16, s2, 1")
    a("s_mul_i32 s16, s16, 18432")
    a("s_and_b32 s17, s2, 1")
    a("s_lshl_b32 s17, s17, 7")
    a("s_add_u32 s16, s16, s17")
    a("s_lshl_b32 s18, s2, 3")
    a("v_lshrrev_b32 v5, 2, v2")
    a("v_lshlrev_b32 v5, 6, v5")
    a("v_and_b32 v6, 3, v2")
    a("v_lshl_add_u32 v5, v6, 3, v5")
    a("v_mul_u32_u24 v6, 1152, v1")
    a("v_add_u32 v5, v5, v6")
    a("s_mul_i32 s22, s18, 1152")
    a("s_waitcnt lgkmcnt(0)")
    srd(a, sWS, 12, WS_END)
    srd(a, sIN, 24, ACT)
    a("buffer_load_dwordx2 v[8:9], v5, s[8:11], s22 offen")
    a("buffer_load_dwordx2 v[10:11], v5, s[8:11], s22 offen offset:32")
    a("s_waitcnt vmcnt(0)")
    ln_tail(a, 8, 32, 3, sWS, 16, 18, 0, L, opt.get("st_flags", ""))
    a("s_endpgm")
    a.label("%s_pack" % L)
    a("v_and_b32 v3, 15, v2")
    a("v_lshrrev_b32 v4, 4, v2")
    a("v_lshlrev_b32 v5, 4, v2")
    a("s_sub_u32 s16, s2, 256")
    a("s_mul_i32 s16, s16, 9")
    a("s_add_u32 s16, s16, s23")
    a("s_waitcnt lgkmcnt(0)")
    srd(a, sWS, 12, WS_END)
    a("s_cmp_ge_u32 s2, 480")
    a("s_cbranch_scc1 %s_wo" % L)
    srd(a, sIN, 26, 576 * 1728 * 2)
    a("s_mul_i32 s17, s16, 9363")
    a("s_lshr_b32 s17, s17, 16")
    a("s_mul_i32 s18, s17, 7")
    a("s_sub_u32 s18, s16, s18")
    a("s_mul_i32 s19, s17, 3641")
    a("s_lshr_b32 s19, s19, 16")
    a("s_mul_i32 s20, s19, 18")
    a("s_sub_u32 s20, s17, s20")
    a("s_lshr_b32 s21, s18, 1")
    a("s_add_u32 s21, s21, 1")
    a("s_cmp_eq_u32 s21, 3")
    a("s_cselect_b32 s21, 0, s21")
    a("s_mul_i32 s21, s21, 576")
    a("s_and_b32 s22, s18, 1")
    a("s_mul_i32 s22, s22, 18")
    a("s_add_u32 s21, s21, s22")
    a("v_add_u32 v6, s21, v3")
    a("v_bfe_u32 v7, v3, 1, 1")
    a("v_bfe_u32 v8, v3, 2, 1")
    a("v_mul_u32_u24 v9, 576, v7")
    a("v_mul_u32_u24 v8, 18, v8")
    a("v_add3_u32 v9, v9, v8, 576" if False else "v_add_u32 v9, v9, v8")
    a("v_add_u32 v9, 576, v9")
    a("v_mul_u32_u24 v8, 18, v7")
    a("v_cmp_gt_u32 vcc, 8, v3")
    a("s_nop 1")
    a("v_cndmask_b32 v9, v8, v9, vcc")
    a("v_and_b32 v8, 1, v3")
    a("v_add3_u32 v9, v9, v8, 16")
    a("v_mov_b32 v8, 0x1000000")
    a("v_cmp_gt_u32 vcc, 12, v3")
    a("s_nop 1")
    a("v_cndmask_b32 v9, v8, v9, vcc")
    a("s_cmp_eq_u32 s18, 6")
    a("s_cselect_b64 vcc, -1, 0")
    a("v_cndmask_b32 v6, v6, v9, vcc")
    a("v_lshlrev_b32 v6, 1, v6")
    a("s_movk_i32 s21, %d" % (4 * 3456))
    a("v_mad_u32_u24 v6, v4, s21, v6")
    a("s_mul_i32 s21, s20, %d" % (32 * 3456))
    a("s_mul_i32 s22, s19, 72")
    a("s_add_u32 s21, s21, s22")
    for e in range(8):
        row = e if e < 4 else 16 + e - 4
        a("s_add_u32 s22, s21, %d" % (row * 3456))
        a("buffer_load_ushort v%d, v6, s[8:11], s22 offen" % (20 + e))
    a("s_lshl_b32 s16, s16, 10")
    a("s_add_u32 s16, s16, 0x%x" % WS_WQ)
    a("s_waitcnt vmcnt(0)")
    for p in range(4):
        a("v_lshl_or_b32 v%d, v%d, 16, v%d" % (12 + p, 21 + 2 * p, 20 + 2 * p))
    a("buffer_store_dwordx4 v[12:15], v5, s[4:7], s16 offen")
    a("s_endpgm")
    a.label("%s_wo" % L)
    srd(a, sIN, 28, 576 * 576 * 2)
    a("s_cmp_ge_u32 s2, 552")
    a("s_cbranch_scc1 %s_wbar" % L)
    a("s_sub_u32 s16, s16, 2016")
    a("s_mul_i32 s17, s16, 10923")
    a("s_lshr_b32 s17, s17, 16")
    a("s_mul_i32 s18, s17, 6")
    a("s_sub_u32 s18, s16, s18")
    a("s_mul_i32 s19, s17, 3641")
    a("s_lshr_b32 s19, s19, 16")
    a("s_mul_i32 s20, s19, 18")
    a("s_sub_u32 s20, s17, s20")
    a("s_lshl_b32 s20, s20, 2")
    a("v_add_u32 v6, s20, v4")
    a("v_mul_u32_u24 v7, 7282, v6")
    a("v_lshrrev_b32 v7, 16, v7")
    a("v_mul_u32_u24 v8, 9, v7")
    a("v_sub_u32 v8, v6, v8")
    a("v_lshrrev_b32 v9, 1, v8")
    a("v_mul_u32_u24 v9, 18, v9")
    a("v_and_b32 v10, 1, v8")
    a("v_lshl_add_u32 v9, v10, 3, v9")
    a("v_cmp_eq_u32 vcc, 8, v8")
    a("v_mov_b32 v10, 16")
    a("v_mov_b32 v11, %d" % (2 * 1152))
    a("v_mov_b32 v16, %d" % (18 * 1152))
    a("v_cndmask_b32 v9, v9, v10, vcc")
    a("v_cndmask_b32 v11, v11, v16, vcc")
    a("v_mad_u32_u24 v9, v7, 64, v9")
    a("v_lshl_add_u32 v9, v7, 3, v9")
    a("v_mul_u32_u24 v9, 1152, v9")
    a("v_lshl_add_u32 v9, v3, 1, v9")
    a("s_mul_i32 s21, s19, 6")
    a("s_add_u32 s21, s21, s18")
    a("s_lshl_b32 s21, s21, 5")
    for p in range(4):
        a("buffer_load_ushort v%d, v9, s[8:11], s21 offen" % (20 + 2 * p))
        a("buffer_load_ushort v%d, v9, s[8:11], s21 offen offset:1152" % (21 + 2 * p))
        if p < 3: a("v_add_u32 v9, v9, v11")
    a("s_lshl_b32 s16, s16, 10")
    a("s_add_u32 s16, s16, 0x%x" % WS_WO)
    a("s_waitcnt vmcnt(0)")
    for p in range(4):
        a("v_lshl_or_b32 v%d, v%d, 16, v%d" % (12 + p, 21 + 2 * p, 20 + 2 * p))
    a("buffer_store_dwordx4 v[12:15], v5, s[4:7], s16 offen")
    a("s_endpgm")
    a.label("%s_wbar" % L)
    a("s_sub_u32 s16, s16, 2664")
    a("s_sub_u32 s17, s2, 552")
    a("s_lshl_b32 s17, s17, 8")
    a("s_add_u32 s17, s17, 0x%x" % WS_FL)
    a("v_lshlrev_b32 v6, 2, v2")
    a("v_mov_b32 v7, 0")
    a("buffer_store_dword v7, v6, s[4:7], s17 offen")
    a("s_mul_i32 s21, s16, 1152")
    a("v_lshlrev_b32 v6, 5, v2")
    a("v_mov_b32 v7, 0x1000000")
    a("v_cmp_gt_u32 vcc, 36, v2")
    a("s_nop 1")
    a("v_cndmask_b32 v6, v7, v6, vcc")
    a("buffer_load_dwordx4 v[8:11], v6, s[8:11], s21 offen")
    a("buffer_load_dwordx4 v[12:15], v6, s[8:11], s21 offen offset:16")
    a("s_waitcnt vmcnt(0)")
    unpack8(a, 8, 16)
    unpack8(a, 12, 24)
    for k in range(1, 16):
        a("v_add_f32 v16, v16, v%d" % (16 + k))
    xl_sum(a, [16], [17], [8, 4, 2, 1, 16, 32])
    a("v_mul_f32 v16, 0x%x, v16" % f2u(1.0 / 576))
    a("s_lshl_b32 s16, s16, 2")
    a("s_add_u32 s16, s16, 0x%x" % WS_WBAR)
    a("v_mov_b32 v6, 0")
    a("s_mov_b64 exec, 1")
    a("buffer_store_dword v16, v6, s[4:7], s16 offen")
    a.label("%s_end" % L)
    a("s_endpgm")
    return kernel_desc(name, 64, 64)
```

```python
from common import Asm, kernel_begin, kernel_desc, srd, vr, ar, xl_sum, xmap, S, D, F, ACT
import struct
def f2u(x): return struct.unpack("<I", struct.pack("<f", x))[0]
L_XN, L_XR, L_O, L_X1, L_XC = [k * ACT for k in range(5)]
L_MEAN = 5 * ACT
L_SSQ = L_MEAN + 8192
L_OB = L_SSQ + 2048 * 32
LSTR = (L_OB + 2048 * 64 + 0xffff) & ~0xffff
WS_WBAR = 2 * LSTR
WS_FL = WS_WBAR + 4096
WS_WQ = WS_FL + 16384
WS_WO = WS_WQ + 16 * 126 * 1024
WS_P = (WS_WO + 648 * 1024 + 4096 + 0xfffff) & ~0xfffff
WS_END = WS_P + 16 * ACT
sWS, sDG, sDU, sOUT = 4, 8, 12, 16
sW, sJ, sI, sL = 20, 21, 22, 23
sFL = 60
sSTI = 61
vLane, vL16, vL16b, vST = 252, 253, 254, 255
LDS_STG = 111616
LDS_D = 160000
```

```python
from mcommon import *
import math
SLOT = 36 * 1024

class Ctx: pass

def stamp(c):
    if not c.stamp: return
    a = c.a
    a("s_memrealtime s[62:63]")
    a("s_waitcnt lgkmcnt(0)")
    a("s_lshl_b64 exec, 1, s%d" % sSTI)
    a("v_mov_b32 v%d, s62" % vST)
    a("s_mov_b64 exec, -1")
    a("s_add_u32 s%d, s%d, 1" % (sSTI, sSTI))

def signal(c, phase, nvm):
    a = c.a
    lab = c.lab("sig")
    a("s_waitcnt vmcnt(%d)" % nvm)
    a("s_barrier")
    a("s_cmp_lg_u32 s%d, %d" % (sW, c.sigwave))
    a("s_cbranch_scc1 %s" % lab)
    a("s_lshl_b32 s62, s%d, 2" % sJ)
    a("s_add_u32 s62, s62, s%d" % sFL)
    a("v_mov_b32 v250, 1")
    a("v_mov_b32 v251, %d" % (phase * 2048))
    a("s_mov_b64 exec, 1")
    a("buffer_store_dword v250, v251, s[4:7], s62 offen sc1")
    a("s_mov_b64 exec, -1")
    a.label(lab)

def phase_off(phase): return phase * 2048

def wait_flags(c, phase, n, halo=False, prev_layer=False):
    a = c.a
    skip, loop, done = c.lab("wf_skip"), c.lab("wf_loop"), c.lab("wf_done")
    a("s_cmp_lg_u32 s%d, 3" % sW)
    a("s_cbranch_scc1 %s" % skip)
    a("v_lshlrev_b32 v250, 2, v%d" % vLane)
    off = phase_off(phase) - (8192 if prev_layer else 0)
    mask = (1 << n) - 1
    a("s_add_u32 s62, s%d, 0x%x" % (sFL, off & 0xffffffff))
    if halo:
        a("s_sub_u32 s62, s62, 72")
        a("s_cmp_eq_u32 s%d, 0" % sI)
        a("s_cselect_b32 s64, 0, 3")
        a("s_or_b32 s64, s64, 0x%x" % ((mask << 18) & 0xffffffff))
        a("s_mov_b32 s65, 0x%x" % (mask << 18 >> 32))
    else:
        a("s_mov_b32 s64, 0x%x" % mask)
        a("s_mov_b32 s65, 0")
    a("s_mov_b64 exec, s[64:65]")
    a("s_mov_b32 s63, 0")
    a.label(loop)
    a("buffer_load_dword v251, v250, s[4:7], s62 offen sc1")
    a("s_add_u32 s63, s63, 1")
    a("s_waitcnt vmcnt(0)")
    a("v_cmp_eq_u32 vcc, 1, v251")
    a("s_cmp_eq_u64 vcc, s[64:65]")
    a("s_cbranch_scc1 %s" % done)
    a("s_cmp_lt_u32 s63, 0x%x" % c.maxpoll)
    a("s_cbranch_scc1 %s" % loop)
    a.label(done)
    a("s_mov_b64 exec, -1")
    a.label(skip)
    a("s_barrier")

def sig_store(c, phase):
    pass

def linear_dma(c, src_sreg, ngroups, lab):
    a = c.a
    a("s_mov_b32 s63, 0")
    a.label(lab)
    for q in range(4):
        a("buffer_load_dwordx4 v%d, s[4:7], s%d offen offset:%d lds" % (vL16, src_sreg, q * 1024))
    a("s_add_u32 m0, m0, 4096")
    a("s_add_u32 s%d, s%d, 4096" % (src_sreg, src_sreg))
    a("s_add_u32 s63, s63, 1")
    a("s_cmp_lt_u32 s63, %d" % ngroups)
    a("s_cbranch_scc1 %s" % lab)

def prefetch_A(c):
    a = c.a
    a("s_lshl_b32 s24, s%d, 15" % sW)
    a("s_mul_i32 s25, s%d, %d" % (sJ, 126 * 1024))
    a("s_add_u32 s25, s25, s24")
    a("s_add_u32 s25, s25, 0x%x" % WS_WQ)
    a("s_mov_b32 m0, s24")
    linear_dma(c, 25, 8, c.lab("pfA"))

def phase_A(c):
    a, opt = c.a, c.opt
    LD, ST = "sc1", "sc1"
    L = c.lab("A")
    B0, AF, NB = 0, 144, 12
    ACC, WB = 0, 196
    vLv = [218, 219, 220]; vHv = [221, 222, 223]
    P = 336
    HALO = 126 * 1024
    a("s_lshl_b32 s24, s%d, 10" % sW)
    a("s_lshl_b32 s27, s%d, 3" % sI)
    a("s_max_u32 s28, s27, 1")
    a("s_sub_u32 s28, s28, 1")
    a("s_mul_i32 s28, s28, 18432")
    a("s_add_u32 s28, s28, s%d" % sL)
    a("s_mul_i32 s29, s%d, 5120" % sW)
    a("s_add_u32 s28, s28, s29")
    a("s_add_u32 s29, s29, %d" % HALO)
    a("s_lshl_b32 s30, s%d, 1" % sW)
    a("s_add_u32 s30, s30, s27")
    a("s_mul_i32 s31, s30, 18432")
    a("s_add_u32 s31, s31, s%d" % sL)
    a("s_mov_b32 s32, s31")
    a("v_lshrrev_b32 v2, 5, v%d" % vLane)
    a("v_mul_u32_u24 v233, 72, v2")
    a("s_mul_i32 s33, s%d, 144" % sJ)
    a("s_add_u32 s33, s33, 0x%x" % WS_WBAR)
    LVL = 49152
    for lv in range(3):
        a("v_add_u32 v%d, 0x%x, v%d" % (vLv[lv], lv * LVL, vL16))
        a("v_add_u32 v%d, s24, v%d" % (vHv[lv], vLv[lv]))
    nos = c.lab("A_nosync")
    a("s_cmp_eq_u32 s%d, 0" % sL)
    a("s_cbranch_scc1 %s" % nos)
    wait_flags(c, 3, 16, halo=True, prev_layer=True)
    a.label(nos)
    stamp(c)
    log = []
    def em(lst, tag):
        for s_ in lst:
            a(s_)
            if s_.startswith("buffer_"): log.append(tag)
    def need(tag):
        idx = max(k for k, t_ in enumerate(log) if t_ == tag)
        return min(63, len(log) - 1 - idx)
    def xl(t):
        o = []
        for mb in range(2):
            g = []
            if mb == 0 and t % 4 == 0 and t: g.append("s_add_u32 s32, s32, 4096")
            g.append("buffer_load_dwordx4 %s, v%d, s[4:7], s32 offen offset:%d %s" % (ar(B0 + 4 * (18 * mb + t), 4), (vL16, vL16b)[mb], (t % 4) * 1024, LD))
            o.append(g)
        return o
    PRE = opt.get("A_pre", 6)
    for t in range(PRE):
        for g in xl(t): em(g, t)
    a("s_waitcnt vmcnt(%d)" % len(log))
    a("s_barrier")
    pend = [(g, t) for t in range(PRE, 18) for g in xl(t)]
    pend += [(["s_mov_b32 m0, s29"], "h")]
    pend += [(["buffer_load_dwordx4 v%d, s[4:7], s28 offen offset:%d %s lds" % (vL16, q * 1024, LD)], "h") for q in range(4)]
    pend += [(["s_add_u32 m0, m0, 4096", "s_add_u32 s28, s28, 4096"], "h"), (["buffer_load_dwordx4 v%d, s[4:7], s28 offen %s lds" % (vL16, LD)], "h")]
    pend += [(["buffer_load_dwordx4 %s, v233, s[4:7], s33 offen offset:%d" % (vr(WB + 4 * q, 4), 16 * q)], "wb") for q in range(4)]
    pend += [(["buffer_load_dwordx2 %s, v233, s[4:7], s33 offen offset:64" % vr(WB + 16, 2)], "wb")]
    stream = [("m", f) for f in range(126)] + [(k, t) for t in range(18) for k in ("hb", "a6", "aw")]
    def rd(n):
        k, x = stream[n]
        vs = vLv
        if k == "m": o = x * 1024
        elif k == "hb": o = HALO + x * 1024
        elif k == "a6": o = (x * 7 + 6) * 1024
        else: o = x * 7168; vs = vHv
        lv = min(o // LVL, 2)
        return "ds_read_b128 %s, v%d offset:%d" % (ar(AF + 4 * (n % NB), 4), vs[lv], o - lv * LVL)
    def fb(n): return ar(AF + 4 * (n % NB), 4)
    DIST = NB - 4
    nxt = 0
    for _ in range(DIST):
        a(rd(nxt)); nxt += 1
    def mf(acc, A, B, first):
        return "v_mfma_f32_16x16x32_bf16 %s, %s, %s, %s" % (vr(acc, 4), A, B, "0" if first else vr(acc, 4))
    for f in range(126):
        t, k = f // 7, f % 7
        if k == 0: a("s_waitcnt vmcnt(%d)" % need(t))
        if nxt == 126:
            a("s_waitcnt vmcnt(%d)" % need("h"))
            a("s_barrier")
        if f % 2 == 0: a("s_waitcnt lgkmcnt(%d)" % (nxt - 1 - (f + 1)))
        a(mf(ACC + 4 * k, fb(f), ar(B0 + 4 * t, 4), t == 0))
        a(rd(nxt)); nxt += 1
        a(mf(ACC + 4 * (7 + k), fb(f), ar(B0 + 4 * (18 + t), 4), t == 0))
        if pend and f % 2 == 0:
            g, tag = pend.pop(0); em(g, tag)
    assert not pend
    for t in range(18):
        n = 126 + 3 * t
        a("s_waitcnt lgkmcnt(%d)" % (nxt - 1 - (n + 2)))
        a(mf(ACC + 60, fb(n + 1), fb(n), t == 0))
        for _ in range(2):
            if nxt < len(stream): a(rd(nxt)); nxt += 1
        a(mf(ACC + 56, fb(n + 2), fb(n), t == 0))
        if nxt < len(stream): a(rd(nxt)); nxt += 1
    stamp(c)
    a("s_cmp_ge_u32 s%d, 6" % sJ)
    a("s_cselect_b32 s44, 6, 0")
    a("s_cselect_b32 s45, 4, 0")
    a("s_sub_u32 s44, s%d, s44" % sJ)
    a("s_add_u32 s45, s45, s27")
    a("s_add_u32 s45, s45, s%d" % sW)
    a("s_mul_i32 s46, s44, %d" % (108 * 1024))
    a("s_mul_i32 s47, s%d, %d" % (sW, 27 * 1024))
    a("s_add_u32 s46, s46, s47")
    a("s_add_u32 s46, s46, 0x%x" % WS_WO)
    a("s_cmp_ge_u32 s%d, 12" % sJ)
    a("s_cselect_b32 s46, 0x7f000000, s46")
    a("s_mov_b32 m0, s47")
    pf = []
    for g in range(7):
        for q in range(4):
            if g == 6 and q == 3: continue
            x = ["buffer_load_dwordx4 v%d, s[4:7], s46 offen offset:%d lds" % (vL16, q * 1024)]
            if q == 3: x += ["s_add_u32 m0, m0, 4096", "s_add_u32 s46, s46, 4096"]
            pf.append(x)
    cnt = [0]
    PFS = opt.get("A_pfs", 5)
    def v(s_):
        a(s_)
        cnt[0] += 1
        if pf and cnt[0] % PFS == 0:
            for x in pf.pop(0): a(x)
    a("v_and_b32 v64, 15, v%d" % vLane)
    a("v_lshrrev_b32 v65, 4, v%d" % vLane)
    a("v_mul_u32_u24 v64, %d, v64" % P)
    a("v_add_u32 v64, %d, v64" % LDS_STG)
    a("v_lshl_add_u32 v66, v65, 3, v64")
    a("v_lshl_add_u32 v67, v65, 4, v64")
    a("s_mul_i32 s34, s%d, %d" % (sW, 32 * P))
    a("s_add_u32 s34, s34, %d" % (16 * P))
    a("v_add_u32 v68, s34, v66")
    a("v_add_u32 v69, s34, v67")
    a("s_barrier")
    for mb in range(2):
        for nb, off in ((2, 128), (3, 192), (6, 256)):
            r = ACC + 4 * (7 * mb + nb)
            a("ds_write_b128 v69, %s offset:%d" % (vr(r, 4), off + mb * 16 * P))
        for nb, off in ((0, 0), (1, 32), (4, 64), (5, 96)):
            r = ACC + 4 * (7 * mb + nb)
            a("v_cvt_pk_bf16_f32 v%d, v%d, v%d" % (r, r, r + 1))
            a("v_cvt_pk_bf16_f32 v%d, v%d, v%d" % (r + 1, r + 2, r + 3))
            a("ds_write_b64 v68, %s offset:%d" % (vr(r, 2), off + mb * 16 * P))
    a("ds_write_b128 v67, v[60:63] offset:256")
    a("s_cmp_ge_u32 s%d, 2" % sW)
    a("s_cbranch_scc1 %s_hv" % L)
    a("s_lshl_b32 s35, s%d, 5" % sW)
    a("v_add_u32 v66, s35, v66")
    a("v_cvt_pk_bf16_f32 v56, v56, v57")
    a("v_cvt_pk_bf16_f32 v57, v58, v59")
    a("ds_write_b64 v66, v[56:57]")
    a("s_branch %s_hd" % L)
    a.label("%s_hv" % L)
    a("s_lshl_b32 s35, s%d, 6" % sW)
    a("v_add_u32 v67, s35, v67")
    a("ds_write_b128 v67, v[56:59]")
    a.label("%s_hd" % L)
    vK, vV, vTt, vQt, vGR = 225, 226, 227, 228, 229
    v("v_and_b32 v64, 31, v%d" % vLane)
    v("v_lshrrev_b32 v65, 5, v%d" % vLane)
    v("v_mul_u32_u24 v66, %d, v64" % P)
    v("s_add_u32 s34, s34, %d" % (LDS_STG - 14 * P))
    v("v_add_u32 v66, s34, v66")
    v("v_lshl_add_u32 v%d, v65, 5, v66" % vK)
    v("v_lshl_add_u32 v%d, v65, 6, v66" % vV)
    v("v_lshl_add_u32 v%d, v65, 4, v66" % vTt)
    v("v_lshl_add_u32 v%d, v65, 3, v66" % vQt)
    v("s_lshl_b32 s35, s30, 4")
    v("v_add_u32 v%d, s35, v64" % vGR)
    vO, vO2, vOB = 230, 231, 232
    v("v_lshrrev_b32 v66, 4, v64")
    v("v_mul_u32_u24 v66, 18432, v66")
    v("v_and_b32 v67, 15, v64")
    v("v_lshl_add_u32 v66, v67, 4, v66")
    v("v_lshl_add_u32 v%d, v65, 9, v66" % vO)
    v("v_lshl_add_u32 v%d, v65, 2, v66" % vO2)
    v("v_lshlrev_b32 v%d, 6, v%d" % (vOB, vGR))
    v("s_lshr_b32 s48, s%d, 1" % sJ)
    v("s_mul_i32 s48, s48, 2304")
    v("s_add_u32 s48, s48, s31")
    v("s_add_u32 s48, s48, 0x%x" % L_O)
    v("s_and_b32 s49, s%d, 1" % sJ)
    v("s_lshl_b32 s50, s49, 3")
    v("s_add_u32 s50, s50, s48")
    v("s_lshl_b32 s49, s49, 10")
    v("s_add_u32 s48, s48, s49")
    v("s_lshl_b32 s51, s%d, 2" % sJ)
    v("s_add_u32 s51, s51, s%d" % sL)
    v("s_add_u32 s51, s51, 0x%x" % L_OB)
    a("s_waitcnt lgkmcnt(0)")
    a("s_barrier")
    stamp(c)
    KR, TR, VA, Q, S_, O = 0, 64, 96, 160, 170, 178
    dl = []
    def ds(s_, tag):
        a(s_); dl.append(tag)
    def dwait(tag):
        idx = max(k for k, t_ in enumerate(dl) if t_ == tag)
        a("s_waitcnt lgkmcnt(%d)" % min(15, len(dl) - 1 - idx))
    ds("ds_read_b128 %s, v%d offset:%d" % (vr(Q, 4), vK, 14 * P + 64), "q")
    ds("ds_read_b128 %s, v%d offset:%d" % (vr(Q + 4, 4), vK, 14 * P + 80), "q")
    ds("ds_read_b64 %s, v%d offset:%d" % (vr(Q + 8, 2), vQt, 14 * P + 288), "q")
    def kread(j):
        o = (14 - 2 * j) * P
        ds("ds_read_b128 %s, v%d offset:%d" % (vr(KR + 8 * j, 4), vK, o), "k%d" % j)
        ds("ds_read_b128 %s, v%d offset:%d" % (vr(KR + 8 * j + 4, 4), vK, o + 16), "k%d" % j)
        ds("ds_read_b128 %s, v%d offset:%d" % (vr(TR + 4 * j, 4), vTt, o + 256), "k%d" % j)
    def vreg(j): return (VA + 16 * j) if j < 4 else (KR + 16 * (j - 4))
    def vread(j):
        o = (14 - 2 * j) * P + 128
        for q in range(4):
            ds("ds_read_b128 %s, v%d offset:%d" % (vr(vreg(j) + 4 * q, 4), vV, o + 16 * q), "v%d" % j)
    for j in range(4): kread(j)
    a("v_mov_b32 v%d, 0xff7fffff" % (O + 1))
    for j in range(8):
        dwait("k%d" % j)
        if j < 4: kread(j + 4)
        else: vread(j - 4)
        v("v_mul_f32 v%d, v%d, v%d" % (S_ + j, Q + 8, TR + 4 * j))
        v("v_fmac_f32 v%d, v%d, v%d" % (S_ + j, Q + 9, TR + 4 * j + 1))
        for p in range(8):
            v("v_dot2_f32_bf16 v%d, v%d, v%d, v%d" % (S_ + j, Q + p, KR + 8 * j + p, S_ + j))
        if j > 0:
            a("v_cmp_le_u32 vcc, %d, v%d" % (2 * j, vGR))
            a("s_nop 1")
            a("v_cndmask_b32 v%d, v%d, v%d, vcc" % (S_ + j, O + 1, S_ + j))
    for j in range(4, 8): vread(j)
    v("v_max3_f32 v%d, v%d, v%d, v%d" % (O, S_, S_ + 1, S_ + 2))
    v("v_max3_f32 v%d, v%d, v%d, v%d" % (O, O, S_ + 3, S_ + 4))
    v("v_max3_f32 v%d, v%d, v%d, v%d" % (O, O, S_ + 5, S_ + 6))
    v("v_max_f32 v%d, v%d, v%d" % (O, O, S_ + 7))
    a("s_mov_b32 s52, 0x%x" % f2u(18 ** -0.5 * math.log2(math.e)))
    for j in range(8): v("v_sub_f32 v%d, v%d, v%d" % (S_ + j, S_ + j, O))
    for j in range(8): v("v_mul_f32 v%d, s52, v%d" % (S_ + j, S_ + j))
    for j in range(8): v("v_exp_f32 v%d, v%d" % (S_ + j, S_ + j))
    SUM = Q
    v("v_add_f32 v%d, v%d, v%d" % (SUM, S_, S_ + 1))
    for j in range(2, 8): v("v_add_f32 v%d, v%d, v%d" % (SUM, SUM, S_ + j))
    a("v_rcp_f32 v%d, v%d" % (SUM, SUM))
    a("s_nop 0")
    for j in range(8): v("v_mul_f32 v%d, v%d, v%d" % (S_ + j, S_ + j, SUM))
    while pf:
        for x in pf.pop(0): a(x)
    for j in range(8):
        dwait("v%d" % j)
        pj = vr(S_ + (j & ~1), 2)
        sel = "op_sel:[0,%d,0] op_sel_hi:[1,%d,1]" % (j & 1, j & 1)
        for p in range(9):
            src = vr(vreg(j) + 2 * p, 2) if p < 8 else vr(TR + 4 * j + 2, 2)
            if j == 0:
                a("v_pk_mul_f32 %s, %s, %s op_sel:[0,0] op_sel_hi:[1,0]" % (vr(O + 2 * p, 2), src, pj))
            else:
                a("v_pk_fma_f32 %s, %s, %s, %s %s" % (vr(O + 2 * p, 2), src, pj, vr(O + 2 * p, 2), sel))
    for p in range(9):
        a("v_cvt_pk_bf16_f32 v%d, v%d, v%d" % (VA + p, O + 2 * p, O + 2 * p + 1))
    a("buffer_store_dwordx4 %s, v%d, s[4:7], s48 offen %s" % (vr(VA, 4), vO, ST))
    a("buffer_store_dwordx4 %s, v%d, s[4:7], s48 offen offset:256 %s" % (vr(VA + 4, 4), vO, ST))
    a("buffer_store_dword v%d, v%d, s[4:7], s50 offen offset:2048 %s" % (VA + 8, vO2, ST))
    a("s_waitcnt vmcnt(30)")
    a("v_mul_f32 v%d, v%d, v%d" % (Q, O, WB))
    for p in range(1, 18):
        a("v_fmac_f32 v%d, v%d, v%d" % (Q, O + p, WB + p))
    xl_sum(a, [Q], [Q + 1], [32])
    a("s_mov_b64 exec, 0xffffffff")
    a("buffer_store_dword v%d, v%d, s[4:7], s51 offen %s" % (Q, vOB, ST))
    a("s_mov_b64 exec, -1")
    stamp(c)

def phase_B(c, after_stores):
    a, opt = c.a, c.opt
    LD, ST = "sc1", "sc1"
    B0, AF, NB = 0, 72, 8
    ACC, XR = 32, 56
    idle, join = c.lab("B_idle"), c.lab("B_join")
    a("s_mul_i32 s24, s45, 18432")
    a("s_add_u32 s24, s24, s%d" % sL)
    a("s_add_u32 s25, s24, 0x%x" % L_O)
    a("s_mul_i32 s26, s44, 3072")
    a("s_add_u32 s24, s24, s26")
    a("v_and_b32 v4, 15, v%d" % vLane)
    a("v_lshrrev_b32 v5, 4, v%d" % vLane)
    a("v_lshlrev_b32 v6, 6, v4")
    a("v_lshl_add_u32 v6, v5, 4, v6")
    a("v_lshlrev_b32 v7, 2, v4")
    a("s_lshl_b32 s26, s45, 10")
    a("s_add_u32 s26, s26, s%d" % sL)
    a("s_add_u32 s26, s26, 0x%x" % L_OB)
    a("s_lshl_b32 s27, s45, 6")
    a("s_add_u32 s27, s27, s%d" % sL)
    a("s_add_u32 s27, s27, 0x%x" % L_MEAN)
    a("s_add_u32 s28, s24, 0x%x" % L_XR)
    for u in range(3):
        a("buffer_load_dwordx4 %s, v%d, s[4:7], s28 offen offset:%d %s" % (vr(XR + 4 * u, 4), vL16, u * 1024, LD))
    a("buffer_load_dword v12, v7, s[4:7], s27 offen %s" % LD)
    signal(c, 0, 4)
    a("s_cmp_ge_u32 s%d, 12" % sJ)
    a("s_cbranch_scc1 %s" % idle)
    a("v_add_u32 v13, 0xd800, v%d" % vL16)
    def rd(i):
        o = i * 1024
        v = vL16
        if o >= 0xd800: v, o = 13, o - 0xd800
        return "ds_read_b128 %s, v%d offset:%d" % (ar(AF + 4 * (i % NB), 4), v, o)
    for i in range(NB - 1): a(rd(i))
    wait_flags(c, 0, 16)
    stamp(c)
    for t in range(18):
        if t % 4 == 0 and t: a("s_add_u32 s25, s25, 4096")
        a("buffer_load_dwordx4 %s, v%d, s[4:7], s25 offen offset:%d %s" % (ar(B0 + 4 * t, 4), vL16, (t % 4) * 1024, LD))
    a("buffer_load_dwordx4 v[8:11], v6, s[4:7], s26 offen %s" % LD)
    for f in range(108):
        t, db = f // 6, f % 6
        if db == 0: a("s_waitcnt vmcnt(%d)" % (18 - t))
        if f % 2 == 0: a("s_waitcnt lgkmcnt(%d)" % max(0, min(NB - 3, 106 - f)))
        cc = "0" if t == 0 else vr(ACC + 4 * db, 4)
        a("v_mfma_f32_16x16x32_bf16 %s, %s, %s, %s" % (vr(ACC + 4 * db, 4), ar(AF + 4 * (f % NB), 4), ar(B0 + 4 * t, 4), cc))
        if f + NB - 1 < 108: a(rd(f + NB - 1))
    stamp(c)
    a("s_waitcnt vmcnt(0)")
    a("v_add_f32 v8, v8, v9")
    a("v_add_f32 v10, v10, v11")
    a("v_add_f32 v8, v8, v10")
    xl_sum(a, [8], [9], [16, 32])
    a("v_add_f32 v8, v8, v12")
    a("v_mov_b32 v9, 0")
    a("s_add_u32 s27, s24, 0x%x" % L_X1)
    a("s_add_u32 s28, s24, 0x%x" % L_XC)
    for u in range(3):
        for k in range(4):
            a("v_lshlrev_b32 v16, 16, v%d" % (XR + 4 * u + k))
            a("v_and_b32 v17, 0xffff0000, v%d" % (XR + 4 * u + k))
            a("v_add_f32 v16, v16, v%d" % (ACC + 8 * u + 2 * k))
            a("v_add_f32 v17, v17, v%d" % (ACC + 8 * u + 2 * k + 1))
            a("v_cvt_pk_bf16_f32 v%d, v16, v17" % (XR + 4 * u + k))
            a("v_lshlrev_b32 v16, 16, v%d" % (XR + 4 * u + k))
            a("v_and_b32 v17, 0xffff0000, v%d" % (XR + 4 * u + k))
            a("v_sub_f32 v16, v16, v8")
            a("v_sub_f32 v17, v17, v8")
            a("v_fmac_f32 v9, v16, v16")
            a("v_fmac_f32 v9, v17, v17")
            a("v_cvt_pk_bf16_f32 v%d, v16, v17" % (20 + 4 * u + k))
        a("buffer_store_dwordx4 %s, v%d, s[4:7], s28 offen offset:%d %s" % (vr(20 + 4 * u, 4), vL16, u * 1024, ST))
        a("buffer_store_dwordx4 %s, v%d, s[4:7], s27 offen offset:%d %s" % (vr(XR + 4 * u, 4), vL16, u * 1024, ST))
    xl_sum(a, [9], [10], [16, 32])
    a("v_lshlrev_b32 v6, 5, v4")
    a("s_lshl_b32 s25, s45, 9")
    a("s_lshl_b32 s26, s44, 2")
    a("s_add_u32 s25, s25, s26")
    a("s_add_u32 s25, s25, s%d" % sL)
    a("s_add_u32 s25, s25, 0x%x" % L_SSQ)
    a("s_mov_b64 exec, 0xffff")
    a("buffer_store_dword v9, v6, s[4:7], s25 offen %s" % ST)
    a("s_mov_b64 exec, -1")
    signal(c, 1, 0)
    a("s_branch %s" % join)
    a.label(idle)
    stamp(c); stamp(c)
    a.label(join)
    stamp(c)

def phase_C(c):
    a, opt = c.a, c.opt
    ST_FLAGS, LD_FLAGS = "sc1", "sc1"
    NB = opt.get("nb", 6)
    L = c.lab("C")
    T0, AG, AU, HB = 0, 32, 64, 96
    H0 = HB + 8
    vDX = [176, 177, 178, 179]
    vDW = [180, 181, 182, 183]
    vR = [[186 + 4 * lv + fb for fb in range(4)] for lv in range(3)]
    vN = [198, 199]
    NV = 200
    LVL = 49152
    X0, AF = 0, 144
    NA = AF + 4 * NB
    sWB = 24
    sRG, sRU = 25, 26
    sD0, sD1, sD2l, sD2h = 27, 28, 29, 30
    sCnt, sHI = 32, 33
    sSt, sStB = 34, 35
    sSlotN, sSlotD, sSlotC = 44, 45, 48
    sW0, sWd0 = 46, 47
    sT, sS, sX = 49, 50, 51

    a("s_mul_i32 s%d, s%d, 9216" % (sWB, sW))
    a("v_mov_b32 v2, v%d" % vLane)
    a("v_lshrrev_b32 v3, 3, v2")
    a("v_and_b32 v4, 7, v2")
    a("v_bfe_u32 v5, v2, 4, 2")
    a("v_lshlrev_b32 v5, 1, v5")
    a("v_xor_b32 v4, v4, v5")
    a("v_and_b32 v6, 3, v4")
    a("v_lshlrev_b32 v4, 4, v4")
    a("v_lshlrev_b32 v6, 4, v6")
    a("s_movk_i32 s%d, 9216" % sT)
    a("v_mad_u32_u24 v%d, v3, s%d, v4" % (vDX[0], sT))
    a("v_mad_u32_u24 v8, v3, s%d, v6" % sT)
    a("s_movk_i32 s%d, 1152" % sT)
    a("v_mad_u32_u24 v%d, v3, s%d, v4" % (vDW[0], sT))
    for q in (1, 2, 3):
        a("v_add_u32 v%d, 0x%x, v%d" % (vDX[q], q * (8 * 9216 - 1024), vDX[0]))
        a("v_add_u32 v%d, 0x%x, v8" % (8 + q, q * (8 * 9216 - 1024)))
        a("v_add_u32 v%d, 0x%x, v%d" % (vDW[q], q * (8 * 1152 - 1024), vDW[0]))
    a("v_lshrrev_b32 v3, 2, v2")
    a("v_and_b32 v4, 3, v2")
    a("v_lshlrev_b32 v4, 3, v4")
    a("v_lshl_add_u32 v4, v3, 7, v4")
    a("v_bfe_u32 v5, v2, 3, 2")
    a("v_lshl_add_u32 v%d, v5, 5, v4" % vR[0][0])
    for fb in (1, 2, 3):
        a("v_xor_b32 v%d, %d, v%d" % (vR[0][fb], fb << 5, vR[0][0]))
    for lv in (1, 2):
        for fb in range(4):
            a("v_add_u32 v%d, 0x%x, v%d" % (vR[lv][fb], lv * LVL, vR[0][fb]))
    a("s_mul_i32 s%d, s%d, 576" % (sRG, sJ))
    a("s_mul_i32 s%d, s%d, %d" % (sT, sW, 72 * 9216))
    a("s_add_u32 s%d, s%d, s%d" % (sRG, sRG, sT))
    a("s_mul_i32 s%d, s%d, %d" % (sW0, sJ, 288 * 1152))
    a("s_mul_i32 s%d, s%d, %d" % (sT, sW, 72 * 1152))
    a("s_add_u32 s%d, s%d, s%d" % (sW0, sW0, sT))
    a("s_mov_b32 s%d, %d" % (sWd0, 32 * 1152))
    a("s_cmp_eq_u32 s%d, 0" % sW)
    a("s_cselect_b32 s52, %d, %d" % (256 * 1152, -32 * 1152 & 0xffffffff) if False else "s_cselect_b32 s52, 8, -1")
    a("s_cselect_b32 s53, -8, 1")
    a("s_mul_i32 s52, s52, %d" % (32 * 1152))
    a("s_mul_i32 s53, s53, %d" % (32 * 1152))
    a("s_bitcmp0_b32 s%d, 0" % sJ)
    a("s_cselect_b32 s%d, 512, 0" % sS)
    a("s_cselect_b32 s54, 0, 64")
    a("s_cselect_b32 s52, s52, 0")
    a("s_cselect_b32 s%d, s53, s%d" % (sWd0, sWd0))
    a("s_add_u32 s%d, s%d, s%d" % (sS, sS, sRG))
    a("s_add_u32 s%d, s%d, s54" % (sRG, sRG))
    a("s_mov_b32 s%d, s%d" % (sRU, sRG))
    a("s_add_u32 s%d, s%d, s52" % (sW0, sW0))
    a("s_mov_b32 s%d, 0x%x" % (sD0, 32 * 9216))
    a("s_mov_b32 s%d, 0x%x" % (sD1, 32 * 9216))
    a("s_mov_b32 s%d, 0x%x" % (sD2l, (288 - 64) * 9216))
    a("s_mov_b32 s%d, 0x%x" % (sD2h, (-(288 + 64) * 9216 + 128) & 0xffffffff))
    a("s_lshl_b32 s%d, s%d, 2" % (sT, sI))
    a("s_add_u32 s%d, s%d, s%d" % (sT, sT, sW))
    a("s_mul_i32 s%d, s%d, %d" % (sT, sT, 36 * 1024))
    a("s_add_u32 s%d, s%d, 0x%x" % (sX, sT, L_XC))
    a("s_add_u32 s%d, s%d, s%d" % (sX, sX, sL))
    a("s_mul_i32 s%d, s%d, %d" % (sSt, sJ, ACT))
    a("s_add_u32 s%d, s%d, s%d" % (sSt, sSt, sT))
    a("s_add_u32 s%d, s%d, 0x%x" % (sSt, sSt, WS_P))
    a("s_mov_b32 s%d, 0x7f000000" % sStB)
    a("s_mov_b32 s%d, 0" % sHI)
    a("s_mov_b32 s%d, -1" % sCnt)
    a("s_mov_b32 s56, 0x0f0f0f0f")
    a("s_mov_b32 s57, 0xf0f0f0f0")
    srd(a, sDG, 36, D * F * 2)
    srd(a, sDU, 38, D * F * 2)
    def dma_stage(vo, srdn, run, m0f, deltas):
        out = []
        for g in range(3):
            n = 4 if g < 2 else 1
            out.append([m0f(g)])
            for q in range(n):
                grp = ["buffer_load_dwordx4 v%d, s[%d:%d], s%d offen offset:%d lds" % (vo[q], srdn, srdn + 3, run, q * 1024)]
                if q == n - 1:
                    grp.append("s_add_u32 s%d, s%d, %s" % (run, run, deltas[g]))
                out.append(grp)
        return out
    def m0s(slot):
        return lambda g: "s_add_u32 m0, s%d, 0x%x" % (sWB, slot * SLOT + g * 4096)
    def s_stage(slot, half):
        o = []
        for g in range(3):
            n = 4 if g < 2 else 1
            o.append("s_add_u32 s55, s%d, 0x%x" % (sS, (288 * half + 32 * g) * 9216))
            o.append(m0s(slot)(g))
            for (srdn, ex) in ((sDG, "s_mov_b64 exec, s[56:57]"), (sDU, "s_not_b64 exec, s[56:57]")):
                o.append(ex)
                for q in range(n):
                    o.append("buffer_load_dwordx4 v%d, s[%d:%d], s55 offen offset:%d lds" % (8 + q, srdn, srdn + 3, q * 1024))
            o.append("s_mov_b64 exec, -1")
        return o
    def xload(t):
        o = []
        if t % 4 == 0 and t:
            o.append("s_add_u32 s%d, s%d, 4096" % (sX, sX))
        for mb in range(2):
            o.append("buffer_load_dwordx4 %s, v%d, s[%d:%d], s%d offen offset:%d %s" % (ar(X0 + 4 * (18 * mb + t), 4), (vL16, vL16b)[mb], sWS, sWS + 3, sX, (t % 4) * 1024, LD_FLAGS))
        return o
    log = []
    def emit_logged(lst, tag, out=None):
        for s_ in lst:
            (out.append(s_) if out is not None else a(s_))
            if s_.startswith("buffer_"):
                log.append(tag)
    def need(tag):
        idx = max(k for k, t_ in enumerate(log) if t_ == tag)
        return min(63, len(log) - 1 - idx)

    def fr(i):
        return AF + 4 * (i % NB)
    def reads(i, desc):
        fb, t = desc[2](i)
        if desc[0] == "D":
            o = desc[1] * SLOT + t * 4096
            lv = min(o // LVL, 2)
            v = vR[lv][fb]; o -= lv * LVL
        else:
            v = desc[1][fb]; o = t * 4096
        assert o + 2048 < 65536
        return ["ds_read_b64_tr_b16 %s, v%d offset:%d" % (ar(fr(i), 2), v, o),
                "ds_read_b64_tr_b16 %s, v%d offset:%d" % (ar(fr(i) + 2, 2), v, o + 2048)]
    DIST = NB - 1
    BAR = 36 - DIST
    assert 36 % NB == 0
    IDXSPAN = opt.get("idxspan", False)
    DSP = opt.get("dsp", 5)
    POS = [(i, g) for i in range(36) for g in ((0, 1) if i % 2 == 0 else (0,))]
    class Fill:
        def __init__(s): s.d = {}
        def free(s, p): return p not in s.d
        def put(s, k, grp):
            s.d.setdefault(POS[k], []).extend(grp)
        def seq(s, items, start, step=1):
            k = start
            for g in items:
                while k < len(POS) and POS[k] in s.d: k += 1
                if k >= len(POS):
                    k = len(POS) - 1
                s.d.setdefault(POS[k], []).extend(g)
                k += step
            return k
        def nvm(s, lo, hi):
            return sum(1 for (i, g), l in s.d.items() if lo <= i < hi for x in l if x.startswith("buffer_"))
    def kpos(i):
        return POS.index((i, 0))
    def place_dma(fill, groups, start, step):
        k = start
        pend = []
        for g in groups:
            if "m0" in g[0]:
                pend = g; continue
            if pend:
                fill.put(k - 1, pend); pend = []
            fill.put(k, g[:1])
            if len(g) > 1: fill.put(k + 1, g[1:])
            k += step
    o1 = lambda i: (i % 4, i // 4)
    o2 = lambda i: (2 * (i // 18) + (i % 2), (i % 18) // 2)
    def mf_g1(acc, kbase, first):
        def f(i):
            fb, t = o1(i)
            r = []
            for mb in range(2):
                ac = acc + (fb * 2 + mb) * 4
                c = "0" if (first and t == 0) else vr(ac, 4)
                r.append("v_mfma_f32_16x16x32_bf16 %s, %s, %s, %s" % (vr(ac, 4), ar(fr(i), 4), ar(X0 + 4 * (18 * mb + kbase + t), 4), c))
            return r
        return f
    def cvts(hbase, src):
        cv = []
        for u in range(2):
            for mb in range(2):
                for k in range(4):
                    t = src + ((2 * u + k // 2) * 2 + mb) * 4 + 2 * (k % 2)
                    cv.append("v_cvt_pk_bf16_f32 v%d, v%d, v%d" % (hbase + 8 * u + 4 * mb + k, t, t + 1))
        return cv
    def em(s_):
        if opt.get("nodma") and s_.endswith(" lds"): return
        if opt.get("nost") and s_.startswith("buffer_store"): return
        (a.label(s_[:-1]) if s_.endswith(":") else a(s_))
    def gstage(cur, nxt, mf, fill, barwait):
        for i in range(36):
            if i == BAR and nxt is not None:
                for s_ in barwait: em(s_)
                a("s_barrier")
            if i % 2 == 0:
                a("s_waitcnt lgkmcnt(%d)" % (2 * (DIST - 2)))
            if i + DIST < 36: rd = reads(i + DIST, cur)
            elif nxt is not None: rd = reads(i + DIST - 36, nxt)
            else: rd = []
            m = mf(i)
            a(m[0])
            if rd: a(rd[0])
            for s_ in fill.d.get((i, 0), []): em(s_)
            a(m[1])
            if rd: a(rd[1])
            for s_ in fill.d.get((i, 1), []): em(s_)

    dl = ["s%d" % sD0, "s%d" % sD1, "s%d" % sD2l]
    dh = ["s%d" % sD0, "s%d" % sD1, "s%d" % sD2h]
    D_ = lambda s: ("D", s, o1)
    side = []

    for s_ in s_stage(0, 0) + s_stage(1, 1): a(s_)
    for g in dma_stage(vDX, sDG, sRG, m0s(2), dl):
        for s_ in (g + ["s_nop 0"] if "m0" in g[0] else g): a(s_)
    a("s_waitcnt vmcnt(0)")
    wait_flags(c, 1, 12)
    stamp(c)
    CPRE = opt.get("C_pre", 6)
    for t in range(CPRE):
        emit_logged(xload(t), "x%d" % t)
    for i in range(DIST):
        for s_ in reads(i, D_(0)): a(s_)
    rest = list(range(CPRE, 18))
    sched = {}
    tt = 1
    while rest:
        sched[tt] = [(xload(t), "x%d" % t) for t in rest[:2]]; rest = rest[2:]; tt += 1
    a("s_mov_b64 vcc, -1")
    a("s_waitcnt vmcnt(%d)" % need("x0"))
    a("s_branch %s_C" % L)
    fillC, fillD = Fill(), Fill()
    for (nm, fill) in (("C", fillC), ("D", fillD)):
        for t in range(1, 10 if nm == "C" else 9):
            lab = "%s_s%s%d" % (L, nm, t)
            fill.d[(4 * t - 1, 0)] = ["s_cbranch_vccnz %s" % lab, lab + "r:"]
    place_dma(fillC, dma_stage(vDX, sDG, sRG, m0s(3), dh), 1, DSP)
    place_dma(fillD, dma_stage(vDX, sDU, sRU, m0s(0), dl), 1, DSP)
    fillD.put(len(POS) - 2, ["s_add_u32 s%d, s%d, 1" % (sCnt, sCnt)])
    fillD.put(len(POS) - 1, ["s_cmp_lt_u32 s%d, 4" % sCnt])
    mx = [["v_max_f32 v%d, 0, v%d" % (T0 + r, AG + r)] for r in range(32)]
    fillC.seq(mx[:14], 4)
    fillD.seq(mx[14:], 0)
    bars = {}
    for (nm, fill, kb) in (("C", fillC, 0), ("D", fillD, 9)):
        for i in range(36):
            if i == BAR:
                lab = "%s_b%s" % (L, nm)
                bars[nm] = ["s_cbranch_vccnz %s" % lab, "s_waitcnt vmcnt(%d)" % ((9 if nm == "C" else fillC.nvm(0, 36)) + fill.nvm(0, BAR)), lab + "r:"]
                side.append(lab + ":")
                pass
                side.append("s_branch %sr" % lab)
            for g in (0, 1):
                for s_ in fill.d.get((i, g), []):
                    if s_.startswith("buffer_"): log.append("f" + nm)
                    if s_.startswith("s_cbranch_vccnz"):
                        t = (i + 1) // 4
                        lab = s_.split()[1]
                        side.append(lab + ":")
                        if nm == "C":
                            for (lst, tag) in sched.get(t, []):
                                emit_logged(lst, tag, side)
                        side.append("s_waitcnt vmcnt(%d)" % need("x%d" % (kb + t)))
                        side.append("s_branch %sr" % lab)
    def barw(fill, prevn=9):
        return ["s_waitcnt vmcnt(%d)" % (prevn + fill.nvm(0, BAR))]

    a.label("%s_g1" % L)
    fill = Fill()
    place_dma(fill, dma_stage(vDX, sDU, sRU, m0s(1), dh), 1, DSP)
    fill.put(3, ["s_cbranch_vccnz %s_fix" % L, "%s_fixr:" % L])
    fill.seq([["v_mul_f32 v%d, v%d, v%d" % (T0 + r, T0 + r, AU + r)] for r in range(32)], 4)
    side.append("%s_fix:" % L)
    for r in range(16):
        side.append("v_max_f32 v%d, 0, v%d" % (T0 + 16 + r, AU + r))
    side.append("s_mov_b64 vcc, 0")
    side.append("s_branch %s_fixr" % L)
    gstage(D_(2), D_(3), mf_g1(AG, 0, True), fill, barw(fill))
    fill = Fill()
    cv = cvts(HB, T0)
    on, off = "s_set_gpr_idx_on s%d, 0x8" % sHI, "s_set_gpr_idx_off"
    if IDXSPAN:
        k = fill.seq([[on]] + [[c] for c in cv] + [[off]], 0)
    else:
        k = fill.seq([[on] + cv[4 * q:4 * q + 4] + [off] for q in range(4)], 0, 3)
    k = fill.seq([["s_add_u32 s%d, s%d, 16" % (sHI, sHI)], ["s_cmp_eq_u32 s%d, 3" % sCnt], ["s_cbranch_scc1 %s_sw" % L, "%s_swr:" % L]], k)
    place_dma(fill, dma_stage(vDX, sDG, sRG, m0s(2), dl), k + 1, (len(POS) - k - 3) // 8)
    side.append("%s_sw:" % L)
    for q in range(4):
        side.append("v_mov_b32 v%d, v%d" % (vDX[q], vDW[q]))
    side += ["s_mov_b32 s%d, s40" % sDG, "s_and_b32 s%d, s41, 0xffff" % (sDG + 1),
             "s_mov_b32 s%d, s40" % sDU, "s_and_b32 s%d, s41, 0xffff" % (sDU + 1),
             "s_mov_b32 s%d, s%d" % (sRG, sW0), "s_add_u32 s%d, s%d, 256" % (sRU, sW0),
             "s_mov_b32 s%d, s%d" % (sD0, sWd0), "s_mov_b32 s%d, %d" % (sD1, 32 * 1152),
             "s_sub_u32 s%d, %d, s%d" % (sD2l, 128 - 32 * 1152, sWd0), "s_mov_b32 s%d, s%d" % (sD2h, sD2l),
             "s_branch %s_swr" % L]
    gstage(D_(3), D_(0), mf_g1(AG, 9, False), fill, barw(fill))
    a.label("%s_C" % L)
    gstage(D_(0), D_(1), mf_g1(AU, 0, True), fillC, bars["C"])
    gstage(D_(1), D_(2), mf_g1(AU, 9, False), fillD, bars["D"])
    a("s_cbranch_scc1 %s_g1" % L)
    stamp(c)
    vC = vR[1]
    for fb in range(4):
        a("v_add_u32 v%d, 0x%x, v%d" % (vC[fb], 2 * SLOT, vR[0][fb]))
    V_ = lambda regs: ("V", regs, o2)
    a("s_waitcnt lgkmcnt(0)")
    for i in range(DIST):
        for s_ in reads(i, V_(vC)): a(s_)
    a("s_mov_b32 s%d, 0x%x" % (sSlotN, 3 * SLOT))
    a("s_mov_b32 s%d, 0x%x" % (sSlotC, 2 * SLOT))
    a("s_add_u32 s%d, s%d, 0x%x" % (sSlotD, sWB, 1 * SLOT))
    a("s_mov_b32 s%d, 0" % sCnt)
    for k in range(4):
        a("buffer_store_dword v0, v%d, s[%d:%d], s%d offen" % (vL16, sWS, sWS + 3, sStB))
    for r in range(32):
        a("v_mul_f32 v%d, v%d, v%d" % (T0 + r, T0 + r, AU + r))
    for s_ in cvts(HB + 64, T0): a(s_)
    a.label("%s_g2" % L)
    def mf2(i):
        db, t = o2(i)
        r = []
        for mb in range(2):
            ac = AG + (db * 2 + mb) * 4
            c = "0" if t == 0 else vr(ac, 4)
            r.append("v_mfma_f32_16x16x32_bf16 %s, %s, %s, %s" % (vr(ac, 4), ar(fr(i), 4), vr(H0 + 8 * t + 4 * mb, 4), c))
        return r
    def out_ep(u, soff):
        g = []
        for mb in range(2):
            tb = T0 + 8 * u + 4 * mb
            for k in range(4):
                s_ = AG + ((2 * u + k // 2) * 2 + mb) * 4 + 2 * (k % 2)
                g.append(["v_cvt_pk_bf16_f32 v%d, v%d, v%d" % (tb + k, s_, s_ + 1)])
            g.append(["buffer_store_dwordx4 %s, v%d, s[%d:%d], s%d offen offset:%d %s" % (vr(tb, 4), (vL16, vL16b)[mb], sWS, sWS + 3, soff, u * 1024, ST_FLAGS)])
        return g
    fill = Fill()
    n = len(POS)
    place_dma(fill, dma_stage(vDX, sDU, sRU, lambda g: "s_add_u32 m0, s%d, 0x%x" % (sSlotD, g * 4096), dl), 1, DSP)
    fill.put(n - 1, ["s_cmp_lt_u32 s%d, 9" % sCnt])
    k = fill.seq(out_ep(1, sStB), kpos(2))
    assert k <= kpos(18)
    fill.seq([["v_add_u32 v%d, s%d, v%d" % (vC[0], sSlotN, vR[0][0])], ["v_add_u32 v%d, s%d, v%d" % (vC[1], sSlotN, vR[0][1])]], kpos(18 - DIST + 1))
    fill.seq([["s_add_u32 s%d, s%d, 1" % (sCnt, sCnt)], ["s_mov_b32 s%d, s%d" % (sStB, sSt)]], k)
    k = fill.seq(out_ep(0, sSt), kpos(20))
    k = fill.seq([["s_add_u32 s%d, s%d, 2048" % (sSt, sSt)]], k)
    k = max(k, kpos(BAR), 1 + 8 * DSP + 2)
    fill.seq([["v_add_u32 v%d, s%d, v%d" % (vC[2], sSlotN, vR[0][2])], ["v_add_u32 v%d, s%d, v%d" % (vC[3], sSlotN, vR[0][3])],
              ["s_add_u32 s%d, s%d, s%d" % (sSlotD, sWB, sSlotC)], ["s_mov_b32 s%d, s%d" % (sSlotC, sSlotN),
               "s_add_u32 s%d, s%d, 0x%x" % (sSlotN, sSlotN, SLOT)],
              ["s_cmp_ge_u32 s%d, 0x%x" % (sSlotN, 4 * SLOT), "s_cselect_b32 s%d, 0, s%d" % (sSlotN, sSlotN)],
              ["s_cmp_lt_u32 s%d, 6" % sCnt, "s_cselect_b32 s%d, 0x%x, 0" % (sDU + 2, D * F * 2)]], k)
    assert fill.d[POS[n - 1]] == ["s_cmp_lt_u32 s%d, 9" % sCnt], fill.d[POS[n - 1]]
    gstage(V_(vC), V_(vC), mf2, fill, barw(fill, 13))
    a("s_cbranch_scc1 %s_g2" % L)
    a("s_nop 7")
    for grp in out_ep(1, sStB):
        for s_ in grp: a(s_)
    c.side += side

def unpack8(a, src, dst):
    for k in range(4):
        a("v_lshlrev_b32 v%d, 16, v%d" % (dst + 2 * k, src + k))
        a("v_and_b32 v%d, 0xffff0000, v%d" % (dst + 2 * k + 1, src + k))

def phase_D(c):
    a, opt = c.a, c.opt
    LD, ST = "sc1", "sc1"
    L = c.lab("D")
    P0 = 40
    X1, ACC, TM = 8, 232, 24
    a("v_and_b32 v1, 7, v%d" % vLane)
    a("v_lshrrev_b32 v2, 3, v%d" % vLane)
    a("s_mul_i32 s24, s%d, 24" % sW)
    a("v_add_u32 v2, s24, v2")
    a("v_lshlrev_b32 v3, 4, v1")
    a("v_lshl_add_u32 v3, v2, 8, v3")
    a("v_add_u32 v4, 4096, v3")
    a("s_lshl_b32 s25, s%d, 4" % sI)
    a("s_add_u32 s25, s25, s%d" % sJ)
    a("s_lshr_b32 s26, s25, 1")
    a("s_mul_i32 s26, s26, 18432")
    a("s_and_b32 s27, s25, 1")
    a("s_lshl_b32 s27, s27, 7")
    a("s_add_u32 s26, s26, s27")
    a("s_add_u32 s27, s26, s%d" % sL)
    a("s_add_u32 s28, s27, 0x%x" % L_X1)
    a("s_lshl_b32 s29, s25, 8")
    a("s_add_u32 s29, s29, s%d" % sL)
    a("s_add_u32 s29, s29, 0x%x" % L_SSQ)
    a("v_lshlrev_b32 v5, 5, v1")
    a("s_add_u32 s30, s26, 0x%x" % WS_P)
    def ld3(dst, soff):
        a("buffer_load_dwordx4 %s, v3, s[4:7], s%d offen %s" % (vr(dst, 4), soff, LD))
        a("buffer_load_dwordx4 %s, v3, s[4:7], s%d offen offset:2048 %s" % (vr(dst + 4, 4), soff, LD))
        a("buffer_load_dwordx4 %s, v4, s[4:7], s%d offen %s" % (vr(dst + 8, 4), soff, LD))
    ld3(X1, 28)
    a("buffer_load_dwordx4 v[32:35], v5, s[4:7], s29 offen %s" % LD)
    a("buffer_load_dwordx2 v[36:37], v5, s[4:7], s29 offen offset:16 %s" % LD)
    signal(c, 2, 5)
    nopf = c.lab("D_nopf")
    a("s_cmp_lg_u32 s%d, 0" % sL)
    a("s_cbranch_scc1 %s" % nopf)
    a("s_mov_b32 s31, s25")
    prefetch_A(c)
    a("s_mov_b32 s25, s31")
    a.label(nopf)
    wait_flags(c, 2, 16)
    stamp(c)
    w3 = c.lab("D_w3")
    a("s_cmp_eq_u32 s%d, 3" % sW)
    a("s_cbranch_scc1 %s" % w3)
    for j in range(16):
        ld3(P0 + 12 * j, 30)
        if j < 15: a("s_add_u32 s30, s30, 0x%x" % ACT)
    a("s_waitcnt vmcnt(48)")
    a("v_add_f32 v32, v32, v33")
    a("v_add_f32 v34, v34, v35")
    a("v_add_f32 v36, v36, v37")
    a("v_add_f32 v32, v32, v34")
    a("v_add_f32 v32, v32, v36")
    a("v_mov_b32 v33, 0x%x" % f2u(1e-5))
    a("s_mov_b32 s31, 0x%x" % f2u(1.0 / 576))
    a("v_fma_f32 v32, v32, s31, v33")
    a("v_rcp_f32 v32, v32")
    AC = [232, 240, 24]
    T2 = 20
    for j in range(16):
        for q in range(3):
            a("s_waitcnt vmcnt(%d)" % (47 - 3 * j - q))
            src = P0 + 12 * j + 4 * q
            if j == 0:
                unpack8(a, src, AC[q])
            else:
                for k in range(4):
                    a("v_lshlrev_b32 v%d, 16, v%d" % (T2, src + k))
                    a("v_and_b32 v%d, 0xffff0000, v%d" % (T2 + 1, src + k))
                    a("v_add_f32 v%d, v%d, v%d" % (AC[q] + 2 * k, AC[q] + 2 * k, T2))
                    a("v_add_f32 v%d, v%d, v%d" % (AC[q] + 2 * k + 1, AC[q] + 2 * k + 1, T2 + 1))
    XF = 40
    for q in range(3):
        unpack8(a, X1 + 4 * q, XF + 8 * q)
        for k in range(8):
            a("v_fmac_f32 v%d, v%d, v32" % (XF + 8 * q + k, AC[q] + k))
        for k in range(4):
            a("v_cvt_pk_bf16_f32 v%d, v%d, v%d" % (X1 + 4 * q + k, XF + 8 * q + 2 * k, XF + 8 * q + 2 * k + 1))
    fin = c.lab("D_fin")
    a("s_cmp_lg_u32 s%d, 0" % sL)
    a("s_cbranch_scc1 %s" % fin)
    def st3(src, soff):
        a("buffer_store_dwordx4 %s, v3, s[4:7], s%d offen %s" % (vr(src, 4), soff, ST))
        a("buffer_store_dwordx4 %s, v3, s[4:7], s%d offen offset:2048 %s" % (vr(src + 4, 4), soff, ST))
        a("buffer_store_dwordx4 %s, v4, s[4:7], s%d offen %s" % (vr(src + 8, 4), soff, ST))
    for q in range(3): unpack8(a, X1 + 4 * q, XF + 8 * q)
    a("s_add_u32 s28, s26, 0x%x" % (LSTR + L_XR))
    st3(X1, 28)
    a("v_add_f32 v34, v%d, v%d" % (XF, XF + 1))
    a("v_mul_f32 v35, v%d, v%d" % (XF, XF))
    a("v_fmac_f32 v35, v%d, v%d" % (XF + 1, XF + 1))
    for k in range(2, 24):
        a("v_add_f32 v34, v34, v%d" % (XF + k))
        a("v_fmac_f32 v35, v%d, v%d" % (XF + k, XF + k))
    xl_sum(a, [34, 35], [36, 37], [8, 16, 32])
    a("v_lshlrev_b32 v36, 5, v1")
    a("v_add_u32 v36, %d, v36" % LDS_D)
    a("s_lshl_b32 s24, s%d, 3" % sW)
    a("v_add_u32 v37, s24, v36")
    a("ds_write_b64 v37, v[34:35]")
    a("s_waitcnt lgkmcnt(0)")
    a("s_barrier")
    a("ds_read_b128 v[64:67], v36")
    a("ds_read_b64 v[34:35], v36 offset:16")
    a("s_waitcnt lgkmcnt(0)")
    a("v_add_f32 v34, v34, v64")
    a("v_add_f32 v35, v35, v65")
    a("v_add_f32 v34, v34, v66")
    a("v_add_f32 v35, v35, v67")
    a("v_mul_f32 v34, s31, v34")
    a("v_mul_f32 v36, v34, v34")
    a("v_fma_f32 v35, v35, s31, -v36")
    a("v_max_f32 v35, 0, v35")
    a("v_add_f32 v35, 0x%x, v35" % f2u(1e-5))
    a("v_rsq_f32 v35, v35")
    for k in range(24): a("v_sub_f32 v%d, v%d, v34" % (XF + k, XF + k))
    for k in range(24): a("v_mul_f32 v%d, v%d, v35" % (XF + k, XF + k))
    for k in range(12): a("v_cvt_pk_bf16_f32 v%d, v%d, v%d" % (64 + k, XF + 2 * k, XF + 2 * k + 1))
    a("s_add_u32 s28, s26, 0x%x" % (LSTR + L_XN))
    st3(64, 28)
    a("v_lshlrev_b32 v36, 2, v1")
    a("s_lshl_b32 s28, s25, 5")
    a("s_add_u32 s28, s28, 0x%x" % (LSTR + L_MEAN))
    a("s_mov_b64 exec, 0xff")
    a("buffer_store_dword v34, v36, s[4:7], s28 offen %s" % ST)
    a("s_mov_b64 exec, -1")
    j2 = c.lab("D_j2")
    a("s_branch %s" % j2)
    a.label(w3)
    a("s_cmp_lg_u32 s%d, 0" % sL)
    a("s_cbranch_scc1 %s" % c.endlab)
    a("s_barrier")
    a.label(j2)
    signal(c, 3, 0)
    stamp(c)
    a("s_mov_b32 s%d, 0x%x" % (sL, LSTR))
    a("s_add_u32 s%d, s%d, 8192" % (sFL, sFL))
    a("s_branch %s" % c.looplab)
    a.label(fin)
    srd(a, sOUT, 42, ACT)
    a("v_and_b32 v5, 8, v%d" % vLane)
    a("v_cmp_eq_u32 vcc, 0, v5")
    a("v_lshrrev_b32 v6, 2, v2")
    a("v_lshlrev_b32 v6, 6, v6")
    a("v_lshl_add_u32 v6, v5, 2, v6")
    a("v_and_b32 v7, 16, v%d" % vLane)
    a("v_add_u32 v6, v6, v7")
    a("v_mul_u32_u24 v7, 1152, v1")
    a("v_add_u32 v6, v6, v7")
    a("s_mul_i32 s28, s25, %d" % (8 * 1152))
    for q in range(3):
        x = X1 + 4 * q
        for k in range(4):
            a("v_mov_b32_dpp v%d, v%d row_ror:8 row_mask:0xf bank_mask:0xf" % (40 + k, x + k))
        o = 48 + 4 * q
        a("v_cndmask_b32 v%d, v42, v%d, vcc" % (o, x))
        a("v_cndmask_b32 v%d, v43, v%d, vcc" % (o + 1, x + 1))
        a("v_cndmask_b32 v%d, v%d, v40, vcc" % (o + 2, x + 2))
        a("v_cndmask_b32 v%d, v%d, v41, vcc" % (o + 3, x + 3))
        a("buffer_store_dwordx4 %s, v6, s[16:19], s28 offen offset:%d" % (vr(o, 4), 128 * q))

def gen_mega(a, name, opt=None):
    c = Ctx()
    c.a, c.opt = a, (opt or {})
    c.stamp = c.opt.get("stamp", False)
    c.maxpoll = c.opt.get("maxpoll", 200000)
    c.sigwave = c.opt.get("sigwave", 0)
    c.side = []
    c.n = 0
    def lab(p):
        c.n += 1
        return "m_%s_%d" % (p, c.n)
    c.lab = lab
    c.endlab, c.looplab = "m_end", "m_layer"
    kernel_begin(a, name)
    a("s_cmp_ge_u32 s2, 256")
    a("s_cbranch_scc1 m_exit")
    a("s_load_dwordx4 s[36:39], s[0:1], 32")
    a("s_load_dwordx4 s[40:43], s[0:1], 48")
    a("s_load_dwordx2 s[24:25], s[0:1], 72")
    a("v_lshrrev_b32 v1, 6, v0")
    a("v_and_b32 v%d, 63, v0" % vLane)
    a("v_readfirstlane_b32 s%d, v1" % sW)
    xmap(a, c.opt.get("xmap", 4), sJ, sI, 26)
    a("v_lshlrev_b32 v%d, 4, v%d" % (vL16, vLane))
    a("v_add_u32 v%d, 18432, v%d" % (vL16b, vL16))
    a("s_mov_b32 s%d, 0" % sL)
    a("s_lshl_b32 s%d, s%d, 7" % (sFL, sI))
    a("s_add_u32 s%d, s%d, 0x%x" % (sFL, sFL, WS_FL))
    a("s_mov_b32 s%d, 0" % sSTI)
    a("s_waitcnt lgkmcnt(0)")
    srd(a, sWS, 24, WS_END + (0x40000 if c.stamp else 0))
    stamp(c)
    prefetch_A(c)
    a.label(c.looplab)
    phase_A(c)
    phase_B(c, None)
    phase_C(c)
    stamp(c)
    phase_D(c)
    a.label(c.endlab)
    if c.stamp:
        a("s_waitcnt vmcnt(0)")
        stamp(c)
        a("s_lshl_b32 s24, s2, 2")
        a("s_add_u32 s24, s24, s%d" % sW)
        a("s_lshl_b32 s24, s24, 8")
        a("s_add_u32 s24, s24, 0x%x" % WS_END)
        a("v_lshlrev_b32 v0, 2, v%d" % vLane)
        a("buffer_store_dword v%d, v0, s[4:7], s24 offen" % vST)
    a.label("m_exit")
    a("s_endpgm")
    for s_ in c.side:
        (a.label(s_[:-1]) if s_.endswith(":") else a(s_))
    return kernel_desc(name, 512, 256)
```

```python
import sys
from mcommon import *
from mega import gen_mega
from k0m import gen_k0
out = sys.argv[1]
opt = eval(sys.argv[2]) if len(sys.argv) > 2 else {}
ref = open("interleave_layers__sliding_local_dilated__glu_gated_reglu__prompt.s.ref").read().split("\n")
hdr = [l for l in ref if l.startswith(";") and "@launch" not in l and "Override" not in l and "grid=ceil" not in l]
a = Asm()
for l in hdr: a.raw(l)
a.raw("; @launch kernel=k0_kernel grid=(616,1,1) block=(576,1,1) lds=1024")
a.raw("; @launch kernel=mega_kernel grid=(256,1,1) block=(256,1,1) lds=163840")
a.raw('.amdgcn_target "amdgcn-amd-amdhsa--gfx950"')
a.raw(".text")
d = [gen_k0(a, "k0_kernel", opt), gen_mega(a, "mega_kernel", opt)]
a.raw('.section .rodata,"a"')
for x in d:
    a.raw(".p2align 6"); a.raw(x)
open(out, "w").write(a.text())
```

```python
from mcommon import *
WS_XN, WS_XR, WS_MEAN = L_XN, L_XR, L_MEAN

def unpack8(a, src, dst):
    for k in range(4):
        a("v_lshlrev_b32 v%d, 16, v%d" % (dst + 2 * k, src + k))
        a("v_and_b32 v%d, 0xffff0000, v%d" % (dst + 2 * k + 1, src + k))

def ln_tail(a, XB, XF, vOff, sWS, sBase, sRow, vTid, L, st_flags=""):
    unpack8(a, XB, XF)
    a("s_add_u32 s30, s%d, 0x%x" % (sBase, WS_XR))
    a("buffer_store_dwordx4 %s, v%d, s[%d:%d], s30 offen %s" % (vr(XB, 4), vOff, sWS, sWS + 3, st_flags))
    a("v_add_f32 v40, v%d, v%d" % (XF, XF + 1))
    a("v_mul_f32 v41, v%d, v%d" % (XF, XF))
    a("v_fmac_f32 v41, v%d, v%d" % (XF + 1, XF + 1))
    for k in range(2, 8):
        a("v_add_f32 v40, v40, v%d" % (XF + k))
        a("v_fmac_f32 v41, v%d, v%d" % (XF + k, XF + k))
    xl_sum(a, [40, 41], [42, 43], [8, 16, 32])
    a("v_and_b32 v44, 7, v%d" % vTid)
    a("v_mul_u32_u24 v44, 80, v44")
    a("v_lshrrev_b32 v45, 6, v%d" % vTid)
    a("v_lshl_add_u32 v45, v45, 3, v44")
    a("ds_write_b64 v45, v[40:41]")
    a("s_waitcnt lgkmcnt(0)")
    a("s_barrier")
    for q in range(4):
        a("ds_read_b128 %s, v44 offset:%d" % (vr(46 + 4 * q, 4), 16 * q))
    a("ds_read_b64 v[40:41], v44 offset:64")
    a("s_waitcnt lgkmcnt(0)")
    for q in range(8):
        a("v_add_f32 v40, v40, v%d" % (46 + 2 * q))
        a("v_add_f32 v41, v41, v%d" % (47 + 2 * q))
    a("s_mov_b32 s31, 0x%x" % f2u(1.0 / 576))
    a("v_mul_f32 v40, s31, v40")
    a("v_mul_f32 v42, v40, v40")
    a("v_fma_f32 v41, v41, s31, -v42")
    a("v_max_f32 v41, 0, v41")
    a("v_add_f32 v41, 0x%x, v41" % f2u(1e-5))
    a("v_rsq_f32 v41, v41")
    for k in range(8):
        a("v_sub_f32 v%d, v%d, v40" % (XF + k, XF + k))
    for k in range(8):
        a("v_mul_f32 v%d, v%d, v41" % (XF + k, XF + k))
    for k in range(4):
        a("v_cvt_pk_bf16_f32 v%d, v%d, v%d" % (46 + k, XF + 2 * k, XF + 2 * k + 1))
    a("s_add_u32 s30, s%d, 0x%x" % (sBase, WS_XN))
    a("buffer_store_dwordx4 v[46:49], v%d, s[%d:%d], s30 offen %s" % (vOff, sWS, sWS + 3, st_flags))
    a("v_lshlrev_b32 v44, 2, v%d" % vTid)
    a("v_cmp_gt_u32 vcc, 8, v%d" % vTid)
    a("s_lshl_b32 s30, s%d, 2" % sRow)
    a("s_add_u32 s30, s30, 0x%x" % WS_MEAN)
    a("s_and_saveexec_b64 s[32:33], vcc")
    a("s_cbranch_execz %s_nomean" % L)
    a("buffer_store_dword v40, v44, s[%d:%d], s30 offen %s" % (sWS, sWS + 3, st_flags))
    a.label("%s_nomean" % L)

import struct
def f2u(x): return struct.unpack("<I", struct.pack("<f", x))[0]

def gen_k0(a, name, opt=None):
    opt = opt or {}
    kernel_begin(a, name)
    L = name
    sWS, sIN = 4, 8
    a("s_cmp_ge_u32 s2, 616")
    a("s_cbranch_scc1 %s_end" % L)
    a("s_load_dwordx2 s[12:13], s[0:1], 72")
    a("s_load_dwordx4 s[24:27], s[0:1], 0")
    a("s_load_dwordx2 s[28:29], s[0:1], 16")
    if opt.get("dbg"):
        a("s_cmp_lg_u32 s2, 0")
        a("s_cbranch_scc1 %s_nd" % L)
        a("s_load_dwordx2 s[34:35], s[0:1], 64")
        a("s_memrealtime s[36:37]")
        a("s_waitcnt lgkmcnt(0)")
        srd(a, 40, 34, 64)
        a("v_mov_b32 v1, s36")
        a("v_mov_b32 v2, 0")
        a("buffer_store_dword v1, v2, s[40:43], 0 offen")
        a("s_nop 1")
        a.label("%s_nd" % L)
    a("v_lshrrev_b32 v1, 6, v0")
    a("v_and_b32 v2, 63, v0")
    a("v_readfirstlane_b32 s23, v1")
    a("s_cmp_ge_u32 s2, 256")
    a("s_cbranch_scc1 %s_pack" % L)
    a("v_and_b32 v1, 7, v0")
    a("v_lshrrev_b32 v2, 3, v0")
    a("v_lshlrev_b32 v3, 4, v1")
    a("v_lshl_add_u32 v3, v2, 8, v3")
    a("s_lshr_b32 s16, s2, 1")
    a("s_mul_i32 s16, s16, 18432")
    a("s_and_b32 s17, s2, 1")
    a("s_lshl_b32 s17, s17, 7")
    a("s_add_u32 s16, s16, s17")
    a("s_lshl_b32 s18, s2, 3")
    a("v_lshrrev_b32 v5, 2, v2")
    a("v_lshlrev_b32 v5, 6, v5")
    a("v_and_b32 v6, 3, v2")
    a("v_lshl_add_u32 v5, v6, 3, v5")
    a("v_mul_u32_u24 v6, 1152, v1")
    a("v_add_u32 v5, v5, v6")
    a("s_mul_i32 s22, s18, 1152")
    a("s_waitcnt lgkmcnt(0)")
    srd(a, sWS, 12, WS_END)
    srd(a, sIN, 24, ACT)
    a("buffer_load_dwordx2 v[8:9], v5, s[8:11], s22 offen")
    a("buffer_load_dwordx2 v[10:11], v5, s[8:11], s22 offen offset:32")
    a("s_waitcnt vmcnt(0)")
    ln_tail(a, 8, 32, 3, sWS, 16, 18, 0, L, opt.get("st_flags", ""))
    a("s_endpgm")
    a.label("%s_pack" % L)
    a("v_and_b32 v3, 15, v2")
    a("v_lshrrev_b32 v4, 4, v2")
    a("v_lshlrev_b32 v5, 4, v2")
    a("s_sub_u32 s16, s2, 256")
    a("s_mul_i32 s16, s16, 9")
    a("s_add_u32 s16, s16, s23")
    a("s_waitcnt lgkmcnt(0)")
    srd(a, sWS, 12, WS_END)
    a("s_cmp_ge_u32 s2, 480")
    a("s_cbranch_scc1 %s_wo" % L)
    srd(a, sIN, 26, 576 * 1728 * 2)
    a("s_mul_i32 s17, s16, 9363")
    a("s_lshr_b32 s17, s17, 16")
    a("s_mul_i32 s18, s17, 7")
    a("s_sub_u32 s18, s16, s18")
    a("s_mul_i32 s19, s17, 3641")
    a("s_lshr_b32 s19, s19, 16")
    a("s_mul_i32 s20, s19, 18")
    a("s_sub_u32 s20, s17, s20")
    a("s_lshr_b32 s21, s18, 1")
    a("s_add_u32 s21, s21, 1")
    a("s_cmp_eq_u32 s21, 3")
    a("s_cselect_b32 s21, 0, s21")
    a("s_mul_i32 s21, s21, 576")
    a("s_and_b32 s22, s18, 1")
    a("s_mul_i32 s22, s22, 18")
    a("s_add_u32 s21, s21, s22")
    a("v_add_u32 v6, s21, v3")
    a("v_bfe_u32 v7, v3, 1, 1")
    a("v_bfe_u32 v8, v3, 2, 1")
    a("v_mul_u32_u24 v9, 576, v7")
    a("v_mul_u32_u24 v8, 18, v8")
    a("v_add3_u32 v9, v9, v8, 576" if False else "v_add_u32 v9, v9, v8")
    a("v_add_u32 v9, 576, v9")
    a("v_mul_u32_u24 v8, 18, v7")
    a("v_cmp_gt_u32 vcc, 8, v3")
    a("s_nop 1")
    a("v_cndmask_b32 v9, v8, v9, vcc")
    a("v_and_b32 v8, 1, v3")
    a("v_add3_u32 v9, v9, v8, 16")
    a("v_mov_b32 v8, 0x1000000")
    a("v_cmp_gt_u32 vcc, 12, v3")
    a("s_nop 1")
    a("v_cndmask_b32 v9, v8, v9, vcc")
    a("s_cmp_eq_u32 s18, 6")
    a("s_cselect_b64 vcc, -1, 0")
    a("v_cndmask_b32 v6, v6, v9, vcc")
    a("v_lshlrev_b32 v6, 1, v6")
    a("s_movk_i32 s21, %d" % (4 * 3456))
    a("v_mad_u32_u24 v6, v4, s21, v6")
    a("s_mul_i32 s21, s20, %d" % (32 * 3456))
    a("s_mul_i32 s22, s19, 72")
    a("s_add_u32 s21, s21, s22")
    for e in range(8):
        row = e if e < 4 else 16 + e - 4
        a("s_add_u32 s22, s21, %d" % (row * 3456))
        a("buffer_load_ushort v%d, v6, s[8:11], s22 offen" % (20 + e))
    a("s_lshl_b32 s16, s16, 10")
    a("s_add_u32 s16, s16, 0x%x" % WS_WQ)
    a("s_waitcnt vmcnt(0)")
    for p in range(4):
        a("v_lshl_or_b32 v%d, v%d, 16, v%d" % (12 + p, 21 + 2 * p, 20 + 2 * p))
    a("buffer_store_dwordx4 v[12:15], v5, s[4:7], s16 offen")
    a("s_endpgm")
    a.label("%s_wo" % L)
    srd(a, sIN, 28, 576 * 576 * 2)
    a("s_cmp_ge_u32 s2, 552")
    a("s_cbranch_scc1 %s_wbar" % L)
    a("s_sub_u32 s16, s16, 2016")
    a("s_mul_i32 s17, s16, 10923")
    a("s_lshr_b32 s17, s17, 16")
    a("s_mul_i32 s18, s17, 6")
    a("s_sub_u32 s18, s16, s18")
    a("s_mul_i32 s19, s17, 3641")
    a("s_lshr_b32 s19, s19, 16")
    a("s_mul_i32 s20, s19, 18")
    a("s_sub_u32 s20, s17, s20")
    a("s_lshl_b32 s20, s20, 2")
    a("v_add_u32 v6, s20, v4")
    a("v_mul_u32_u24 v7, 7282, v6")
    a("v_lshrrev_b32 v7, 16, v7")
    a("v_mul_u32_u24 v8, 9, v7")
    a("v_sub_u32 v8, v6, v8")
    a("v_lshrrev_b32 v9, 1, v8")
    a("v_mul_u32_u24 v9, 18, v9")
    a("v_and_b32 v10, 1, v8")
    a("v_lshl_add_u32 v9, v10, 3, v9")
    a("v_cmp_eq_u32 vcc, 8, v8")
    a("v_mov_b32 v10, 16")
    a("v_mov_b32 v11, %d" % (2 * 1152))
    a("v_mov_b32 v16, %d" % (18 * 1152))
    a("v_cndmask_b32 v9, v9, v10, vcc")
    a("v_cndmask_b32 v11, v11, v16, vcc")
    a("v_mad_u32_u24 v9, v7, 64, v9")
    a("v_lshl_add_u32 v9, v7, 3, v9")
    a("v_mul_u32_u24 v9, 1152, v9")
    a("v_lshl_add_u32 v9, v3, 1, v9")
    a("s_mul_i32 s21, s19, 6")
    a("s_add_u32 s21, s21, s18")
    a("s_lshl_b32 s21, s21, 5")
    for p in range(4):
        a("buffer_load_ushort v%d, v9, s[8:11], s21 offen" % (20 + 2 * p))
        a("buffer_load_ushort v%d, v9, s[8:11], s21 offen offset:1152" % (21 + 2 * p))
        if p < 3: a("v_add_u32 v9, v9, v11")
    a("s_lshl_b32 s16, s16, 10")
    a("s_add_u32 s16, s16, 0x%x" % WS_WO)
    a("s_waitcnt vmcnt(0)")
    for p in range(4):
        a("v_lshl_or_b32 v%d, v%d, 16, v%d" % (12 + p, 21 + 2 * p, 20 + 2 * p))
    a("buffer_store_dwordx4 v[12:15], v5, s[4:7], s16 offen")
    a("s_endpgm")
    a.label("%s_wbar" % L)
    a("s_sub_u32 s16, s16, 2664")
    a("s_sub_u32 s17, s2, 552")
    a("s_lshl_b32 s17, s17, 8")
    a("s_add_u32 s17, s17, 0x%x" % WS_FL)
    a("v_lshlrev_b32 v6, 2, v2")
    a("v_mov_b32 v7, 0")
    a("buffer_store_dword v7, v6, s[4:7], s17 offen")
    a("s_mul_i32 s21, s16, 1152")
    a("v_lshlrev_b32 v6, 5, v2")
    a("v_mov_b32 v7, 0x1000000")
    a("v_cmp_gt_u32 vcc, 36, v2")
    a("s_nop 1")
    a("v_cndmask_b32 v6, v7, v6, vcc")
    a("buffer_load_dwordx4 v[8:11], v6, s[8:11], s21 offen")
    a("buffer_load_dwordx4 v[12:15], v6, s[8:11], s21 offen offset:16")
    a("s_waitcnt vmcnt(0)")
    unpack8(a, 8, 16)
    unpack8(a, 12, 24)
    for k in range(1, 16):
        a("v_add_f32 v16, v16, v%d" % (16 + k))
    xl_sum(a, [16], [17], [8, 4, 2, 1, 16, 32])
    a("v_mul_f32 v16, 0x%x, v16" % f2u(1.0 / 576))
    a("s_lshl_b32 s16, s16, 2")
    a("s_add_u32 s16, s16, 0x%x" % WS_WBAR)
    a("v_mov_b32 v6, 0")
    a("s_mov_b64 exec, 1")
    a("buffer_store_dword v16, v6, s[4:7], s16 offen")
    a.label("%s_end" % L)
    a("s_endpgm")
    return kernel_desc(name, 64, 64)
```

```python
from mcommon import *
import math
SLOT = 36 * 1024

class Ctx: pass

def stamp(c):
    if not c.stamp: return
    a = c.a
    a("s_memrealtime s[62:63]")
    a("s_waitcnt lgkmcnt(0)")
    a("s_lshl_b64 exec, 1, s%d" % sSTI)
    a("v_mov_b32 v%d, s62" % vST)
    a("s_mov_b64 exec, -1")
    a("s_add_u32 s%d, s%d, 1" % (sSTI, sSTI))

def signal(c, phase, nvm):
    a = c.a
    lab = c.lab("sig")
    a("s_waitcnt vmcnt(%d)" % nvm)
    a("s_barrier")
    a("s_cmp_lg_u32 s%d, %d" % (sW, c.sigwave))
    a("s_cbranch_scc1 %s" % lab)
    a("s_lshl_b32 s62, s%d, 2" % sJ)
    a("s_add_u32 s62, s62, s%d" % sFL)
    a("v_mov_b32 v250, 1")
    a("v_mov_b32 v251, %d" % (phase * 2048))
    a("s_mov_b64 exec, 1")
    a("buffer_store_dword v250, v251, s[4:7], s62 offen sc1")
    a("s_mov_b64 exec, -1")
    a.label(lab)

def phase_off(phase): return phase * 2048

def wait_flags(c, phase, n, halo=False, prev_layer=False):
    a = c.a
    skip, loop, done = c.lab("wf_skip"), c.lab("wf_loop"), c.lab("wf_done")
    a("s_cmp_lg_u32 s%d, 3" % sW)
    a("s_cbranch_scc1 %s" % skip)
    a("v_lshlrev_b32 v250, 2, v%d" % vLane)
    off = phase_off(phase) - (8192 if prev_layer else 0)
    mask = (1 << n) - 1
    a("s_add_u32 s62, s%d, 0x%x" % (sFL, off & 0xffffffff))
    if halo:
        a("s_sub_u32 s62, s62, 72")
        a("s_cmp_eq_u32 s%d, 0" % sI)
        a("s_cselect_b32 s64, 0, 3")
        a("s_or_b32 s64, s64, 0x%x" % ((mask << 18) & 0xffffffff))
        a("s_mov_b32 s65, 0x%x" % (mask << 18 >> 32))
    else:
        a("s_mov_b32 s64, 0x%x" % mask)
        a("s_mov_b32 s65, 0")
    a("s_mov_b64 exec, s[64:65]")
    a("s_mov_b32 s63, 0")
    a.label(loop)
    a("buffer_load_dword v251, v250, s[4:7], s62 offen sc1")
    a("s_add_u32 s63, s63, 1")
    a("s_waitcnt vmcnt(0)")
    a("v_cmp_eq_u32 vcc, 1, v251")
    a("s_cmp_eq_u64 vcc, s[64:65]")
    a("s_cbranch_scc1 %s" % done)
    a("s_cmp_lt_u32 s63, 0x%x" % c.maxpoll)
    a("s_cbranch_scc1 %s" % loop)
    a.label(done)
    a("s_mov_b64 exec, -1")
    a.label(skip)
    a("s_barrier")

def sig_store(c, phase):
    pass

def linear_dma(c, src_sreg, ngroups, lab):
    a = c.a
    a("s_mov_b32 s63, 0")
    a.label(lab)
    for q in range(4):
        a("buffer_load_dwordx4 v%d, s[4:7], s%d offen offset:%d lds" % (vL16, src_sreg, q * 1024))
    a("s_add_u32 m0, m0, 4096")
    a("s_add_u32 s%d, s%d, 4096" % (src_sreg, src_sreg))
    a("s_add_u32 s63, s63, 1")
    a("s_cmp_lt_u32 s63, %d" % ngroups)
    a("s_cbranch_scc1 %s" % lab)

def prefetch_A(c):
    a = c.a
    a("s_lshl_b32 s24, s%d, 15" % sW)
    a("s_mul_i32 s25, s%d, %d" % (sJ, 126 * 1024))
    a("s_add_u32 s25, s25, s24")
    a("s_add_u32 s25, s25, 0x%x" % WS_WQ)
    a("s_mov_b32 m0, s24")
    linear_dma(c, 25, 8, c.lab("pfA"))

def phase_A(c):
    a, opt = c.a, c.opt
    LD, ST = "sc1", "sc1"
    L = c.lab("A")
    B0, AF, NB = 0, 144, 12
    ACC, WB = 0, 196
    vLv = [218, 219, 220]; vHv = [221, 222, 223]
    P = 336
    HALO = 126 * 1024
    a("s_lshl_b32 s24, s%d, 10" % sW)
    a("s_lshl_b32 s27, s%d, 3" % sI)
    a("s_max_u32 s28, s27, 1")
    a("s_sub_u32 s28, s28, 1")
    a("s_mul_i32 s28, s28, 18432")
    a("s_add_u32 s28, s28, s%d" % sL)
    a("s_mul_i32 s29, s%d, 5120" % sW)
    a("s_add_u32 s28, s28, s29")
    a("s_add_u32 s29, s29, %d" % HALO)
    a("s_lshl_b32 s30, s%d, 1" % sW)
    a("s_add_u32 s30, s30, s27")
    a("s_mul_i32 s31, s30, 18432")
    a("s_add_u32 s31, s31, s%d" % sL)
    a("s_mov_b32 s32, s31")
    a("v_lshrrev_b32 v2, 5, v%d" % vLane)
    a("v_mul_u32_u24 v233, 72, v2")
    a("s_mul_i32 s33, s%d, 144" % sJ)
    a("s_add_u32 s33, s33, 0x%x" % WS_WBAR)
    LVL = 49152
    for lv in range(3):
        a("v_add_u32 v%d, 0x%x, v%d" % (vLv[lv], lv * LVL, vL16))
        a("v_add_u32 v%d, s24, v%d" % (vHv[lv], vLv[lv]))
    nos = c.lab("A_nosync")
    a("s_cmp_eq_u32 s%d, 0" % sL)
    a("s_cbranch_scc1 %s" % nos)
    wait_flags(c, 3, 16, halo=True, prev_layer=True)
    a.label(nos)
    stamp(c)
    log = []
    def em(lst, tag):
        for s_ in lst:
            a(s_)
            if s_.startswith("buffer_"): log.append(tag)
    def need(tag):
        idx = max(k for k, t_ in enumerate(log) if t_ == tag)
        return min(63, len(log) - 1 - idx)
    def xl(t):
        o = []
        for mb in range(2):
            g = []
            if mb == 0 and t % 4 == 0 and t: g.append("s_add_u32 s32, s32, 4096")
            g.append("buffer_load_dwordx4 %s, v%d, s[4:7], s32 offen offset:%d %s" % (ar(B0 + 4 * (18 * mb + t), 4), (vL16, vL16b)[mb], (t % 4) * 1024, LD))
            o.append(g)
        return o
    PRE = opt.get("A_pre", 6)
    for t in range(PRE):
        for g in xl(t): em(g, t)
    a("s_waitcnt vmcnt(%d)" % len(log))
    a("s_barrier")
    pend = [(g, t) for t in range(PRE, 18) for g in xl(t)]
    pend += [(["s_mov_b32 m0, s29"], "h")]
    pend += [(["buffer_load_dwordx4 v%d, s[4:7], s28 offen offset:%d %s lds" % (vL16, q * 1024, LD)], "h") for q in range(4)]
    pend += [(["s_add_u32 m0, m0, 4096", "s_add_u32 s28, s28, 4096"], "h"), (["buffer_load_dwordx4 v%d, s[4:7], s28 offen %s lds" % (vL16, LD)], "h")]
    pend += [(["buffer_load_dwordx4 %s, v233, s[4:7], s33 offen offset:%d" % (vr(WB + 4 * q, 4), 16 * q)], "wb") for q in range(4)]
    pend += [(["buffer_load_dwordx2 %s, v233, s[4:7], s33 offen offset:64" % vr(WB + 16, 2)], "wb")]
    stream = [("m", f) for f in range(126)] + [(k, t) for t in range(18) for k in ("hb", "a6", "aw")]
    def rd(n):
        k, x = stream[n]
        vs = vLv
        if k == "m": o = x * 1024
        elif k == "hb": o = HALO + x * 1024
        elif k == "a6": o = (x * 7 + 6) * 1024
        else: o = x * 7168; vs = vHv
        lv = min(o // LVL, 2)
        return "ds_read_b128 %s, v%d offset:%d" % (ar(AF + 4 * (n % NB), 4), vs[lv], o - lv * LVL)
    def fb(n): return ar(AF + 4 * (n % NB), 4)
    DIST = NB - 4
    nxt = 0
    for _ in range(DIST):
        a(rd(nxt)); nxt += 1
    def mf(acc, A, B, first):
        return "v_mfma_f32_16x16x32_bf16 %s, %s, %s, %s" % (vr(acc, 4), A, B, "0" if first else vr(acc, 4))
    for f in range(126):
        t, k = f // 7, f % 7
        if k == 0: a("s_waitcnt vmcnt(%d)" % need(t))
        if nxt == 126:
            a("s_waitcnt vmcnt(%d)" % need("h"))
            a("s_barrier")
        if f % 2 == 0: a("s_waitcnt lgkmcnt(%d)" % (nxt - 1 - (f + 1)))
        a(mf(ACC + 4 * k, fb(f), ar(B0 + 4 * t, 4), t == 0))
        a(rd(nxt)); nxt += 1
        a(mf(ACC + 4 * (7 + k), fb(f), ar(B0 + 4 * (18 + t), 4), t == 0))
        if pend and f % 2 == 0:
            g, tag = pend.pop(0); em(g, tag)
    assert not pend
    for t in range(18):
        n = 126 + 3 * t
        a("s_waitcnt lgkmcnt(%d)" % (nxt - 1 - (n + 2)))
        a(mf(ACC + 60, fb(n + 1), fb(n), t == 0))
        for _ in range(2):
            if nxt < len(stream): a(rd(nxt)); nxt += 1
        a(mf(ACC + 56, fb(n + 2), fb(n), t == 0))
        if nxt < len(stream): a(rd(nxt)); nxt += 1
    stamp(c)
    a("s_cmp_ge_u32 s%d, 6" % sJ)
    a("s_cselect_b32 s44, 6, 0")
    a("s_cselect_b32 s45, 4, 0")
    a("s_sub_u32 s44, s%d, s44" % sJ)
    a("s_add_u32 s45, s45, s27")
    a("s_add_u32 s45, s45, s%d" % sW)
    a("s_mul_i32 s46, s44, %d" % (108 * 1024))
    a("s_mul_i32 s47, s%d, %d" % (sW, 27 * 1024))
    a("s_add_u32 s46, s46, s47")
    a("s_add_u32 s46, s46, 0x%x" % WS_WO)
    a("s_cmp_ge_u32 s%d, 12" % sJ)
    a("s_cselect_b32 s46, 0x7f000000, s46")
    a("s_mov_b32 m0, s47")
    pf = []
    for g in range(7):
        for q in range(4):
            if g == 6 and q == 3: continue
            x = ["buffer_load_dwordx4 v%d, s[4:7], s46 offen offset:%d lds" % (vL16, q * 1024)]
            if q == 3: x += ["s_add_u32 m0, m0, 4096", "s_add_u32 s46, s46, 4096"]
            pf.append(x)
    cnt = [0]
    PFS = opt.get("A_pfs", 5)
    def v(s_):
        a(s_)
        cnt[0] += 1
        if pf and cnt[0] % PFS == 0:
            for x in pf.pop(0): a(x)
    a("v_and_b32 v64, 15, v%d" % vLane)
    a("v_lshrrev_b32 v65, 4, v%d" % vLane)
    a("v_mul_u32_u24 v64, %d, v64" % P)
    a("v_add_u32 v64, %d, v64" % LDS_STG)
    a("v_lshl_add_u32 v66, v65, 3, v64")
    a("v_lshl_add_u32 v67, v65, 4, v64")
    a("s_mul_i32 s34, s%d, %d" % (sW, 32 * P))
    a("s_add_u32 s34, s34, %d" % (16 * P))
    a("v_add_u32 v68, s34, v66")
    a("v_add_u32 v69, s34, v67")
    a("s_barrier")
    for mb in range(2):
        for nb, off in ((2, 128), (3, 192), (6, 256)):
            r = ACC + 4 * (7 * mb + nb)
            a("ds_write_b128 v69, %s offset:%d" % (vr(r, 4), off + mb * 16 * P))
        for nb, off in ((0, 0), (1, 32), (4, 64), (5, 96)):
            r = ACC + 4 * (7 * mb + nb)
            a("v_cvt_pk_bf16_f32 v%d, v%d, v%d" % (r, r, r + 1))
            a("v_cvt_pk_bf16_f32 v%d, v%d, v%d" % (r + 1, r + 2, r + 3))
            a("ds_write_b64 v68, %s offset:%d" % (vr(r, 2), off + mb * 16 * P))
    a("ds_write_b128 v67, v[60:63] offset:256")
    a("s_cmp_ge_u32 s%d, 2" % sW)
    a("s_cbranch_scc1 %s_hv" % L)
    a("s_lshl_b32 s35, s%d, 5" % sW)
    a("v_add_u32 v66, s35, v66")
    a("v_cvt_pk_bf16_f32 v56, v56, v57")
    a("v_cvt_pk_bf16_f32 v57, v58, v59")
    a("ds_write_b64 v66, v[56:57]")
    a("s_branch %s_hd" % L)
    a.label("%s_hv" % L)
    a("s_lshl_b32 s35, s%d, 6" % sW)
    a("v_add_u32 v67, s35, v67")
    a("ds_write_b128 v67, v[56:59]")
    a.label("%s_hd" % L)
    vK, vV, vTt, vQt, vGR = 225, 226, 227, 228, 229
    v("v_and_b32 v64, 31, v%d" % vLane)
    v("v_lshrrev_b32 v65, 5, v%d" % vLane)
    v("v_mul_u32_u24 v66, %d, v64" % P)
    v("s_add_u32 s34, s34, %d" % (LDS_STG - 14 * P))
    v("v_add_u32 v66, s34, v66")
    v("v_lshl_add_u32 v%d, v65, 5, v66" % vK)
    v("v_lshl_add_u32 v%d, v65, 6, v66" % vV)
    v("v_lshl_add_u32 v%d, v65, 4, v66" % vTt)
    v("v_lshl_add_u32 v%d, v65, 3, v66" % vQt)
    v("s_lshl_b32 s35, s30, 4")
    v("v_add_u32 v%d, s35, v64" % vGR)
    vO, vO2, vOB = 230, 231, 232
    v("v_lshrrev_b32 v66, 4, v64")
    v("v_mul_u32_u24 v66, 18432, v66")
    v("v_and_b32 v67, 15, v64")
    v("v_lshl_add_u32 v66, v67, 4, v66")
    v("v_lshl_add_u32 v%d, v65, 9, v66" % vO)
    v("v_lshl_add_u32 v%d, v65, 2, v66" % vO2)
    v("v_lshlrev_b32 v%d, 6, v%d" % (vOB, vGR))
    v("s_lshr_b32 s48, s%d, 1" % sJ)
    v("s_mul_i32 s48, s48, 2304")
    v("s_add_u32 s48, s48, s31")
    v("s_add_u32 s48, s48, 0x%x" % L_O)
    v("s_and_b32 s49, s%d, 1" % sJ)
    v("s_lshl_b32 s50, s49, 3")
    v("s_add_u32 s50, s50, s48")
    v("s_lshl_b32 s49, s49, 10")
    v("s_add_u32 s48, s48, s49")
    v("s_lshl_b32 s51, s%d, 2" % sJ)
    v("s_add_u32 s51, s51, s%d" % sL)
    v("s_add_u32 s51, s51, 0x%x" % L_OB)
    a("s_waitcnt lgkmcnt(0)")
    a("s_barrier")
    stamp(c)
    KR, TR, VA, Q, S_, O = 0, 64, 96, 160, 170, 178
    dl = []
    def ds(s_, tag):
        a(s_); dl.append(tag)
    def dwait(tag):
        idx = max(k for k, t_ in enumerate(dl) if t_ == tag)
        a("s_waitcnt lgkmcnt(%d)" % min(15, len(dl) - 1 - idx))
    ds("ds_read_b128 %s, v%d offset:%d" % (vr(Q, 4), vK, 14 * P + 64), "q")
    ds("ds_read_b128 %s, v%d offset:%d" % (vr(Q + 4, 4), vK, 14 * P + 80), "q")
    ds("ds_read_b64 %s, v%d offset:%d" % (vr(Q + 8, 2), vQt, 14 * P + 288), "q")
    def kread(j):
        o = (14 - 2 * j) * P
        ds("ds_read_b128 %s, v%d offset:%d" % (vr(KR + 8 * j, 4), vK, o), "k%d" % j)
        ds("ds_read_b128 %s, v%d offset:%d" % (vr(KR + 8 * j + 4, 4), vK, o + 16), "k%d" % j)
        ds("ds_read_b128 %s, v%d offset:%d" % (vr(TR + 4 * j, 4), vTt, o + 256), "k%d" % j)
    def vreg(j): return (VA + 16 * j) if j < 4 else (KR + 16 * (j - 4))
    def vread(j):
        o = (14 - 2 * j) * P + 128
        for q in range(4):
            ds("ds_read_b128 %s, v%d offset:%d" % (vr(vreg(j) + 4 * q, 4), vV, o + 16 * q), "v%d" % j)
    for j in range(4): kread(j)
    a("v_mov_b32 v%d, 0xff7fffff" % (O + 1))
    for j in range(8):
        dwait("k%d" % j)
        if j < 4: kread(j + 4)
        else: vread(j - 4)
        v("v_mul_f32 v%d, v%d, v%d" % (S_ + j, Q + 8, TR + 4 * j))
        v("v_fmac_f32 v%d, v%d, v%d" % (S_ + j, Q + 9, TR + 4 * j + 1))
        for p in range(8):
            v("v_dot2_f32_bf16 v%d, v%d, v%d, v%d" % (S_ + j, Q + p, KR + 8 * j + p, S_ + j))
        if j > 0:
            a("v_cmp_le_u32 vcc, %d, v%d" % (2 * j, vGR))
            a("s_nop 1")
            a("v_cndmask_b32 v%d, v%d, v%d, vcc" % (S_ + j, O + 1, S_ + j))
    for j in range(4, 8): vread(j)
    v("v_max3_f32 v%d, v%d, v%d, v%d" % (O, S_, S_ + 1, S_ + 2))
    v("v_max3_f32 v%d, v%d, v%d, v%d" % (O, O, S_ + 3, S_ + 4))
    v("v_max3_f32 v%d, v%d, v%d, v%d" % (O, O, S_ + 5, S_ + 6))
    v("v_max_f32 v%d, v%d, v%d" % (O, O, S_ + 7))
    a("s_mov_b32 s52, 0x%x" % f2u(18 ** -0.5 * math.log2(math.e)))
    for j in range(8): v("v_sub_f32 v%d, v%d, v%d" % (S_ + j, S_ + j, O))
    for j in range(8): v("v_mul_f32 v%d, s52, v%d" % (S_ + j, S_ + j))
    for j in range(8): v("v_exp_f32 v%d, v%d" % (S_ + j, S_ + j))
    SUM = Q
    v("v_add_f32 v%d, v%d, v%d" % (SUM, S_, S_ + 1))
    for j in range(2, 8): v("v_add_f32 v%d, v%d, v%d" % (SUM, SUM, S_ + j))
    a("v_rcp_f32 v%d, v%d" % (SUM, SUM))
    a("s_nop 0")
    for j in range(8): v("v_mul_f32 v%d, v%d, v%d" % (S_ + j, S_ + j, SUM))
    while pf:
        for x in pf.pop(0): a(x)
    for j in range(8):
        dwait("v%d" % j)
        pj = vr(S_ + (j & ~1), 2)
        sel = "op_sel:[0,%d,0] op_sel_hi:[1,%d,1]" % (j & 1, j & 1)
        for p in range(9):
            src = vr(vreg(j) + 2 * p, 2) if p < 8 else vr(TR + 4 * j + 2, 2)
            if j == 0:
                a("v_pk_mul_f32 %s, %s, %s op_sel:[0,0] op_sel_hi:[1,0]" % (vr(O + 2 * p, 2), src, pj))
            else:
                a("v_pk_fma_f32 %s, %s, %s, %s %s" % (vr(O + 2 * p, 2), src, pj, vr(O + 2 * p, 2), sel))
    for p in range(9):
        a("v_cvt_pk_bf16_f32 v%d, v%d, v%d" % (VA + p, O + 2 * p, O + 2 * p + 1))
    a("buffer_store_dwordx4 %s, v%d, s[4:7], s48 offen %s" % (vr(VA, 4), vO, ST))
    a("buffer_store_dwordx4 %s, v%d, s[4:7], s48 offen offset:256 %s" % (vr(VA + 4, 4), vO, ST))
    a("buffer_store_dword v%d, v%d, s[4:7], s50 offen offset:2048 %s" % (VA + 8, vO2, ST))
    a("s_waitcnt vmcnt(30)")
    a("v_mul_f32 v%d, v%d, v%d" % (Q, O, WB))
    for p in range(1, 18):
        a("v_fmac_f32 v%d, v%d, v%d" % (Q, O + p, WB + p))
    xl_sum(a, [Q], [Q + 1], [32])
    a("s_mov_b64 exec, 0xffffffff")
    a("buffer_store_dword v%d, v%d, s[4:7], s51 offen %s" % (Q, vOB, ST))
    a("s_mov_b64 exec, -1")
    stamp(c)

def phase_B(c, after_stores):
    a, opt = c.a, c.opt
    LD, ST = "sc1", "sc1"
    B0, AF, NB = 0, 72, 8
    ACC, XR = 32, 56
    idle, join = c.lab("B_idle"), c.lab("B_join")
    a("s_mul_i32 s24, s45, 18432")
    a("s_add_u32 s24, s24, s%d" % sL)
    a("s_add_u32 s25, s24, 0x%x" % L_O)
    a("s_mul_i32 s26, s44, 3072")
    a("s_add_u32 s24, s24, s26")
    a("v_and_b32 v4, 15, v%d" % vLane)
    a("v_lshrrev_b32 v5, 4, v%d" % vLane)
    a("v_lshlrev_b32 v6, 6, v4")
    a("v_lshl_add_u32 v6, v5, 4, v6")
    a("v_lshlrev_b32 v7, 2, v4")
    a("s_lshl_b32 s26, s45, 10")
    a("s_add_u32 s26, s26, s%d" % sL)
    a("s_add_u32 s26, s26, 0x%x" % L_OB)
    a("s_lshl_b32 s27, s45, 6")
    a("s_add_u32 s27, s27, s%d" % sL)
    a("s_add_u32 s27, s27, 0x%x" % L_MEAN)
    a("s_add_u32 s28, s24, 0x%x" % L_XR)
    for u in range(3):
        a("buffer_load_dwordx4 %s, v%d, s[4:7], s28 offen offset:%d %s" % (vr(XR + 4 * u, 4), vL16, u * 1024, LD))
    a("buffer_load_dword v12, v7, s[4:7], s27 offen %s" % LD)
    signal(c, 0, 4)
    a("s_cmp_ge_u32 s%d, 12" % sJ)
    a("s_cbranch_scc1 %s" % idle)
    a("v_add_u32 v13, 0xd800, v%d" % vL16)
    def rd(i):
        o = i * 1024
        v = vL16
        if o >= 0xd800: v, o = 13, o - 0xd800
        return "ds_read_b128 %s, v%d offset:%d" % (ar(AF + 4 * (i % NB), 4), v, o)
    for i in range(NB - 1): a(rd(i))
    wait_flags(c, 0, 16)
    stamp(c)
    for t in range(18):
        if t % 4 == 0 and t: a("s_add_u32 s25, s25, 4096")
        a("buffer_load_dwordx4 %s, v%d, s[4:7], s25 offen offset:%d %s" % (ar(B0 + 4 * t, 4), vL16, (t % 4) * 1024, LD))
    a("buffer_load_dwordx4 v[8:11], v6, s[4:7], s26 offen %s" % LD)
    for f in range(108):
        t, db = f // 6, f % 6
        if db == 0: a("s_waitcnt vmcnt(%d)" % (18 - t))
        if f % 2 == 0: a("s_waitcnt lgkmcnt(%d)" % max(0, min(NB - 3, 106 - f)))
        cc = "0" if t == 0 else vr(ACC + 4 * db, 4)
        a("v_mfma_f32_16x16x32_bf16 %s, %s, %s, %s" % (vr(ACC + 4 * db, 4), ar(AF + 4 * (f % NB), 4), ar(B0 + 4 * t, 4), cc))
        if f + NB - 1 < 108: a(rd(f + NB - 1))
    stamp(c)
    a("s_waitcnt vmcnt(0)")
    a("v_add_f32 v8, v8, v9")
    a("v_add_f32 v10, v10, v11")
    a("v_add_f32 v8, v8, v10")
    xl_sum(a, [8], [9], [16, 32])
    a("v_add_f32 v8, v8, v12")
    a("v_mov_b32 v9, 0")
    a("s_add_u32 s27, s24, 0x%x" % L_X1)
    a("s_add_u32 s28, s24, 0x%x" % L_XC)
    for u in range(3):
        for k in range(4):
            a("v_lshlrev_b32 v16, 16, v%d" % (XR + 4 * u + k))
            a("v_and_b32 v17, 0xffff0000, v%d" % (XR + 4 * u + k))
            a("v_add_f32 v16, v16, v%d" % (ACC + 8 * u + 2 * k))
            a("v_add_f32 v17, v17, v%d" % (ACC + 8 * u + 2 * k + 1))
            a("v_cvt_pk_bf16_f32 v%d, v16, v17" % (XR + 4 * u + k))
            a("v_lshlrev_b32 v16, 16, v%d" % (XR + 4 * u + k))
            a("v_and_b32 v17, 0xffff0000, v%d" % (XR + 4 * u + k))
            a("v_sub_f32 v16, v16, v8")
            a("v_sub_f32 v17, v17, v8")
            a("v_fmac_f32 v9, v16, v16")
            a("v_fmac_f32 v9, v17, v17")
            a("v_cvt_pk_bf16_f32 v%d, v16, v17" % (20 + 4 * u + k))
        a("buffer_store_dwordx4 %s, v%d, s[4:7], s28 offen offset:%d %s" % (vr(20 + 4 * u, 4), vL16, u * 1024, ST))
        a("buffer_store_dwordx4 %s, v%d, s[4:7], s27 offen offset:%d %s" % (vr(XR + 4 * u, 4), vL16, u * 1024, ST))
    xl_sum(a, [9], [10], [16, 32])
    a("v_lshlrev_b32 v6, 5, v4")
    a("s_lshl_b32 s25, s45, 9")
    a("s_lshl_b32 s26, s44, 2")
    a("s_add_u32 s25, s25, s26")
    a("s_add_u32 s25, s25, s%d" % sL)
    a("s_add_u32 s25, s25, 0x%x" % L_SSQ)
    a("s_mov_b64 exec, 0xffff")
    a("buffer_store_dword v9, v6, s[4:7], s25 offen %s" % ST)
    a("s_mov_b64 exec, -1")
    signal(c, 1, 0)
    a("s_branch %s" % join)
    a.label(idle)
    stamp(c); stamp(c)
    a.label(join)
    stamp(c)

def phase_C(c):
    a, opt = c.a, c.opt
    ST_FLAGS, LD_FLAGS = "sc1", "sc1"
    NB = opt.get("nb", 6)
    L = c.lab("C")
    T0, AG, AU, HB = 0, 32, 64, 96
    H0 = HB + 8
    vDX = [176, 177, 178, 179]
    vDW = [180, 181, 182, 183]
    vR = [[186 + 4 * lv + fb for fb in range(4)] for lv in range(3)]
    vN = [198, 199]
    NV = 200
    LVL = 49152
    X0, AF = 0, 144
    NA = AF + 4 * NB
    sWB = 24
    sRG, sRU = 25, 26
    sD0, sD1, sD2l, sD2h = 27, 28, 29, 30
    sCnt, sHI = 32, 33
    sSt, sStB = 34, 35
    sSlotN, sSlotD, sSlotC = 44, 45, 48
    sW0, sWd0 = 46, 47
    sT, sS, sX = 49, 50, 51

    a("s_mul_i32 s%d, s%d, 9216" % (sWB, sW))
    a("v_mov_b32 v2, v%d" % vLane)
    a("v_lshrrev_b32 v3, 3, v2")
    a("v_and_b32 v4, 7, v2")
    a("v_bfe_u32 v5, v2, 4, 2")
    a("v_lshlrev_b32 v5, 1, v5")
    a("v_xor_b32 v4, v4, v5")
    a("v_and_b32 v6, 3, v4")
    a("v_lshlrev_b32 v4, 4, v4")
    a("v_lshlrev_b32 v6, 4, v6")
    a("s_movk_i32 s%d, 9216" % sT)
    a("v_mad_u32_u24 v%d, v3, s%d, v4" % (vDX[0], sT))
    a("v_mad_u32_u24 v8, v3, s%d, v6" % sT)
    a("s_movk_i32 s%d, 1152" % sT)
    a("v_mad_u32_u24 v%d, v3, s%d, v4" % (vDW[0], sT))
    for q in (1, 2, 3):
        a("v_add_u32 v%d, 0x%x, v%d" % (vDX[q], q * (8 * 9216 - 1024), vDX[0]))
        a("v_add_u32 v%d, 0x%x, v8" % (8 + q, q * (8 * 9216 - 1024)))
        a("v_add_u32 v%d, 0x%x, v%d" % (vDW[q], q * (8 * 1152 - 1024), vDW[0]))
    a("v_lshrrev_b32 v3, 2, v2")
    a("v_and_b32 v4, 3, v2")
    a("v_lshlrev_b32 v4, 3, v4")
    a("v_lshl_add_u32 v4, v3, 7, v4")
    a("v_bfe_u32 v5, v2, 3, 2")
    a("v_lshl_add_u32 v%d, v5, 5, v4" % vR[0][0])
    for fb in (1, 2, 3):
        a("v_xor_b32 v%d, %d, v%d" % (vR[0][fb], fb << 5, vR[0][0]))
    for lv in (1, 2):
        for fb in range(4):
            a("v_add_u32 v%d, 0x%x, v%d" % (vR[lv][fb], lv * LVL, vR[0][fb]))
    a("s_mul_i32 s%d, s%d, 576" % (sRG, sJ))
    a("s_mul_i32 s%d, s%d, %d" % (sT, sW, 72 * 9216))
    a("s_add_u32 s%d, s%d, s%d" % (sRG, sRG, sT))
    a("s_mul_i32 s%d, s%d, %d" % (sW0, sJ, 288 * 1152))
    a("s_mul_i32 s%d, s%d, %d" % (sT, sW, 72 * 1152))
    a("s_add_u32 s%d, s%d, s%d" % (sW0, sW0, sT))
    a("s_mov_b32 s%d, %d" % (sWd0, 32 * 1152))
    a("s_cmp_eq_u32 s%d, 0" % sW)
    a("s_cselect_b32 s52, %d, %d" % (256 * 1152, -32 * 1152 & 0xffffffff) if False else "s_cselect_b32 s52, 8, -1")
    a("s_cselect_b32 s53, -8, 1")
    a("s_mul_i32 s52, s52, %d" % (32 * 1152))
    a("s_mul_i32 s53, s53, %d" % (32 * 1152))
    a("s_bitcmp0_b32 s%d, 0" % sJ)
    a("s_cselect_b32 s%d, 512, 0" % sS)
    a("s_cselect_b32 s54, 0, 64")
    a("s_cselect_b32 s52, s52, 0")
    a("s_cselect_b32 s%d, s53, s%d" % (sWd0, sWd0))
    a("s_add_u32 s%d, s%d, s%d" % (sS, sS, sRG))
    a("s_add_u32 s%d, s%d, s54" % (sRG, sRG))
    a("s_mov_b32 s%d, s%d" % (sRU, sRG))
    a("s_add_u32 s%d, s%d, s52" % (sW0, sW0))
    a("s_mov_b32 s%d, 0x%x" % (sD0, 32 * 9216))
    a("s_mov_b32 s%d, 0x%x" % (sD1, 32 * 9216))
    a("s_mov_b32 s%d, 0x%x" % (sD2l, (288 - 64) * 9216))
    a("s_mov_b32 s%d, 0x%x" % (sD2h, (-(288 + 64) * 9216 + 128) & 0xffffffff))
    a("s_lshl_b32 s%d, s%d, 2" % (sT, sI))
    a("s_add_u32 s%d, s%d, s%d" % (sT, sT, sW))
    a("s_mul_i32 s%d, s%d, %d" % (sT, sT, 36 * 1024))
    a("s_add_u32 s%d, s%d, 0x%x" % (sX, sT, L_XC))
    a("s_add_u32 s%d, s%d, s%d" % (sX, sX, sL))
    a("s_mul_i32 s%d, s%d, %d" % (sSt, sJ, ACT))
    a("s_add_u32 s%d, s%d, s%d" % (sSt, sSt, sT))
    a("s_add_u32 s%d, s%d, 0x%x" % (sSt, sSt, WS_P))
    a("s_mov_b32 s%d, 0x7f000000" % sStB)
    a("s_mov_b32 s%d, 0" % sHI)
    a("s_mov_b32 s%d, -1" % sCnt)
    a("s_mov_b32 s56, 0x0f0f0f0f")
    a("s_mov_b32 s57, 0xf0f0f0f0")
    srd(a, sDG, 36, D * F * 2)
    srd(a, sDU, 38, D * F * 2)
    def dma_stage(vo, srdn, run, m0f, deltas):
        out = []
        for g in range(3):
            n = 4 if g < 2 else 1
            out.append([m0f(g)])
            for q in range(n):
                grp = ["buffer_load_dwordx4 v%d, s[%d:%d], s%d offen offset:%d lds" % (vo[q], srdn, srdn + 3, run, q * 1024)]
                if q == n - 1:
                    grp.append("s_add_u32 s%d, s%d, %s" % (run, run, deltas[g]))
                out.append(grp)
        return out
    def m0s(slot):
        return lambda g: "s_add_u32 m0, s%d, 0x%x" % (sWB, slot * SLOT + g * 4096)
    def s_stage(slot, half):
        o = []
        for g in range(3):
            n = 4 if g < 2 else 1
            o.append("s_add_u32 s55, s%d, 0x%x" % (sS, (288 * half + 32 * g) * 9216))
            o.append(m0s(slot)(g))
            for (srdn, ex) in ((sDG, "s_mov_b64 exec, s[56:57]"), (sDU, "s_not_b64 exec, s[56:57]")):
                o.append(ex)
                for q in range(n):
                    o.append("buffer_load_dwordx4 v%d, s[%d:%d], s55 offen offset:%d lds" % (8 + q, srdn, srdn + 3, q * 1024))
            o.append("s_mov_b64 exec, -1")
        return o
    def xload(t):
        o = []
        if t % 4 == 0 and t:
            o.append("s_add_u32 s%d, s%d, 4096" % (sX, sX))
        for mb in range(2):
            o.append("buffer_load_dwordx4 %s, v%d, s[%d:%d], s%d offen offset:%d %s" % (ar(X0 + 4 * (18 * mb + t), 4), (vL16, vL16b)[mb], sWS, sWS + 3, sX, (t % 4) * 1024, LD_FLAGS))
        return o
    log = []
    def emit_logged(lst, tag, out=None):
        for s_ in lst:
            (out.append(s_) if out is not None else a(s_))
            if s_.startswith("buffer_"):
                log.append(tag)
    def need(tag):
        idx = max(k for k, t_ in enumerate(log) if t_ == tag)
        return min(63, len(log) - 1 - idx)

    def fr(i):
        return AF + 4 * (i % NB)
    def reads(i, desc):
        fb, t = desc[2](i)
        if desc[0] == "D":
            o = desc[1] * SLOT + t * 4096
            lv = min(o // LVL, 2)
            v = vR[lv][fb]; o -= lv * LVL
        else:
            v = desc[1][fb]; o = t * 4096
        assert o + 2048 < 65536
        return ["ds_read_b64_tr_b16 %s, v%d offset:%d" % (ar(fr(i), 2), v, o),
                "ds_read_b64_tr_b16 %s, v%d offset:%d" % (ar(fr(i) + 2, 2), v, o + 2048)]
    DIST = NB - 1
    BAR = 36 - DIST
    assert 36 % NB == 0
    IDXSPAN = opt.get("idxspan", False)
    DSP = opt.get("dsp", 5)
    POS = [(i, g) for i in range(36) for g in ((0, 1) if i % 2 == 0 else (0,))]
    class Fill:
        def __init__(s): s.d = {}
        def free(s, p): return p not in s.d
        def put(s, k, grp):
            s.d.setdefault(POS[k], []).extend(grp)
        def seq(s, items, start, step=1):
            k = start
            for g in items:
                while k < len(POS) and POS[k] in s.d: k += 1
                if k >= len(POS):
                    k = len(POS) - 1
                s.d.setdefault(POS[k], []).extend(g)
                k += step
            return k
        def nvm(s, lo, hi):
            return sum(1 for (i, g), l in s.d.items() if lo <= i < hi for x in l if x.startswith("buffer_"))
    def kpos(i):
        return POS.index((i, 0))
    def place_dma(fill, groups, start, step):
        k = start
        pend = []
        for g in groups:
            if "m0" in g[0]:
                pend = g; continue
            if pend:
                fill.put(k - 1, pend); pend = []
            fill.put(k, g[:1])
            if len(g) > 1: fill.put(k + 1, g[1:])
            k += step
    o1 = lambda i: (i % 4, i // 4)
    o2 = lambda i: (2 * (i // 18) + (i % 2), (i % 18) // 2)
    def mf_g1(acc, kbase, first):
        def f(i):
            fb, t = o1(i)
            r = []
            for mb in range(2):
                ac = acc + (fb * 2 + mb) * 4
                c = "0" if (first and t == 0) else vr(ac, 4)
                r.append("v_mfma_f32_16x16x32_bf16 %s, %s, %s, %s" % (vr(ac, 4), ar(fr(i), 4), ar(X0 + 4 * (18 * mb + kbase + t), 4), c))
            return r
        return f
    def cvts(hbase, src):
        cv = []
        for u in range(2):
            for mb in range(2):
                for k in range(4):
                    t = src + ((2 * u + k // 2) * 2 + mb) * 4 + 2 * (k % 2)
                    cv.append("v_cvt_pk_bf16_f32 v%d, v%d, v%d" % (hbase + 8 * u + 4 * mb + k, t, t + 1))
        return cv
    def em(s_):
        if opt.get("nodma") and s_.endswith(" lds"): return
        if opt.get("nost") and s_.startswith("buffer_store"): return
        (a.label(s_[:-1]) if s_.endswith(":") else a(s_))
    def gstage(cur, nxt, mf, fill, barwait):
        for i in range(36):
            if i == BAR and nxt is not None:
                for s_ in barwait: em(s_)
                a("s_barrier")
            if i % 2 == 0:
                a("s_waitcnt lgkmcnt(%d)" % (2 * (DIST - 2)))
            if i + DIST < 36: rd = reads(i + DIST, cur)
            elif nxt is not None: rd = reads(i + DIST - 36, nxt)
            else: rd = []
            m = mf(i)
            a(m[0])
            if rd: a(rd[0])
            for s_ in fill.d.get((i, 0), []): em(s_)
            a(m[1])
            if rd: a(rd[1])
            for s_ in fill.d.get((i, 1), []): em(s_)

    dl = ["s%d" % sD0, "s%d" % sD1, "s%d" % sD2l]
    dh = ["s%d" % sD0, "s%d" % sD1, "s%d" % sD2h]
    D_ = lambda s: ("D", s, o1)
    side = []

    for s_ in s_stage(0, 0) + s_stage(1, 1): a(s_)
    for g in dma_stage(vDX, sDG, sRG, m0s(2), dl):
        for s_ in (g + ["s_nop 0"] if "m0" in g[0] else g): a(s_)
    a("s_waitcnt vmcnt(0)")
    wait_flags(c, 1, 12)
    stamp(c)
    CPRE = opt.get("C_pre", 6)
    for t in range(CPRE):
        emit_logged(xload(t), "x%d" % t)
    for i in range(DIST):
        for s_ in reads(i, D_(0)): a(s_)
    rest = list(range(CPRE, 18))
    sched = {}
    tt = 1
    while rest:
        sched[tt] = [(xload(t), "x%d" % t) for t in rest[:2]]; rest = rest[2:]; tt += 1
    a("s_mov_b64 vcc, -1")
    a("s_waitcnt vmcnt(%d)" % need("x0"))
    a("s_branch %s_C" % L)
    fillC, fillD = Fill(), Fill()
    for (nm, fill) in (("C", fillC), ("D", fillD)):
        for t in range(1, 10 if nm == "C" else 9):
            lab = "%s_s%s%d" % (L, nm, t)
            fill.d[(4 * t - 1, 0)] = ["s_cbranch_vccnz %s" % lab, lab + "r:"]
    place_dma(fillC, dma_stage(vDX, sDG, sRG, m0s(3), dh), 1, DSP)
    place_dma(fillD, dma_stage(vDX, sDU, sRU, m0s(0), dl), 1, DSP)
    fillD.put(len(POS) - 2, ["s_add_u32 s%d, s%d, 1" % (sCnt, sCnt)])
    fillD.put(len(POS) - 1, ["s_cmp_lt_u32 s%d, 4" % sCnt])
    mx = [["v_max_f32 v%d, 0, v%d" % (T0 + r, AG + r)] for r in range(32)]
    fillC.seq(mx[:14], 4)
    fillD.seq(mx[14:], 0)
    bars = {}
    for (nm, fill, kb) in (("C", fillC, 0), ("D", fillD, 9)):
        for i in range(36):
            if i == BAR:
                lab = "%s_b%s" % (L, nm)
                bars[nm] = ["s_cbranch_vccnz %s" % lab, "s_waitcnt vmcnt(%d)" % ((9 if nm == "C" else fillC.nvm(0, 36)) + fill.nvm(0, BAR)), lab + "r:"]
                side.append(lab + ":")
                pass
                side.append("s_branch %sr" % lab)
            for g in (0, 1):
                for s_ in fill.d.get((i, g), []):
                    if s_.startswith("buffer_"): log.append("f" + nm)
                    if s_.startswith("s_cbranch_vccnz"):
                        t = (i + 1) // 4
                        lab = s_.split()[1]
                        side.append(lab + ":")
                        if nm == "C":
                            for (lst, tag) in sched.get(t, []):
                                emit_logged(lst, tag, side)
                        side.append("s_waitcnt vmcnt(%d)" % need("x%d" % (kb + t)))
                        side.append("s_branch %sr" % lab)
    def barw(fill, prevn=9):
        return ["s_waitcnt vmcnt(%d)" % (prevn + fill.nvm(0, BAR))]

    a.label("%s_g1" % L)
    fill = Fill()
    place_dma(fill, dma_stage(vDX, sDU, sRU, m0s(1), dh), 1, DSP)
    fill.put(3, ["s_cbranch_vccnz %s_fix" % L, "%s_fixr:" % L])
    fill.seq([["v_mul_f32 v%d, v%d, v%d" % (T0 + r, T0 + r, AU + r)] for r in range(32)], 4)
    side.append("%s_fix:" % L)
    for r in range(16):
        side.append("v_max_f32 v%d, 0, v%d" % (T0 + 16 + r, AU + r))
    side.append("s_mov_b64 vcc, 0")
    side.append("s_branch %s_fixr" % L)
    gstage(D_(2), D_(3), mf_g1(AG, 0, True), fill, barw(fill))
    fill = Fill()
    cv = cvts(HB, T0)
    on, off = "s_set_gpr_idx_on s%d, 0x8" % sHI, "s_set_gpr_idx_off"
    if IDXSPAN:
        k = fill.seq([[on]] + [[c] for c in cv] + [[off]], 0)
    else:
        k = fill.seq([[on] + cv[4 * q:4 * q + 4] + [off] for q in range(4)], 0, 3)
    k = fill.seq([["s_add_u32 s%d, s%d, 16" % (sHI, sHI)], ["s_cmp_eq_u32 s%d, 3" % sCnt], ["s_cbranch_scc1 %s_sw" % L, "%s_swr:" % L]], k)
    place_dma(fill, dma_stage(vDX, sDG, sRG, m0s(2), dl), k + 1, (len(POS) - k - 3) // 8)
    side.append("%s_sw:" % L)
    for q in range(4):
        side.append("v_mov_b32 v%d, v%d" % (vDX[q], vDW[q]))
    side += ["s_mov_b32 s%d, s40" % sDG, "s_and_b32 s%d, s41, 0xffff" % (sDG + 1),
             "s_mov_b32 s%d, s40" % sDU, "s_and_b32 s%d, s41, 0xffff" % (sDU + 1),
             "s_mov_b32 s%d, s%d" % (sRG, sW0), "s_add_u32 s%d, s%d, 256" % (sRU, sW0),
             "s_mov_b32 s%d, s%d" % (sD0, sWd0), "s_mov_b32 s%d, %d" % (sD1, 32 * 1152),
             "s_sub_u32 s%d, %d, s%d" % (sD2l, 128 - 32 * 1152, sWd0), "s_mov_b32 s%d, s%d" % (sD2h, sD2l),
             "s_branch %s_swr" % L]
    gstage(D_(3), D_(0), mf_g1(AG, 9, False), fill, barw(fill))
    a.label("%s_C" % L)
    gstage(D_(0), D_(1), mf_g1(AU, 0, True), fillC, bars["C"])
    gstage(D_(1), D_(2), mf_g1(AU, 9, False), fillD, bars["D"])
    a("s_cbranch_scc1 %s_g1" % L)
    stamp(c)
    vC = vR[1]
    for fb in range(4):
        a("v_add_u32 v%d, 0x%x, v%d" % (vC[fb], 2 * SLOT, vR[0][fb]))
    V_ = lambda regs: ("V", regs, o2)
    a("s_waitcnt lgkmcnt(0)")
    for i in range(DIST):
        for s_ in reads(i, V_(vC)): a(s_)
    a("s_mov_b32 s%d, 0x%x" % (sSlotN, 3 * SLOT))
    a("s_mov_b32 s%d, 0x%x" % (sSlotC, 2 * SLOT))
    a("s_add_u32 s%d, s%d, 0x%x" % (sSlotD, sWB, 1 * SLOT))
    a("s_mov_b32 s%d, 0" % sCnt)
    for k in range(4):
        a("buffer_store_dword v0, v%d, s[%d:%d], s%d offen" % (vL16, sWS, sWS + 3, sStB))
    for r in range(32):
        a("v_mul_f32 v%d, v%d, v%d" % (T0 + r, T0 + r, AU + r))
    for s_ in cvts(HB + 64, T0): a(s_)
    a.label("%s_g2" % L)
    def mf2(i):
        db, t = o2(i)
        r = []
        for mb in range(2):
            ac = AG + (db * 2 + mb) * 4
            c = "0" if t == 0 else vr(ac, 4)
            r.append("v_mfma_f32_16x16x32_bf16 %s, %s, %s, %s" % (vr(ac, 4), ar(fr(i), 4), vr(H0 + 8 * t + 4 * mb, 4), c))
        return r
    def out_ep(u, soff):
        g = []
        for mb in range(2):
            tb = T0 + 8 * u + 4 * mb
            for k in range(4):
                s_ = AG + ((2 * u + k // 2) * 2 + mb) * 4 + 2 * (k % 2)
                g.append(["v_cvt_pk_bf16_f32 v%d, v%d, v%d" % (tb + k, s_, s_ + 1)])
            g.append(["buffer_store_dwordx4 %s, v%d, s[%d:%d], s%d offen offset:%d %s" % (vr(tb, 4), (vL16, vL16b)[mb], sWS, sWS + 3, soff, u * 1024, ST_FLAGS)])
        return g
    fill = Fill()
    n = len(POS)
    place_dma(fill, dma_stage(vDX, sDU, sRU, lambda g: "s_add_u32 m0, s%d, 0x%x" % (sSlotD, g * 4096), dl), 1, DSP)
    fill.put(n - 1, ["s_cmp_lt_u32 s%d, 9" % sCnt])
    k = fill.seq(out_ep(1, sStB), kpos(2))
    assert k <= kpos(18)
    fill.seq([["v_add_u32 v%d, s%d, v%d" % (vC[0], sSlotN, vR[0][0])], ["v_add_u32 v%d, s%d, v%d" % (vC[1], sSlotN, vR[0][1])]], kpos(18 - DIST + 1))
    fill.seq([["s_add_u32 s%d, s%d, 1" % (sCnt, sCnt)], ["s_mov_b32 s%d, s%d" % (sStB, sSt)]], k)
    k = fill.seq(out_ep(0, sSt), kpos(20))
    k = fill.seq([["s_add_u32 s%d, s%d, 2048" % (sSt, sSt)]], k)
    k = max(k, kpos(BAR), 1 + 8 * DSP + 2)
    fill.seq([["v_add_u32 v%d, s%d, v%d" % (vC[2], sSlotN, vR[0][2])], ["v_add_u32 v%d, s%d, v%d" % (vC[3], sSlotN, vR[0][3])],
              ["s_add_u32 s%d, s%d, s%d" % (sSlotD, sWB, sSlotC)], ["s_mov_b32 s%d, s%d" % (sSlotC, sSlotN),
               "s_add_u32 s%d, s%d, 0x%x" % (sSlotN, sSlotN, SLOT)],
              ["s_cmp_ge_u32 s%d, 0x%x" % (sSlotN, 4 * SLOT), "s_cselect_b32 s%d, 0, s%d" % (sSlotN, sSlotN)],
              ["s_cmp_lt_u32 s%d, 6" % sCnt, "s_cselect_b32 s%d, 0x%x, 0" % (sDU + 2, D * F * 2)]], k)
    assert fill.d[POS[n - 1]] == ["s_cmp_lt_u32 s%d, 9" % sCnt], fill.d[POS[n - 1]]
    gstage(V_(vC), V_(vC), mf2, fill, barw(fill, 13))
    a("s_cbranch_scc1 %s_g2" % L)
    a("s_nop 7")
    for grp in out_ep(1, sStB):
        for s_ in grp: a(s_)
    c.side += side

def unpack8(a, src, dst):
    for k in range(4):
        a("v_lshlrev_b32 v%d, 16, v%d" % (dst + 2 * k, src + k))
        a("v_and_b32 v%d, 0xffff0000, v%d" % (dst + 2 * k + 1, src + k))

def phase_D(c):
    a, opt = c.a, c.opt
    LD, ST = "sc1", "sc1"
    L = c.lab("D")
    P0 = 40
    X1, ACC, TM = 8, 232, 24
    a("v_and_b32 v1, 7, v%d" % vLane)
    a("v_lshrrev_b32 v2, 3, v%d" % vLane)
    a("s_mul_i32 s24, s%d, 24" % sW)
    a("v_add_u32 v2, s24, v2")
    a("v_lshlrev_b32 v3, 4, v1")
    a("v_lshl_add_u32 v3, v2, 8, v3")
    a("v_add_u32 v4, 4096, v3")
    a("s_lshl_b32 s25, s%d, 4" % sI)
    a("s_add_u32 s25, s25, s%d" % sJ)
    a("s_lshr_b32 s26, s25, 1")
    a("s_mul_i32 s26, s26, 18432")
    a("s_and_b32 s27, s25, 1")
    a("s_lshl_b32 s27, s27, 7")
    a("s_add_u32 s26, s26, s27")
    a("s_add_u32 s27, s26, s%d" % sL)
    a("s_add_u32 s28, s27, 0x%x" % L_X1)
    a("s_lshl_b32 s29, s25, 8")
    a("s_add_u32 s29, s29, s%d" % sL)
    a("s_add_u32 s29, s29, 0x%x" % L_SSQ)
    a("v_lshlrev_b32 v5, 5, v1")
    a("s_add_u32 s30, s26, 0x%x" % WS_P)
    def ld3(dst, soff):
        a("buffer_load_dwordx4 %s, v3, s[4:7], s%d offen %s" % (vr(dst, 4), soff, LD))
        a("buffer_load_dwordx4 %s, v3, s[4:7], s%d offen offset:2048 %s" % (vr(dst + 4, 4), soff, LD))
        a("buffer_load_dwordx4 %s, v4, s[4:7], s%d offen %s" % (vr(dst + 8, 4), soff, LD))
    ld3(X1, 28)
    a("buffer_load_dwordx4 v[32:35], v5, s[4:7], s29 offen %s" % LD)
    a("buffer_load_dwordx2 v[36:37], v5, s[4:7], s29 offen offset:16 %s" % LD)
    signal(c, 2, 5)
    nopf = c.lab("D_nopf")
    a("s_cmp_lg_u32 s%d, 0" % sL)
    a("s_cbranch_scc1 %s" % nopf)
    a("s_mov_b32 s31, s25")
    prefetch_A(c)
    a("s_mov_b32 s25, s31")
    a.label(nopf)
    wait_flags(c, 2, 16)
    stamp(c)
    w3 = c.lab("D_w3")
    a("s_cmp_eq_u32 s%d, 3" % sW)
    a("s_cbranch_scc1 %s" % w3)
    for j in range(16):
        ld3(P0 + 12 * j, 30)
        if j < 15: a("s_add_u32 s30, s30, 0x%x" % ACT)
    a("s_waitcnt vmcnt(48)")
    a("v_add_f32 v32, v32, v33")
    a("v_add_f32 v34, v34, v35")
    a("v_add_f32 v36, v36, v37")
    a("v_add_f32 v32, v32, v34")
    a("v_add_f32 v32, v32, v36")
    a("v_mov_b32 v33, 0x%x" % f2u(1e-5))
    a("s_mov_b32 s31, 0x%x" % f2u(1.0 / 576))
    a("v_fma_f32 v32, v32, s31, v33")
    a("v_rcp_f32 v32, v32")
    AC = [232, 240, 24]
    T2 = 20
    for j in range(16):
        for q in range(3):
            a("s_waitcnt vmcnt(%d)" % (47 - 3 * j - q))
            src = P0 + 12 * j + 4 * q
            if j == 0:
                unpack8(a, src, AC[q])
            else:
                for k in range(4):
                    a("v_lshlrev_b32 v%d, 16, v%d" % (T2, src + k))
                    a("v_and_b32 v%d, 0xffff0000, v%d" % (T2 + 1, src + k))
                    a("v_add_f32 v%d, v%d, v%d" % (AC[q] + 2 * k, AC[q] + 2 * k, T2))
                    a("v_add_f32 v%d, v%d, v%d" % (AC[q] + 2 * k + 1, AC[q] + 2 * k + 1, T2 + 1))
    XF = 40
    for q in range(3):
        unpack8(a, X1 + 4 * q, XF + 8 * q)
        for k in range(8):
            a("v_fmac_f32 v%d, v%d, v32" % (XF + 8 * q + k, AC[q] + k))
        for k in range(4):
            a("v_cvt_pk_bf16_f32 v%d, v%d, v%d" % (X1 + 4 * q + k, XF + 8 * q + 2 * k, XF + 8 * q + 2 * k + 1))
    fin = c.lab("D_fin")
    a("s_cmp_lg_u32 s%d, 0" % sL)
    a("s_cbranch_scc1 %s" % fin)
    def st3(src, soff):
        a("buffer_store_dwordx4 %s, v3, s[4:7], s%d offen %s" % (vr(src, 4), soff, ST))
        a("buffer_store_dwordx4 %s, v3, s[4:7], s%d offen offset:2048 %s" % (vr(src + 4, 4), soff, ST))
        a("buffer_store_dwordx4 %s, v4, s[4:7], s%d offen %s" % (vr(src + 8, 4), soff, ST))
    for q in range(3): unpack8(a, X1 + 4 * q, XF + 8 * q)
    a("s_add_u32 s28, s26, 0x%x" % (LSTR + L_XR))
    st3(X1, 28)
    a("v_add_f32 v34, v%d, v%d" % (XF, XF + 1))
    a("v_mul_f32 v35, v%d, v%d" % (XF, XF))
    a("v_fmac_f32 v35, v%d, v%d" % (XF + 1, XF + 1))
    for k in range(2, 24):
        a("v_add_f32 v34, v34, v%d" % (XF + k))
        a("v_fmac_f32 v35, v%d, v%d" % (XF + k, XF + k))
    xl_sum(a, [34, 35], [36, 37], [8, 16, 32])
    a("v_lshlrev_b32 v36, 5, v1")
    a("v_add_u32 v36, %d, v36" % LDS_D)
    a("s_lshl_b32 s24, s%d, 3" % sW)
    a("v_add_u32 v37, s24, v36")
    a("ds_write_b64 v37, v[34:35]")
    a("s_waitcnt lgkmcnt(0)")
    a("s_barrier")
    a("ds_read_b128 v[64:67], v36")
    a("ds_read_b64 v[34:35], v36 offset:16")
    a("s_waitcnt lgkmcnt(0)")
    a("v_add_f32 v34, v34, v64")
    a("v_add_f32 v35, v35, v65")
    a("v_add_f32 v34, v34, v66")
    a("v_add_f32 v35, v35, v67")
    a("v_mul_f32 v34, s31, v34")
    a("v_mul_f32 v36, v34, v34")
    a("v_fma_f32 v35, v35, s31, -v36")
    a("v_max_f32 v35, 0, v35")
    a("v_add_f32 v35, 0x%x, v35" % f2u(1e-5))
    a("v_rsq_f32 v35, v35")
    for k in range(24): a("v_sub_f32 v%d, v%d, v34" % (XF + k, XF + k))
    for k in range(24): a("v_mul_f32 v%d, v%d, v35" % (XF + k, XF + k))
    for k in range(12): a("v_cvt_pk_bf16_f32 v%d, v%d, v%d" % (64 + k, XF + 2 * k, XF + 2 * k + 1))
    a("s_add_u32 s28, s26, 0x%x" % (LSTR + L_XN))
    st3(64, 28)
    a("v_lshlrev_b32 v36, 2, v1")
    a("s_lshl_b32 s28, s25, 5")
    a("s_add_u32 s28, s28, 0x%x" % (LSTR + L_MEAN))
    a("s_mov_b64 exec, 0xff")
    a("buffer_store_dword v34, v36, s[4:7], s28 offen %s" % ST)
    a("s_mov_b64 exec, -1")
    j2 = c.lab("D_j2")
    a("s_branch %s" % j2)
    a.label(w3)
    a("s_cmp_lg_u32 s%d, 0" % sL)
    a("s_cbranch_scc1 %s" % c.endlab)
    a("s_barrier")
    a.label(j2)
    signal(c, 3, 0)
    stamp(c)
    a("s_mov_b32 s%d, 0x%x" % (sL, LSTR))
    a("s_add_u32 s%d, s%d, 8192" % (sFL, sFL))
    a("s_branch %s" % c.looplab)
    a.label(fin)
    srd(a, sOUT, 42, ACT)
    a("v_and_b32 v5, 8, v%d" % vLane)
    a("v_cmp_eq_u32 vcc, 0, v5")
    a("v_lshrrev_b32 v6, 2, v2")
    a("v_lshlrev_b32 v6, 6, v6")
    a("v_lshl_add_u32 v6, v5, 2, v6")
    a("v_and_b32 v7, 16, v%d" % vLane)
    a("v_add_u32 v6, v6, v7")
    a("v_mul_u32_u24 v7, 1152, v1")
    a("v_add_u32 v6, v6, v7")
    a("s_mul_i32 s28, s25, %d" % (8 * 1152))
    for q in range(3):
        x = X1 + 4 * q
        for k in range(4):
            a("v_mov_b32_dpp v%d, v%d row_ror:8 row_mask:0xf bank_mask:0xf" % (40 + k, x + k))
        o = 48 + 4 * q
        a("v_cndmask_b32 v%d, v42, v%d, vcc" % (o, x))
        a("v_cndmask_b32 v%d, v43, v%d, vcc" % (o + 1, x + 1))
        a("v_cndmask_b32 v%d, v%d, v40, vcc" % (o + 2, x + 2))
        a("v_cndmask_b32 v%d, v%d, v41, vcc" % (o + 3, x + 3))
        a("buffer_store_dwordx4 %s, v6, s[16:19], s28 offen offset:%d" % (vr(o, 4), 128 * q))

def gen_mega(a, name, opt=None):
    c = Ctx()
    c.a, c.opt = a, (opt or {})
    c.stamp = c.opt.get("stamp", False)
    c.maxpoll = c.opt.get("maxpoll", 200000)
    c.sigwave = c.opt.get("sigwave", 0)
    c.side = []
    c.n = 0
    def lab(p):
        c.n += 1
        return "m_%s_%d" % (p, c.n)
    c.lab = lab
    c.endlab, c.looplab = "m_end", "m_layer"
    kernel_begin(a, name)
    a("s_cmp_ge_u32 s2, 256")
    a("s_cbranch_scc1 m_exit")
    a("s_load_dwordx4 s[36:39], s[0:1], 32")
    a("s_load_dwordx4 s[40:43], s[0:1], 48")
    a("s_load_dwordx2 s[24:25], s[0:1], 72")
    a("v_lshrrev_b32 v1, 6, v0")
    a("v_and_b32 v%d, 63, v0" % vLane)
    a("v_readfirstlane_b32 s%d, v1" % sW)
    xmap(a, c.opt.get("xmap", 4), sJ, sI, 26)
    a("v_lshlrev_b32 v%d, 4, v%d" % (vL16, vLane))
    a("v_add_u32 v%d, 18432, v%d" % (vL16b, vL16))
    a("s_mov_b32 s%d, 0" % sL)
    a("s_lshl_b32 s%d, s%d, 7" % (sFL, sI))
    a("s_add_u32 s%d, s%d, 0x%x" % (sFL, sFL, WS_FL))
    a("s_mov_b32 s%d, 0" % sSTI)
    a("s_waitcnt lgkmcnt(0)")
    srd(a, sWS, 24, WS_END + (0x40000 if c.stamp else 0))
    stamp(c)
    prefetch_A(c)
    a.label(c.looplab)
    phase_A(c)
    phase_B(c, None)
    phase_C(c)
    stamp(c)
    phase_D(c)
    a.label(c.endlab)
    if c.stamp:
        a("s_waitcnt vmcnt(0)")
        stamp(c)
        a("s_lshl_b32 s24, s2, 2")
        a("s_add_u32 s24, s24, s%d" % sW)
        a("s_lshl_b32 s24, s24, 8")
        a("s_add_u32 s24, s24, 0x%x" % WS_END)
        a("v_lshlrev_b32 v0, 2, v%d" % vLane)
        a("buffer_store_dword v%d, v0, s[4:7], s24 offen" % vST)
    if c.opt.get("dbg"):
        a("s_cmp_lg_u32 s2, %d" % c.opt.get("dbg_wg", 37))
        a("s_cbranch_scc1 m_exit")
        a("s_cmp_lg_u32 s%d, 0" % sW)
        a("s_cbranch_scc1 m_exit")
        a("s_load_dwordx2 s[24:25], s[0:1], 64")
        a("s_waitcnt lgkmcnt(0)")
        a("s_sub_u32 s24, s24, 512")
        a("s_subb_u32 s25, s25, 0")
        srd(a, 8, 24, 64)
        sel = [0, 1, 4, 5, 7, 8, 9, 10, 11, 12, 13, 20, 22, 23, 24]
        for k, x in enumerate(sel):
            a("v_readlane_b32 s26, v%d, %d" % (vST, x))
            a("s_nop 3")
            a("v_mov_b32 v1, s26")
            a("v_mov_b32 v0, %d" % (4 * k + 4))
            a("buffer_store_dword v1, v0, s[8:11], 0 offen")
            a("s_nop 1")
    a.label("m_exit")
    a("s_endpgm")
    for s_ in c.side:
        (a.label(s_[:-1]) if s_.endswith(":") else a(s_))
    return kernel_desc(name, 512, 256)
```

```python
from mcommon import *
WS_XN, WS_XR, WS_MEAN = L_XN, L_XR, L_MEAN

def unpack8(a, src, dst):
    for k in range(4):
        a("v_lshlrev_b32 v%d, 16, v%d" % (dst + 2 * k, src + k))
        a("v_and_b32 v%d, 0xffff0000, v%d" % (dst + 2 * k + 1, src + k))

def ln_tail(a, XB, XF, vOff, sWS, sBase, sRow, vTid, L, st_flags=""):
    unpack8(a, XB, XF)
    a("s_add_u32 s30, s%d, 0x%x" % (sBase, WS_XR))
    a("buffer_store_dwordx4 %s, v%d, s[%d:%d], s30 offen %s" % (vr(XB, 4), vOff, sWS, sWS + 3, st_flags))
    a("v_add_f32 v40, v%d, v%d" % (XF, XF + 1))
    a("v_mul_f32 v41, v%d, v%d" % (XF, XF))
    a("v_fmac_f32 v41, v%d, v%d" % (XF + 1, XF + 1))
    for k in range(2, 8):
        a("v_add_f32 v40, v40, v%d" % (XF + k))
        a("v_fmac_f32 v41, v%d, v%d" % (XF + k, XF + k))
    xl_sum(a, [40, 41], [42, 43], [8, 16, 32])
    a("v_and_b32 v44, 7, v%d" % vTid)
    a("v_mul_u32_u24 v44, 80, v44")
    a("v_lshrrev_b32 v45, 6, v%d" % vTid)
    a("v_lshl_add_u32 v45, v45, 3, v44")
    a("ds_write_b64 v45, v[40:41]")
    a("s_waitcnt lgkmcnt(0)")
    a("s_barrier")
    for q in range(4):
        a("ds_read_b128 %s, v44 offset:%d" % (vr(46 + 4 * q, 4), 16 * q))
    a("ds_read_b64 v[40:41], v44 offset:64")
    a("s_waitcnt lgkmcnt(0)")
    for q in range(8):
        a("v_add_f32 v40, v40, v%d" % (46 + 2 * q))
        a("v_add_f32 v41, v41, v%d" % (47 + 2 * q))
    a("s_mov_b32 s31, 0x%x" % f2u(1.0 / 576))
    a("v_mul_f32 v40, s31, v40")
    a("v_mul_f32 v42, v40, v40")
    a("v_fma_f32 v41, v41, s31, -v42")
    a("v_max_f32 v41, 0, v41")
    a("v_add_f32 v41, 0x%x, v41" % f2u(1e-5))
    a("v_rsq_f32 v41, v41")
    for k in range(8):
        a("v_sub_f32 v%d, v%d, v40" % (XF + k, XF + k))
    for k in range(8):
        a("v_mul_f32 v%d, v%d, v41" % (XF + k, XF + k))
    for k in range(4):
        a("v_cvt_pk_bf16_f32 v%d, v%d, v%d" % (46 + k, XF + 2 * k, XF + 2 * k + 1))
    a("s_add_u32 s30, s%d, 0x%x" % (sBase, WS_XN))
    a("buffer_store_dwordx4 v[46:49], v%d, s[%d:%d], s30 offen %s" % (vOff, sWS, sWS + 3, st_flags))
    a("v_lshlrev_b32 v44, 2, v%d" % vTid)
    a("v_cmp_gt_u32 vcc, 8, v%d" % vTid)
    a("s_lshl_b32 s30, s%d, 2" % sRow)
    a("s_add_u32 s30, s30, 0x%x" % WS_MEAN)
    a("s_and_saveexec_b64 s[32:33], vcc")
    a("s_cbranch_execz %s_nomean" % L)
    a("buffer_store_dword v40, v44, s[%d:%d], s30 offen %s" % (sWS, sWS + 3, st_flags))
    a.label("%s_nomean" % L)

import struct
def f2u(x): return struct.unpack("<I", struct.pack("<f", x))[0]

def gen_k0(a, name, opt=None):
    opt = opt or {}
    kernel_begin(a, name)
    L = name
    sWS, sIN = 4, 8
    a("s_cmp_ge_u32 s2, 616")
    a("s_cbranch_scc1 %s_end" % L)
    a("s_load_dwordx2 s[12:13], s[0:1], 72")
    a("s_load_dwordx4 s[24:27], s[0:1], 0")
    a("s_load_dwordx2 s[28:29], s[0:1], 16")
    if opt.get("dbg"):
        a("s_cmp_lg_u32 s2, 0")
        a("s_cbranch_scc1 %s_nd" % L)
        a("s_load_dwordx2 s[34:35], s[0:1], 72")
        a("s_memrealtime s[36:37]")
        a("s_waitcnt lgkmcnt(0)")
        srd(a, 40, 34, WS_END)
        a("v_mov_b32 v1, s36")
        a("v_mov_b32 v2, 0x%x" % (WS_WBAR + 4000))
        a("buffer_store_dword v1, v2, s[40:43], 0 offen")
        a("s_nop 1")
        a.label("%s_nd" % L)
    a("v_lshrrev_b32 v1, 6, v0")
    a("v_and_b32 v2, 63, v0")
    a("v_readfirstlane_b32 s23, v1")
    a("s_cmp_ge_u32 s2, 256")
    a("s_cbranch_scc1 %s_pack" % L)
    a("v_and_b32 v1, 7, v0")
    a("v_lshrrev_b32 v2, 3, v0")
    a("v_lshlrev_b32 v3, 4, v1")
    a("v_lshl_add_u32 v3, v2, 8, v3")
    a("s_lshr_b32 s16, s2, 1")
    a("s_mul_i32 s16, s16, 18432")
    a("s_and_b32 s17, s2, 1")
    a("s_lshl_b32 s17, s17, 7")
    a("s_add_u32 s16, s16, s17")
    a("s_lshl_b32 s18, s2, 3")
    a("v_lshrrev_b32 v5, 2, v2")
    a("v_lshlrev_b32 v5, 6, v5")
    a("v_and_b32 v6, 3, v2")
    a("v_lshl_add_u32 v5, v6, 3, v5")
    a("v_mul_u32_u24 v6, 1152, v1")
    a("v_add_u32 v5, v5, v6")
    a("s_mul_i32 s22, s18, 1152")
    a("s_waitcnt lgkmcnt(0)")
    srd(a, sWS, 12, WS_END)
    srd(a, sIN, 24, ACT)
    a("buffer_load_dwordx2 v[8:9], v5, s[8:11], s22 offen")
    a("buffer_load_dwordx2 v[10:11], v5, s[8:11], s22 offen offset:32")
    a("s_waitcnt vmcnt(0)")
    ln_tail(a, 8, 32, 3, sWS, 16, 18, 0, L, opt.get("st_flags", ""))
    a("s_endpgm")
    a.label("%s_pack" % L)
    a("v_and_b32 v3, 15, v2")
    a("v_lshrrev_b32 v4, 4, v2")
    a("v_lshlrev_b32 v5, 4, v2")
    a("s_sub_u32 s16, s2, 256")
    a("s_mul_i32 s16, s16, 9")
    a("s_add_u32 s16, s16, s23")
    a("s_waitcnt lgkmcnt(0)")
    srd(a, sWS, 12, WS_END)
    a("s_cmp_ge_u32 s2, 480")
    a("s_cbranch_scc1 %s_wo" % L)
    srd(a, sIN, 26, 576 * 1728 * 2)
    a("s_mul_i32 s17, s16, 9363")
    a("s_lshr_b32 s17, s17, 16")
    a("s_mul_i32 s18, s17, 7")
    a("s_sub_u32 s18, s16, s18")
    a("s_mul_i32 s19, s17, 3641")
    a("s_lshr_b32 s19, s19, 16")
    a("s_mul_i32 s20, s19, 18")
    a("s_sub_u32 s20, s17, s20")
    a("s_lshr_b32 s21, s18, 1")
    a("s_add_u32 s21, s21, 1")
    a("s_cmp_eq_u32 s21, 3")
    a("s_cselect_b32 s21, 0, s21")
    a("s_mul_i32 s21, s21, 576")
    a("s_and_b32 s22, s18, 1")
    a("s_mul_i32 s22, s22, 18")
    a("s_add_u32 s21, s21, s22")
    a("v_add_u32 v6, s21, v3")
    a("v_bfe_u32 v7, v3, 1, 1")
    a("v_bfe_u32 v8, v3, 2, 1")
    a("v_mul_u32_u24 v9, 576, v7")
    a("v_mul_u32_u24 v8, 18, v8")
    a("v_add3_u32 v9, v9, v8, 576" if False else "v_add_u32 v9, v9, v8")
    a("v_add_u32 v9, 576, v9")
    a("v_mul_u32_u24 v8, 18, v7")
    a("v_cmp_gt_u32 vcc, 8, v3")
    a("s_nop 1")
    a("v_cndmask_b32 v9, v8, v9, vcc")
    a("v_and_b32 v8, 1, v3")
    a("v_add3_u32 v9, v9, v8, 16")
    a("v_mov_b32 v8, 0x1000000")
    a("v_cmp_gt_u32 vcc, 12, v3")
    a("s_nop 1")
    a("v_cndmask_b32 v9, v8, v9, vcc")
    a("s_cmp_eq_u32 s18, 6")
    a("s_cselect_b64 vcc, -1, 0")
    a("v_cndmask_b32 v6, v6, v9, vcc")
    a("v_lshlrev_b32 v6, 1, v6")
    a("s_movk_i32 s21, %d" % (4 * 3456))
    a("v_mad_u32_u24 v6, v4, s21, v6")
    a("s_mul_i32 s21, s20, %d" % (32 * 3456))
    a("s_mul_i32 s22, s19, 72")
    a("s_add_u32 s21, s21, s22")
    for e in range(8):
        row = e if e < 4 else 16 + e - 4
        a("s_add_u32 s22, s21, %d" % (row * 3456))
        a("buffer_load_ushort v%d, v6, s[8:11], s22 offen" % (20 + e))
    a("s_lshl_b32 s16, s16, 10")
    a("s_add_u32 s16, s16, 0x%x" % WS_WQ)
    a("s_waitcnt vmcnt(0)")
    for p in range(4):
        a("v_lshl_or_b32 v%d, v%d, 16, v%d" % (12 + p, 21 + 2 * p, 20 + 2 * p))
    a("buffer_store_dwordx4 v[12:15], v5, s[4:7], s16 offen")
    a("s_endpgm")
    a.label("%s_wo" % L)
    srd(a, sIN, 28, 576 * 576 * 2)
    a("s_cmp_ge_u32 s2, 552")
    a("s_cbranch_scc1 %s_wbar" % L)
    a("s_sub_u32 s16, s16, 2016")
    a("s_mul_i32 s17, s16, 10923")
    a("s_lshr_b32 s17, s17, 16")
    a("s_mul_i32 s18, s17, 6")
    a("s_sub_u32 s18, s16, s18")
    a("s_mul_i32 s19, s17, 3641")
    a("s_lshr_b32 s19, s19, 16")
    a("s_mul_i32 s20, s19, 18")
    a("s_sub_u32 s20, s17, s20")
    a("s_lshl_b32 s20, s20, 2")
    a("v_add_u32 v6, s20, v4")
    a("v_mul_u32_u24 v7, 7282, v6")
    a("v_lshrrev_b32 v7, 16, v7")
    a("v_mul_u32_u24 v8, 9, v7")
    a("v_sub_u32 v8, v6, v8")
    a("v_lshrrev_b32 v9, 1, v8")
    a("v_mul_u32_u24 v9, 18, v9")
    a("v_and_b32 v10, 1, v8")
    a("v_lshl_add_u32 v9, v10, 3, v9")
    a("v_cmp_eq_u32 vcc, 8, v8")
    a("v_mov_b32 v10, 16")
    a("v_mov_b32 v11, %d" % (2 * 1152))
    a("v_mov_b32 v16, %d" % (18 * 1152))
    a("v_cndmask_b32 v9, v9, v10, vcc")
    a("v_cndmask_b32 v11, v11, v16, vcc")
    a("v_mad_u32_u24 v9, v7, 64, v9")
    a("v_lshl_add_u32 v9, v7, 3, v9")
    a("v_mul_u32_u24 v9, 1152, v9")
    a("v_lshl_add_u32 v9, v3, 1, v9")
    a("s_mul_i32 s21, s19, 6")
    a("s_add_u32 s21, s21, s18")
    a("s_lshl_b32 s21, s21, 5")
    for p in range(4):
        a("buffer_load_ushort v%d, v9, s[8:11], s21 offen" % (20 + 2 * p))
        a("buffer_load_ushort v%d, v9, s[8:11], s21 offen offset:1152" % (21 + 2 * p))
        if p < 3: a("v_add_u32 v9, v9, v11")
    a("s_lshl_b32 s16, s16, 10")
    a("s_add_u32 s16, s16, 0x%x" % WS_WO)
    a("s_waitcnt vmcnt(0)")
    for p in range(4):
        a("v_lshl_or_b32 v%d, v%d, 16, v%d" % (12 + p, 21 + 2 * p, 20 + 2 * p))
    a("buffer_store_dwordx4 v[12:15], v5, s[4:7], s16 offen")
    a("s_endpgm")
    a.label("%s_wbar" % L)
    a("s_sub_u32 s16, s16, 2664")
    a("s_sub_u32 s17, s2, 552")
    a("s_lshl_b32 s17, s17, 8")
    a("s_add_u32 s17, s17, 0x%x" % WS_FL)
    a("v_lshlrev_b32 v6, 2, v2")
    a("v_mov_b32 v7, 0")
    a("buffer_store_dword v7, v6, s[4:7], s17 offen")
    a("s_mul_i32 s21, s16, 1152")
    a("v_lshlrev_b32 v6, 5, v2")
    a("v_mov_b32 v7, 0x1000000")
    a("v_cmp_gt_u32 vcc, 36, v2")
    a("s_nop 1")
    a("v_cndmask_b32 v6, v7, v6, vcc")
    a("buffer_load_dwordx4 v[8:11], v6, s[8:11], s21 offen")
    a("buffer_load_dwordx4 v[12:15], v6, s[8:11], s21 offen offset:16")
    a("s_waitcnt vmcnt(0)")
    unpack8(a, 8, 16)
    unpack8(a, 12, 24)
    for k in range(1, 16):
        a("v_add_f32 v16, v16, v%d" % (16 + k))
    xl_sum(a, [16], [17], [8, 4, 2, 1, 16, 32])
    a("v_mul_f32 v16, 0x%x, v16" % f2u(1.0 / 576))
    a("s_lshl_b32 s16, s16, 2")
    a("s_add_u32 s16, s16, 0x%x" % WS_WBAR)
    a("v_mov_b32 v6, 0")
    a("s_mov_b64 exec, 1")
    a("buffer_store_dword v16, v6, s[4:7], s16 offen")
    a.label("%s_end" % L)
    a("s_endpgm")
    return kernel_desc(name, 64, 64)
```

```python
from mcommon import *
import math
SLOT = 36 * 1024

class Ctx: pass

def stamp(c):
    if not c.stamp: return
    a = c.a
    a("s_memrealtime s[62:63]")
    a("s_waitcnt lgkmcnt(0)")
    a("s_lshl_b64 exec, 1, s%d" % sSTI)
    a("v_mov_b32 v%d, s62" % vST)
    a("s_mov_b64 exec, -1")
    a("s_add_u32 s%d, s%d, 1" % (sSTI, sSTI))

def signal(c, phase, nvm):
    a = c.a
    lab = c.lab("sig")
    a("s_waitcnt vmcnt(%d)" % nvm)
    a("s_barrier")
    a("s_cmp_lg_u32 s%d, %d" % (sW, c.sigwave))
    a("s_cbranch_scc1 %s" % lab)
    a("s_lshl_b32 s62, s%d, 2" % sJ)
    a("s_add_u32 s62, s62, s%d" % sFL)
    a("v_mov_b32 v250, 1")
    a("v_mov_b32 v251, %d" % (phase * 2048))
    a("s_mov_b64 exec, 1")
    a("buffer_store_dword v250, v251, s[4:7], s62 offen sc1")
    a("s_mov_b64 exec, -1")
    a.label(lab)

def phase_off(phase): return phase * 2048

def wait_flags(c, phase, n, halo=False, prev_layer=False):
    a = c.a
    skip, loop, done = c.lab("wf_skip"), c.lab("wf_loop"), c.lab("wf_done")
    a("s_cmp_lg_u32 s%d, 3" % sW)
    a("s_cbranch_scc1 %s" % skip)
    a("v_lshlrev_b32 v250, 2, v%d" % vLane)
    off = phase_off(phase) - (8192 if prev_layer else 0)
    mask = (1 << n) - 1
    a("s_add_u32 s62, s%d, 0x%x" % (sFL, off & 0xffffffff))
    if halo:
        a("s_sub_u32 s62, s62, 72")
        a("s_cmp_eq_u32 s%d, 0" % sI)
        a("s_cselect_b32 s64, 0, 3")
        a("s_or_b32 s64, s64, 0x%x" % ((mask << 18) & 0xffffffff))
        a("s_mov_b32 s65, 0x%x" % (mask << 18 >> 32))
    else:
        a("s_mov_b32 s64, 0x%x" % mask)
        a("s_mov_b32 s65, 0")
    a("s_mov_b64 exec, s[64:65]")
    a("s_mov_b32 s63, 0")
    a.label(loop)
    a("buffer_load_dword v251, v250, s[4:7], s62 offen sc1")
    a("s_add_u32 s63, s63, 1")
    a("s_waitcnt vmcnt(0)")
    a("v_cmp_eq_u32 vcc, 1, v251")
    a("s_cmp_eq_u64 vcc, s[64:65]")
    a("s_cbranch_scc1 %s" % done)
    a("s_cmp_lt_u32 s63, 0x%x" % c.maxpoll)
    a("s_cbranch_scc1 %s" % loop)
    a.label(done)
    a("s_mov_b64 exec, -1")
    a.label(skip)
    a("s_barrier")

def sig_store(c, phase):
    pass

def linear_dma(c, src_sreg, ngroups, lab):
    a = c.a
    a("s_mov_b32 s63, 0")
    a.label(lab)
    for q in range(4):
        a("buffer_load_dwordx4 v%d, s[4:7], s%d offen offset:%d lds" % (vL16, src_sreg, q * 1024))
    a("s_add_u32 m0, m0, 4096")
    a("s_add_u32 s%d, s%d, 4096" % (src_sreg, src_sreg))
    a("s_add_u32 s63, s63, 1")
    a("s_cmp_lt_u32 s63, %d" % ngroups)
    a("s_cbranch_scc1 %s" % lab)

def prefetch_A(c):
    a = c.a
    a("s_lshl_b32 s24, s%d, 15" % sW)
    a("s_mul_i32 s25, s%d, %d" % (sJ, 126 * 1024))
    a("s_add_u32 s25, s25, s24")
    a("s_add_u32 s25, s25, 0x%x" % WS_WQ)
    a("s_mov_b32 m0, s24")
    linear_dma(c, 25, 8, c.lab("pfA"))

def phase_A(c):
    a, opt = c.a, c.opt
    LD, ST = "sc1", "sc1"
    L = c.lab("A")
    B0, AF, NB = 0, 144, 12
    ACC, WB = 0, 196
    vLv = [218, 219, 220]; vHv = [221, 222, 223]
    P = 336
    HALO = 126 * 1024
    a("s_lshl_b32 s24, s%d, 10" % sW)
    a("s_lshl_b32 s27, s%d, 3" % sI)
    a("s_max_u32 s28, s27, 1")
    a("s_sub_u32 s28, s28, 1")
    a("s_mul_i32 s28, s28, 18432")
    a("s_add_u32 s28, s28, s%d" % sL)
    a("s_mul_i32 s29, s%d, 5120" % sW)
    a("s_add_u32 s28, s28, s29")
    a("s_add_u32 s29, s29, %d" % HALO)
    a("s_lshl_b32 s30, s%d, 1" % sW)
    a("s_add_u32 s30, s30, s27")
    a("s_mul_i32 s31, s30, 18432")
    a("s_add_u32 s31, s31, s%d" % sL)
    a("s_mov_b32 s32, s31")
    a("v_lshrrev_b32 v2, 5, v%d" % vLane)
    a("v_mul_u32_u24 v233, 72, v2")
    a("s_mul_i32 s33, s%d, 144" % sJ)
    a("s_add_u32 s33, s33, 0x%x" % WS_WBAR)
    LVL = 49152
    for lv in range(3):
        a("v_add_u32 v%d, 0x%x, v%d" % (vLv[lv], lv * LVL, vL16))
        a("v_add_u32 v%d, s24, v%d" % (vHv[lv], vLv[lv]))
    nos = c.lab("A_nosync")
    a("s_cmp_eq_u32 s%d, 0" % sL)
    a("s_cbranch_scc1 %s" % nos)
    wait_flags(c, 3, 16, halo=True, prev_layer=True)
    a.label(nos)
    stamp(c)
    log = []
    def em(lst, tag):
        for s_ in lst:
            a(s_)
            if s_.startswith("buffer_"): log.append(tag)
    def need(tag):
        idx = max(k for k, t_ in enumerate(log) if t_ == tag)
        return min(63, len(log) - 1 - idx)
    def xl(t):
        o = []
        for mb in range(2):
            g = []
            if mb == 0 and t % 4 == 0 and t: g.append("s_add_u32 s32, s32, 4096")
            g.append("buffer_load_dwordx4 %s, v%d, s[4:7], s32 offen offset:%d %s" % (ar(B0 + 4 * (18 * mb + t), 4), (vL16, vL16b)[mb], (t % 4) * 1024, LD))
            o.append(g)
        return o
    PRE = opt.get("A_pre", 6)
    for t in range(PRE):
        for g in xl(t): em(g, t)
    a("s_waitcnt vmcnt(%d)" % len(log))
    a("s_barrier")
    pend = [(g, t) for t in range(PRE, 18) for g in xl(t)]
    pend += [(["s_mov_b32 m0, s29"], "h")]
    pend += [(["buffer_load_dwordx4 v%d, s[4:7], s28 offen offset:%d %s lds" % (vL16, q * 1024, LD)], "h") for q in range(4)]
    pend += [(["s_add_u32 m0, m0, 4096", "s_add_u32 s28, s28, 4096"], "h"), (["buffer_load_dwordx4 v%d, s[4:7], s28 offen %s lds" % (vL16, LD)], "h")]
    pend += [(["buffer_load_dwordx4 %s, v233, s[4:7], s33 offen offset:%d" % (vr(WB + 4 * q, 4), 16 * q)], "wb") for q in range(4)]
    pend += [(["buffer_load_dwordx2 %s, v233, s[4:7], s33 offen offset:64" % vr(WB + 16, 2)], "wb")]
    stream = [("m", f) for f in range(126)] + [(k, t) for t in range(18) for k in ("hb", "a6", "aw")]
    def rd(n):
        k, x = stream[n]
        vs = vLv
        if k == "m": o = x * 1024
        elif k == "hb": o = HALO + x * 1024
        elif k == "a6": o = (x * 7 + 6) * 1024
        else: o = x * 7168; vs = vHv
        lv = min(o // LVL, 2)
        return "ds_read_b128 %s, v%d offset:%d" % (ar(AF + 4 * (n % NB), 4), vs[lv], o - lv * LVL)
    def fb(n): return ar(AF + 4 * (n % NB), 4)
    DIST = NB - 4
    nxt = 0
    for _ in range(DIST):
        a(rd(nxt)); nxt += 1
    def mf(acc, A, B, first):
        return "v_mfma_f32_16x16x32_bf16 %s, %s, %s, %s" % (vr(acc, 4), A, B, "0" if first else vr(acc, 4))
    for f in range(126):
        t, k = f // 7, f % 7
        if k == 0: a("s_waitcnt vmcnt(%d)" % need(t))
        if nxt == 126:
            a("s_waitcnt vmcnt(%d)" % need("h"))
            a("s_barrier")
        if f % 2 == 0: a("s_waitcnt lgkmcnt(%d)" % (nxt - 1 - (f + 1)))
        a(mf(ACC + 4 * k, fb(f), ar(B0 + 4 * t, 4), t == 0))
        a(rd(nxt)); nxt += 1
        a(mf(ACC + 4 * (7 + k), fb(f), ar(B0 + 4 * (18 + t), 4), t == 0))
        if pend and f % 2 == 0:
            g, tag = pend.pop(0); em(g, tag)
    assert not pend
    for t in range(18):
        n = 126 + 3 * t
        a("s_waitcnt lgkmcnt(%d)" % (nxt - 1 - (n + 2)))
        a(mf(ACC + 60, fb(n + 1), fb(n), t == 0))
        for _ in range(2):
            if nxt < len(stream): a(rd(nxt)); nxt += 1
        a(mf(ACC + 56, fb(n + 2), fb(n), t == 0))
        if nxt < len(stream): a(rd(nxt)); nxt += 1
    stamp(c)
    a("s_cmp_ge_u32 s%d, 6" % sJ)
    a("s_cselect_b32 s44, 6, 0")
    a("s_cselect_b32 s45, 4, 0")
    a("s_sub_u32 s44, s%d, s44" % sJ)
    a("s_add_u32 s45, s45, s27")
    a("s_add_u32 s45, s45, s%d" % sW)
    a("s_mul_i32 s46, s44, %d" % (108 * 1024))
    a("s_mul_i32 s47, s%d, %d" % (sW, 27 * 1024))
    a("s_add_u32 s46, s46, s47")
    a("s_add_u32 s46, s46, 0x%x" % WS_WO)
    a("s_cmp_ge_u32 s%d, 12" % sJ)
    a("s_cselect_b32 s46, 0x7f000000, s46")
    a("s_mov_b32 m0, s47")
    pf = []
    for g in range(7):
        for q in range(4):
            if g == 6 and q == 3: continue
            x = ["buffer_load_dwordx4 v%d, s[4:7], s46 offen offset:%d lds" % (vL16, q * 1024)]
            if q == 3: x += ["s_add_u32 m0, m0, 4096", "s_add_u32 s46, s46, 4096"]
            pf.append(x)
    cnt = [0]
    PFS = opt.get("A_pfs", 5)
    def v(s_):
        a(s_)
        cnt[0] += 1
        if pf and cnt[0] % PFS == 0:
            for x in pf.pop(0): a(x)
    a("v_and_b32 v64, 15, v%d" % vLane)
    a("v_lshrrev_b32 v65, 4, v%d" % vLane)
    a("v_mul_u32_u24 v64, %d, v64" % P)
    a("v_add_u32 v64, %d, v64" % LDS_STG)
    a("v_lshl_add_u32 v66, v65, 3, v64")
    a("v_lshl_add_u32 v67, v65, 4, v64")
    a("s_mul_i32 s34, s%d, %d" % (sW, 32 * P))
    a("s_add_u32 s34, s34, %d" % (16 * P))
    a("v_add_u32 v68, s34, v66")
    a("v_add_u32 v69, s34, v67")
    a("s_barrier")
    for mb in range(2):
        for nb, off in ((2, 128), (3, 192), (6, 256)):
            r = ACC + 4 * (7 * mb + nb)
            a("ds_write_b128 v69, %s offset:%d" % (vr(r, 4), off + mb * 16 * P))
        for nb, off in ((0, 0), (1, 32), (4, 64), (5, 96)):
            r = ACC + 4 * (7 * mb + nb)
            a("v_cvt_pk_bf16_f32 v%d, v%d, v%d" % (r, r, r + 1))
            a("v_cvt_pk_bf16_f32 v%d, v%d, v%d" % (r + 1, r + 2, r + 3))
            a("ds_write_b64 v68, %s offset:%d" % (vr(r, 2), off + mb * 16 * P))
    a("ds_write_b128 v67, v[60:63] offset:256")
    a("s_cmp_ge_u32 s%d, 2" % sW)
    a("s_cbranch_scc1 %s_hv" % L)
    a("s_lshl_b32 s35, s%d, 5" % sW)
    a("v_add_u32 v66, s35, v66")
    a("v_cvt_pk_bf16_f32 v56, v56, v57")
    a("v_cvt_pk_bf16_f32 v57, v58, v59")
    a("ds_write_b64 v66, v[56:57]")
    a("s_branch %s_hd" % L)
    a.label("%s_hv" % L)
    a("s_lshl_b32 s35, s%d, 6" % sW)
    a("v_add_u32 v67, s35, v67")
    a("ds_write_b128 v67, v[56:59]")
    a.label("%s_hd" % L)
    vK, vV, vTt, vQt, vGR = 225, 226, 227, 228, 229
    v("v_and_b32 v64, 31, v%d" % vLane)
    v("v_lshrrev_b32 v65, 5, v%d" % vLane)
    v("v_mul_u32_u24 v66, %d, v64" % P)
    v("s_add_u32 s34, s34, %d" % (LDS_STG - 14 * P))
    v("v_add_u32 v66, s34, v66")
    v("v_lshl_add_u32 v%d, v65, 5, v66" % vK)
    v("v_lshl_add_u32 v%d, v65, 6, v66" % vV)
    v("v_lshl_add_u32 v%d, v65, 4, v66" % vTt)
    v("v_lshl_add_u32 v%d, v65, 3, v66" % vQt)
    v("s_lshl_b32 s35, s30, 4")
    v("v_add_u32 v%d, s35, v64" % vGR)
    vO, vO2, vOB = 230, 231, 232
    v("v_lshrrev_b32 v66, 4, v64")
    v("v_mul_u32_u24 v66, 18432, v66")
    v("v_and_b32 v67, 15, v64")
    v("v_lshl_add_u32 v66, v67, 4, v66")
    v("v_lshl_add_u32 v%d, v65, 9, v66" % vO)
    v("v_lshl_add_u32 v%d, v65, 2, v66" % vO2)
    v("v_lshlrev_b32 v%d, 6, v%d" % (vOB, vGR))
    v("s_lshr_b32 s48, s%d, 1" % sJ)
    v("s_mul_i32 s48, s48, 2304")
    v("s_add_u32 s48, s48, s31")
    v("s_add_u32 s48, s48, 0x%x" % L_O)
    v("s_and_b32 s49, s%d, 1" % sJ)
    v("s_lshl_b32 s50, s49, 3")
    v("s_add_u32 s50, s50, s48")
    v("s_lshl_b32 s49, s49, 10")
    v("s_add_u32 s48, s48, s49")
    v("s_lshl_b32 s51, s%d, 2" % sJ)
    v("s_add_u32 s51, s51, s%d" % sL)
    v("s_add_u32 s51, s51, 0x%x" % L_OB)
    a("s_waitcnt lgkmcnt(0)")
    a("s_barrier")
    stamp(c)
    KR, TR, VA, Q, S_, O = 0, 64, 96, 160, 170, 178
    dl = []
    def ds(s_, tag):
        a(s_); dl.append(tag)
    def dwait(tag):
        idx = max(k for k, t_ in enumerate(dl) if t_ == tag)
        a("s_waitcnt lgkmcnt(%d)" % min(15, len(dl) - 1 - idx))
    ds("ds_read_b128 %s, v%d offset:%d" % (vr(Q, 4), vK, 14 * P + 64), "q")
    ds("ds_read_b128 %s, v%d offset:%d" % (vr(Q + 4, 4), vK, 14 * P + 80), "q")
    ds("ds_read_b64 %s, v%d offset:%d" % (vr(Q + 8, 2), vQt, 14 * P + 288), "q")
    def kread(j):
        o = (14 - 2 * j) * P
        ds("ds_read_b128 %s, v%d offset:%d" % (vr(KR + 8 * j, 4), vK, o), "k%d" % j)
        ds("ds_read_b128 %s, v%d offset:%d" % (vr(KR + 8 * j + 4, 4), vK, o + 16), "k%d" % j)
        ds("ds_read_b128 %s, v%d offset:%d" % (vr(TR + 4 * j, 4), vTt, o + 256), "k%d" % j)
    def vreg(j): return (VA + 16 * j) if j < 4 else (KR + 16 * (j - 4))
    def vread(j):
        o = (14 - 2 * j) * P + 128
        for q in range(4):
            ds("ds_read_b128 %s, v%d offset:%d" % (vr(vreg(j) + 4 * q, 4), vV, o + 16 * q), "v%d" % j)
    for j in range(4): kread(j)
    a("v_mov_b32 v%d, 0xff7fffff" % (O + 1))
    for j in range(8):
        dwait("k%d" % j)
        if j < 4: kread(j + 4)
        else: vread(j - 4)
        v("v_mul_f32 v%d, v%d, v%d" % (S_ + j, Q + 8, TR + 4 * j))
        v("v_fmac_f32 v%d, v%d, v%d" % (S_ + j, Q + 9, TR + 4 * j + 1))
        for p in range(8):
            v("v_dot2_f32_bf16 v%d, v%d, v%d, v%d" % (S_ + j, Q + p, KR + 8 * j + p, S_ + j))
        if j > 0:
            a("v_cmp_le_u32 vcc, %d, v%d" % (2 * j, vGR))
            a("s_nop 1")
            a("v_cndmask_b32 v%d, v%d, v%d, vcc" % (S_ + j, O + 1, S_ + j))
    for j in range(4, 8): vread(j)
    v("v_max3_f32 v%d, v%d, v%d, v%d" % (O, S_, S_ + 1, S_ + 2))
    v("v_max3_f32 v%d, v%d, v%d, v%d" % (O, O, S_ + 3, S_ + 4))
    v("v_max3_f32 v%d, v%d, v%d, v%d" % (O, O, S_ + 5, S_ + 6))
    v("v_max_f32 v%d, v%d, v%d" % (O, O, S_ + 7))
    a("s_mov_b32 s52, 0x%x" % f2u(18 ** -0.5 * math.log2(math.e)))
    for j in range(8): v("v_sub_f32 v%d, v%d, v%d" % (S_ + j, S_ + j, O))
    for j in range(8): v("v_mul_f32 v%d, s52, v%d" % (S_ + j, S_ + j))
    for j in range(8): v("v_exp_f32 v%d, v%d" % (S_ + j, S_ + j))
    SUM = Q
    v("v_add_f32 v%d, v%d, v%d" % (SUM, S_, S_ + 1))
    for j in range(2, 8): v("v_add_f32 v%d, v%d, v%d" % (SUM, SUM, S_ + j))
    a("v_rcp_f32 v%d, v%d" % (SUM, SUM))
    a("s_nop 0")
    for j in range(8): v("v_mul_f32 v%d, v%d, v%d" % (S_ + j, S_ + j, SUM))
    while pf:
        for x in pf.pop(0): a(x)
    for j in range(8):
        dwait("v%d" % j)
        pj = vr(S_ + (j & ~1), 2)
        sel = "op_sel:[0,%d,0] op_sel_hi:[1,%d,1]" % (j & 1, j & 1)
        for p in range(9):
            src = vr(vreg(j) + 2 * p, 2) if p < 8 else vr(TR + 4 * j + 2, 2)
            if j == 0:
                a("v_pk_mul_f32 %s, %s, %s op_sel:[0,0] op_sel_hi:[1,0]" % (vr(O + 2 * p, 2), src, pj))
            else:
                a("v_pk_fma_f32 %s, %s, %s, %s %s" % (vr(O + 2 * p, 2), src, pj, vr(O + 2 * p, 2), sel))
    for p in range(9):
        a("v_cvt_pk_bf16_f32 v%d, v%d, v%d" % (VA + p, O + 2 * p, O + 2 * p + 1))
    a("buffer_store_dwordx4 %s, v%d, s[4:7], s48 offen %s" % (vr(VA, 4), vO, ST))
    a("buffer_store_dwordx4 %s, v%d, s[4:7], s48 offen offset:256 %s" % (vr(VA + 4, 4), vO, ST))
    a("buffer_store_dword v%d, v%d, s[4:7], s50 offen offset:2048 %s" % (VA + 8, vO2, ST))
    a("s_waitcnt vmcnt(30)")
    a("v_mul_f32 v%d, v%d, v%d" % (Q, O, WB))
    for p in range(1, 18):
        a("v_fmac_f32 v%d, v%d, v%d" % (Q, O + p, WB + p))
    xl_sum(a, [Q], [Q + 1], [32])
    a("s_mov_b64 exec, 0xffffffff")
    a("buffer_store_dword v%d, v%d, s[4:7], s51 offen %s" % (Q, vOB, ST))
    a("s_mov_b64 exec, -1")
    stamp(c)

def phase_B(c, after_stores):
    a, opt = c.a, c.opt
    LD, ST = "sc1", "sc1"
    B0, AF, NB = 0, 72, 8
    ACC, XR = 32, 56
    idle, join = c.lab("B_idle"), c.lab("B_join")
    a("s_mul_i32 s24, s45, 18432")
    a("s_add_u32 s24, s24, s%d" % sL)
    a("s_add_u32 s25, s24, 0x%x" % L_O)
    a("s_mul_i32 s26, s44, 3072")
    a("s_add_u32 s24, s24, s26")
    a("v_and_b32 v4, 15, v%d" % vLane)
    a("v_lshrrev_b32 v5, 4, v%d" % vLane)
    a("v_lshlrev_b32 v6, 6, v4")
    a("v_lshl_add_u32 v6, v5, 4, v6")
    a("v_lshlrev_b32 v7, 2, v4")
    a("s_lshl_b32 s26, s45, 10")
    a("s_add_u32 s26, s26, s%d" % sL)
    a("s_add_u32 s26, s26, 0x%x" % L_OB)
    a("s_lshl_b32 s27, s45, 6")
    a("s_add_u32 s27, s27, s%d" % sL)
    a("s_add_u32 s27, s27, 0x%x" % L_MEAN)
    a("s_add_u32 s28, s24, 0x%x" % L_XR)
    for u in range(3):
        a("buffer_load_dwordx4 %s, v%d, s[4:7], s28 offen offset:%d %s" % (vr(XR + 4 * u, 4), vL16, u * 1024, LD))
    a("buffer_load_dword v12, v7, s[4:7], s27 offen %s" % LD)
    signal(c, 0, 4)
    a("s_cmp_ge_u32 s%d, 12" % sJ)
    a("s_cbranch_scc1 %s" % idle)
    a("v_add_u32 v13, 0xd800, v%d" % vL16)
    def rd(i):
        o = i * 1024
        v = vL16
        if o >= 0xd800: v, o = 13, o - 0xd800
        return "ds_read_b128 %s, v%d offset:%d" % (ar(AF + 4 * (i % NB), 4), v, o)
    for i in range(NB - 1): a(rd(i))
    wait_flags(c, 0, 16)
    stamp(c)
    for t in range(18):
        if t % 4 == 0 and t: a("s_add_u32 s25, s25, 4096")
        a("buffer_load_dwordx4 %s, v%d, s[4:7], s25 offen offset:%d %s" % (ar(B0 + 4 * t, 4), vL16, (t % 4) * 1024, LD))
    a("buffer_load_dwordx4 v[8:11], v6, s[4:7], s26 offen %s" % LD)
    for f in range(108):
        t, db = f // 6, f % 6
        if db == 0: a("s_waitcnt vmcnt(%d)" % (18 - t))
        if f % 2 == 0: a("s_waitcnt lgkmcnt(%d)" % max(0, min(NB - 3, 106 - f)))
        cc = "0" if t == 0 else vr(ACC + 4 * db, 4)
        a("v_mfma_f32_16x16x32_bf16 %s, %s, %s, %s" % (vr(ACC + 4 * db, 4), ar(AF + 4 * (f % NB), 4), ar(B0 + 4 * t, 4), cc))
        if f + NB - 1 < 108: a(rd(f + NB - 1))
    stamp(c)
    a("s_waitcnt vmcnt(0)")
    a("v_add_f32 v8, v8, v9")
    a("v_add_f32 v10, v10, v11")
    a("v_add_f32 v8, v8, v10")
    xl_sum(a, [8], [9], [16, 32])
    a("v_add_f32 v8, v8, v12")
    a("v_mov_b32 v9, 0")
    a("s_add_u32 s27, s24, 0x%x" % L_X1)
    a("s_add_u32 s28, s24, 0x%x" % L_XC)
    for u in range(3):
        for k in range(4):
            a("v_lshlrev_b32 v16, 16, v%d" % (XR + 4 * u + k))
            a("v_and_b32 v17, 0xffff0000, v%d" % (XR + 4 * u + k))
            a("v_add_f32 v16, v16, v%d" % (ACC + 8 * u + 2 * k))
            a("v_add_f32 v17, v17, v%d" % (ACC + 8 * u + 2 * k + 1))
            a("v_cvt_pk_bf16_f32 v%d, v16, v17" % (XR + 4 * u + k))
            a("v_lshlrev_b32 v16, 16, v%d" % (XR + 4 * u + k))
            a("v_and_b32 v17, 0xffff0000, v%d" % (XR + 4 * u + k))
            a("v_sub_f32 v16, v16, v8")
            a("v_sub_f32 v17, v17, v8")
            a("v_fmac_f32 v9, v16, v16")
            a("v_fmac_f32 v9, v17, v17")
            a("v_cvt_pk_bf16_f32 v%d, v16, v17" % (20 + 4 * u + k))
        a("buffer_store_dwordx4 %s, v%d, s[4:7], s28 offen offset:%d %s" % (vr(20 + 4 * u, 4), vL16, u * 1024, ST))
        a("buffer_store_dwordx4 %s, v%d, s[4:7], s27 offen offset:%d %s" % (vr(XR + 4 * u, 4), vL16, u * 1024, ST))
    xl_sum(a, [9], [10], [16, 32])
    a("v_lshlrev_b32 v6, 5, v4")
    a("s_lshl_b32 s25, s45, 9")
    a("s_lshl_b32 s26, s44, 2")
    a("s_add_u32 s25, s25, s26")
    a("s_add_u32 s25, s25, s%d" % sL)
    a("s_add_u32 s25, s25, 0x%x" % L_SSQ)
    a("s_mov_b64 exec, 0xffff")
    a("buffer_store_dword v9, v6, s[4:7], s25 offen %s" % ST)
    a("s_mov_b64 exec, -1")
    signal(c, 1, 0)
    a("s_branch %s" % join)
    a.label(idle)
    stamp(c); stamp(c)
    a.label(join)
    stamp(c)

def phase_C(c):
    a, opt = c.a, c.opt
    ST_FLAGS, LD_FLAGS = "sc1", "sc1"
    NB = opt.get("nb", 6)
    L = c.lab("C")
    T0, AG, AU, HB = 0, 32, 64, 96
    H0 = HB + 8
    vDX = [176, 177, 178, 179]
    vDW = [180, 181, 182, 183]
    vR = [[186 + 4 * lv + fb for fb in range(4)] for lv in range(3)]
    vN = [198, 199]
    NV = 200
    LVL = 49152
    X0, AF = 0, 144
    NA = AF + 4 * NB
    sWB = 24
    sRG, sRU = 25, 26
    sD0, sD1, sD2l, sD2h = 27, 28, 29, 30
    sCnt, sHI = 32, 33
    sSt, sStB = 34, 35
    sSlotN, sSlotD, sSlotC = 44, 45, 48
    sW0, sWd0 = 46, 47
    sT, sS, sX = 49, 50, 51

    a("s_mul_i32 s%d, s%d, 9216" % (sWB, sW))
    a("v_mov_b32 v2, v%d" % vLane)
    a("v_lshrrev_b32 v3, 3, v2")
    a("v_and_b32 v4, 7, v2")
    a("v_bfe_u32 v5, v2, 4, 2")
    a("v_lshlrev_b32 v5, 1, v5")
    a("v_xor_b32 v4, v4, v5")
    a("v_and_b32 v6, 3, v4")
    a("v_lshlrev_b32 v4, 4, v4")
    a("v_lshlrev_b32 v6, 4, v6")
    a("s_movk_i32 s%d, 9216" % sT)
    a("v_mad_u32_u24 v%d, v3, s%d, v4" % (vDX[0], sT))
    a("v_mad_u32_u24 v8, v3, s%d, v6" % sT)
    a("s_movk_i32 s%d, 1152" % sT)
    a("v_mad_u32_u24 v%d, v3, s%d, v4" % (vDW[0], sT))
    for q in (1, 2, 3):
        a("v_add_u32 v%d, 0x%x, v%d" % (vDX[q], q * (8 * 9216 - 1024), vDX[0]))
        a("v_add_u32 v%d, 0x%x, v8" % (8 + q, q * (8 * 9216 - 1024)))
        a("v_add_u32 v%d, 0x%x, v%d" % (vDW[q], q * (8 * 1152 - 1024), vDW[0]))
    a("v_lshrrev_b32 v3, 2, v2")
    a("v_and_b32 v4, 3, v2")
    a("v_lshlrev_b32 v4, 3, v4")
    a("v_lshl_add_u32 v4, v3, 7, v4")
    a("v_bfe_u32 v5, v2, 3, 2")
    a("v_lshl_add_u32 v%d, v5, 5, v4" % vR[0][0])
    for fb in (1, 2, 3):
        a("v_xor_b32 v%d, %d, v%d" % (vR[0][fb], fb << 5, vR[0][0]))
    for lv in (1, 2):
        for fb in range(4):
            a("v_add_u32 v%d, 0x%x, v%d" % (vR[lv][fb], lv * LVL, vR[0][fb]))
    a("s_mul_i32 s%d, s%d, 576" % (sRG, sJ))
    a("s_mul_i32 s%d, s%d, %d" % (sT, sW, 72 * 9216))
    a("s_add_u32 s%d, s%d, s%d" % (sRG, sRG, sT))
    a("s_mul_i32 s%d, s%d, %d" % (sW0, sJ, 288 * 1152))
    a("s_mul_i32 s%d, s%d, %d" % (sT, sW, 72 * 1152))
    a("s_add_u32 s%d, s%d, s%d" % (sW0, sW0, sT))
    a("s_mov_b32 s%d, %d" % (sWd0, 32 * 1152))
    a("s_cmp_eq_u32 s%d, 0" % sW)
    a("s_cselect_b32 s52, %d, %d" % (256 * 1152, -32 * 1152 & 0xffffffff) if False else "s_cselect_b32 s52, 8, -1")
    a("s_cselect_b32 s53, -8, 1")
    a("s_mul_i32 s52, s52, %d" % (32 * 1152))
    a("s_mul_i32 s53, s53, %d" % (32 * 1152))
    a("s_bitcmp0_b32 s%d, 0" % sJ)
    a("s_cselect_b32 s%d, 512, 0" % sS)
    a("s_cselect_b32 s54, 0, 64")
    a("s_cselect_b32 s52, s52, 0")
    a("s_cselect_b32 s%d, s53, s%d" % (sWd0, sWd0))
    a("s_add_u32 s%d, s%d, s%d" % (sS, sS, sRG))
    a("s_add_u32 s%d, s%d, s54" % (sRG, sRG))
    a("s_mov_b32 s%d, s%d" % (sRU, sRG))
    a("s_add_u32 s%d, s%d, s52" % (sW0, sW0))
    a("s_mov_b32 s%d, 0x%x" % (sD0, 32 * 9216))
    a("s_mov_b32 s%d, 0x%x" % (sD1, 32 * 9216))
    a("s_mov_b32 s%d, 0x%x" % (sD2l, (288 - 64) * 9216))
    a("s_mov_b32 s%d, 0x%x" % (sD2h, (-(288 + 64) * 9216 + 128) & 0xffffffff))
    a("s_lshl_b32 s%d, s%d, 2" % (sT, sI))
    a("s_add_u32 s%d, s%d, s%d" % (sT, sT, sW))
    a("s_mul_i32 s%d, s%d, %d" % (sT, sT, 36 * 1024))
    a("s_add_u32 s%d, s%d, 0x%x" % (sX, sT, L_XC))
    a("s_add_u32 s%d, s%d, s%d" % (sX, sX, sL))
    a("s_mul_i32 s%d, s%d, %d" % (sSt, sJ, ACT))
    a("s_add_u32 s%d, s%d, s%d" % (sSt, sSt, sT))
    a("s_add_u32 s%d, s%d, 0x%x" % (sSt, sSt, WS_P))
    a("s_mov_b32 s%d, 0x7f000000" % sStB)
    a("s_mov_b32 s%d, 0" % sHI)
    a("s_mov_b32 s%d, -1" % sCnt)
    a("s_mov_b32 s56, 0x0f0f0f0f")
    a("s_mov_b32 s57, 0xf0f0f0f0")
    srd(a, sDG, 36, D * F * 2)
    srd(a, sDU, 38, D * F * 2)
    def dma_stage(vo, srdn, run, m0f, deltas):
        out = []
        for g in range(3):
            n = 4 if g < 2 else 1
            out.append([m0f(g)])
            for q in range(n):
                grp = ["buffer_load_dwordx4 v%d, s[%d:%d], s%d offen offset:%d lds" % (vo[q], srdn, srdn + 3, run, q * 1024)]
                if q == n - 1:
                    grp.append("s_add_u32 s%d, s%d, %s" % (run, run, deltas[g]))
                out.append(grp)
        return out
    def m0s(slot):
        return lambda g: "s_add_u32 m0, s%d, 0x%x" % (sWB, slot * SLOT + g * 4096)
    def s_stage(slot, half):
        o = []
        for g in range(3):
            n = 4 if g < 2 else 1
            o.append("s_add_u32 s55, s%d, 0x%x" % (sS, (288 * half + 32 * g) * 9216))
            o.append(m0s(slot)(g))
            for (srdn, ex) in ((sDG, "s_mov_b64 exec, s[56:57]"), (sDU, "s_not_b64 exec, s[56:57]")):
                o.append(ex)
                for q in range(n):
                    o.append("buffer_load_dwordx4 v%d, s[%d:%d], s55 offen offset:%d lds" % (8 + q, srdn, srdn + 3, q * 1024))
            o.append("s_mov_b64 exec, -1")
        return o
    def xload(t):
        o = []
        if t % 4 == 0 and t:
            o.append("s_add_u32 s%d, s%d, 4096" % (sX, sX))
        for mb in range(2):
            o.append("buffer_load_dwordx4 %s, v%d, s[%d:%d], s%d offen offset:%d %s" % (ar(X0 + 4 * (18 * mb + t), 4), (vL16, vL16b)[mb], sWS, sWS + 3, sX, (t % 4) * 1024, LD_FLAGS))
        return o
    log = []
    def emit_logged(lst, tag, out=None):
        for s_ in lst:
            (out.append(s_) if out is not None else a(s_))
            if s_.startswith("buffer_"):
                log.append(tag)
    def need(tag):
        idx = max(k for k, t_ in enumerate(log) if t_ == tag)
        return min(63, len(log) - 1 - idx)

    def fr(i):
        return AF + 4 * (i % NB)
    def reads(i, desc):
        fb, t = desc[2](i)
        if desc[0] == "D":
            o = desc[1] * SLOT + t * 4096
            lv = min(o // LVL, 2)
            v = vR[lv][fb]; o -= lv * LVL
        else:
            v = desc[1][fb]; o = t * 4096
        assert o + 2048 < 65536
        return ["ds_read_b64_tr_b16 %s, v%d offset:%d" % (ar(fr(i), 2), v, o),
                "ds_read_b64_tr_b16 %s, v%d offset:%d" % (ar(fr(i) + 2, 2), v, o + 2048)]
    DIST = NB - 1
    BAR = 36 - DIST
    assert 36 % NB == 0
    IDXSPAN = opt.get("idxspan", False)
    DSP = opt.get("dsp", 5)
    POS = [(i, g) for i in range(36) for g in ((0, 1) if i % 2 == 0 else (0,))]
    class Fill:
        def __init__(s): s.d = {}
        def free(s, p): return p not in s.d
        def put(s, k, grp):
            s.d.setdefault(POS[k], []).extend(grp)
        def seq(s, items, start, step=1):
            k = start
            for g in items:
                while k < len(POS) and POS[k] in s.d: k += 1
                if k >= len(POS):
                    k = len(POS) - 1
                s.d.setdefault(POS[k], []).extend(g)
                k += step
            return k
        def nvm(s, lo, hi):
            return sum(1 for (i, g), l in s.d.items() if lo <= i < hi for x in l if x.startswith("buffer_"))
    def kpos(i):
        return POS.index((i, 0))
    def place_dma(fill, groups, start, step):
        k = start
        pend = []
        for g in groups:
            if "m0" in g[0]:
                pend = g; continue
            if pend:
                fill.put(k - 1, pend); pend = []
            fill.put(k, g[:1])
            if len(g) > 1: fill.put(k + 1, g[1:])
            k += step
    o1 = lambda i: (i % 4, i // 4)
    o2 = lambda i: (2 * (i // 18) + (i % 2), (i % 18) // 2)
    def mf_g1(acc, kbase, first):
        def f(i):
            fb, t = o1(i)
            r = []
            for mb in range(2):
                ac = acc + (fb * 2 + mb) * 4
                c = "0" if (first and t == 0) else vr(ac, 4)
                r.append("v_mfma_f32_16x16x32_bf16 %s, %s, %s, %s" % (vr(ac, 4), ar(fr(i), 4), ar(X0 + 4 * (18 * mb + kbase + t), 4), c))
            return r
        return f
    def cvts(hbase, src):
        cv = []
        for u in range(2):
            for mb in range(2):
                for k in range(4):
                    t = src + ((2 * u + k // 2) * 2 + mb) * 4 + 2 * (k % 2)
                    cv.append("v_cvt_pk_bf16_f32 v%d, v%d, v%d" % (hbase + 8 * u + 4 * mb + k, t, t + 1))
        return cv
    def em(s_):
        if opt.get("nodma") and s_.endswith(" lds"): return
        if opt.get("nost") and s_.startswith("buffer_store"): return
        (a.label(s_[:-1]) if s_.endswith(":") else a(s_))
    def gstage(cur, nxt, mf, fill, barwait):
        for i in range(36):
            if i == BAR and nxt is not None:
                for s_ in barwait: em(s_)
                a("s_barrier")
            if i % 2 == 0:
                a("s_waitcnt lgkmcnt(%d)" % (2 * (DIST - 2)))
            if i + DIST < 36: rd = reads(i + DIST, cur)
            elif nxt is not None: rd = reads(i + DIST - 36, nxt)
            else: rd = []
            m = mf(i)
            a(m[0])
            if rd: a(rd[0])
            for s_ in fill.d.get((i, 0), []): em(s_)
            a(m[1])
            if rd: a(rd[1])
            for s_ in fill.d.get((i, 1), []): em(s_)

    dl = ["s%d" % sD0, "s%d" % sD1, "s%d" % sD2l]
    dh = ["s%d" % sD0, "s%d" % sD1, "s%d" % sD2h]
    D_ = lambda s: ("D", s, o1)
    side = []

    for s_ in s_stage(0, 0) + s_stage(1, 1): a(s_)
    for g in dma_stage(vDX, sDG, sRG, m0s(2), dl):
        for s_ in (g + ["s_nop 0"] if "m0" in g[0] else g): a(s_)
    a("s_waitcnt vmcnt(0)")
    wait_flags(c, 1, 12)
    stamp(c)
    CPRE = opt.get("C_pre", 6)
    for t in range(CPRE):
        emit_logged(xload(t), "x%d" % t)
    for i in range(DIST):
        for s_ in reads(i, D_(0)): a(s_)
    rest = list(range(CPRE, 18))
    sched = {}
    tt = 1
    while rest:
        sched[tt] = [(xload(t), "x%d" % t) for t in rest[:2]]; rest = rest[2:]; tt += 1
    a("s_mov_b64 vcc, -1")
    a("s_waitcnt vmcnt(%d)" % need("x0"))
    a("s_branch %s_C" % L)
    fillC, fillD = Fill(), Fill()
    for (nm, fill) in (("C", fillC), ("D", fillD)):
        for t in range(1, 10 if nm == "C" else 9):
            lab = "%s_s%s%d" % (L, nm, t)
            fill.d[(4 * t - 1, 0)] = ["s_cbranch_vccnz %s" % lab, lab + "r:"]
    place_dma(fillC, dma_stage(vDX, sDG, sRG, m0s(3), dh), 1, DSP)
    place_dma(fillD, dma_stage(vDX, sDU, sRU, m0s(0), dl), 1, DSP)
    fillD.put(len(POS) - 2, ["s_add_u32 s%d, s%d, 1" % (sCnt, sCnt)])
    fillD.put(len(POS) - 1, ["s_cmp_lt_u32 s%d, 4" % sCnt])
    mx = [["v_max_f32 v%d, 0, v%d" % (T0 + r, AG + r)] for r in range(32)]
    fillC.seq(mx[:14], 4)
    fillD.seq(mx[14:], 0)
    bars = {}
    for (nm, fill, kb) in (("C", fillC, 0), ("D", fillD, 9)):
        for i in range(36):
            if i == BAR:
                lab = "%s_b%s" % (L, nm)
                bars[nm] = ["s_cbranch_vccnz %s" % lab, "s_waitcnt vmcnt(%d)" % ((9 if nm == "C" else fillC.nvm(0, 36)) + fill.nvm(0, BAR)), lab + "r:"]
                side.append(lab + ":")
                pass
                side.append("s_branch %sr" % lab)
            for g in (0, 1):
                for s_ in fill.d.get((i, g), []):
                    if s_.startswith("buffer_"): log.append("f" + nm)
                    if s_.startswith("s_cbranch_vccnz"):
                        t = (i + 1) // 4
                        lab = s_.split()[1]
                        side.append(lab + ":")
                        if nm == "C":
                            for (lst, tag) in sched.get(t, []):
                                emit_logged(lst, tag, side)
                        side.append("s_waitcnt vmcnt(%d)" % need("x%d" % (kb + t)))
                        side.append("s_branch %sr" % lab)
    def barw(fill, prevn=9):
        return ["s_waitcnt vmcnt(%d)" % (prevn + fill.nvm(0, BAR))]

    a.label("%s_g1" % L)
    fill = Fill()
    place_dma(fill, dma_stage(vDX, sDU, sRU, m0s(1), dh), 1, DSP)
    fill.put(3, ["s_cbranch_vccnz %s_fix" % L, "%s_fixr:" % L])
    fill.seq([["v_mul_f32 v%d, v%d, v%d" % (T0 + r, T0 + r, AU + r)] for r in range(32)], 4)
    side.append("%s_fix:" % L)
    for r in range(16):
        side.append("v_max_f32 v%d, 0, v%d" % (T0 + 16 + r, AU + r))
    side.append("s_mov_b64 vcc, 0")
    side.append("s_branch %s_fixr" % L)
    gstage(D_(2), D_(3), mf_g1(AG, 0, True), fill, barw(fill))
    fill = Fill()
    cv = cvts(HB, T0)
    on, off = "s_set_gpr_idx_on s%d, 0x8" % sHI, "s_set_gpr_idx_off"
    if IDXSPAN:
        k = fill.seq([[on]] + [[c] for c in cv] + [[off]], 0)
    else:
        k = fill.seq([[on] + cv[4 * q:4 * q + 4] + [off] for q in range(4)], 0, 3)
    k = fill.seq([["s_add_u32 s%d, s%d, 16" % (sHI, sHI)], ["s_cmp_eq_u32 s%d, 3" % sCnt], ["s_cbranch_scc1 %s_sw" % L, "%s_swr:" % L]], k)
    place_dma(fill, dma_stage(vDX, sDG, sRG, m0s(2), dl), k + 1, (len(POS) - k - 3) // 8)
    side.append("%s_sw:" % L)
    for q in range(4):
        side.append("v_mov_b32 v%d, v%d" % (vDX[q], vDW[q]))
    side += ["s_mov_b32 s%d, s40" % sDG, "s_and_b32 s%d, s41, 0xffff" % (sDG + 1),
             "s_mov_b32 s%d, s40" % sDU, "s_and_b32 s%d, s41, 0xffff" % (sDU + 1),
             "s_mov_b32 s%d, s%d" % (sRG, sW0), "s_add_u32 s%d, s%d, 256" % (sRU, sW0),
             "s_mov_b32 s%d, s%d" % (sD0, sWd0), "s_mov_b32 s%d, %d" % (sD1, 32 * 1152),
             "s_sub_u32 s%d, %d, s%d" % (sD2l, 128 - 32 * 1152, sWd0), "s_mov_b32 s%d, s%d" % (sD2h, sD2l),
             "s_branch %s_swr" % L]
    gstage(D_(3), D_(0), mf_g1(AG, 9, False), fill, barw(fill))
    a.label("%s_C" % L)
    gstage(D_(0), D_(1), mf_g1(AU, 0, True), fillC, bars["C"])
    gstage(D_(1), D_(2), mf_g1(AU, 9, False), fillD, bars["D"])
    a("s_cbranch_scc1 %s_g1" % L)
    stamp(c)
    vC = vR[1]
    for fb in range(4):
        a("v_add_u32 v%d, 0x%x, v%d" % (vC[fb], 2 * SLOT, vR[0][fb]))
    V_ = lambda regs: ("V", regs, o2)
    a("s_waitcnt lgkmcnt(0)")
    for i in range(DIST):
        for s_ in reads(i, V_(vC)): a(s_)
    a("s_mov_b32 s%d, 0x%x" % (sSlotN, 3 * SLOT))
    a("s_mov_b32 s%d, 0x%x" % (sSlotC, 2 * SLOT))
    a("s_add_u32 s%d, s%d, 0x%x" % (sSlotD, sWB, 1 * SLOT))
    a("s_mov_b32 s%d, 0" % sCnt)
    for k in range(4):
        a("buffer_store_dword v0, v%d, s[%d:%d], s%d offen" % (vL16, sWS, sWS + 3, sStB))
    for r in range(32):
        a("v_mul_f32 v%d, v%d, v%d" % (T0 + r, T0 + r, AU + r))
    for s_ in cvts(HB + 64, T0): a(s_)
    a.label("%s_g2" % L)
    def mf2(i):
        db, t = o2(i)
        r = []
        for mb in range(2):
            ac = AG + (db * 2 + mb) * 4
            c = "0" if t == 0 else vr(ac, 4)
            r.append("v_mfma_f32_16x16x32_bf16 %s, %s, %s, %s" % (vr(ac, 4), ar(fr(i), 4), vr(H0 + 8 * t + 4 * mb, 4), c))
        return r
    def out_ep(u, soff):
        g = []
        for mb in range(2):
            tb = T0 + 8 * u + 4 * mb
            for k in range(4):
                s_ = AG + ((2 * u + k // 2) * 2 + mb) * 4 + 2 * (k % 2)
                g.append(["v_cvt_pk_bf16_f32 v%d, v%d, v%d" % (tb + k, s_, s_ + 1)])
            g.append(["buffer_store_dwordx4 %s, v%d, s[%d:%d], s%d offen offset:%d %s" % (vr(tb, 4), (vL16, vL16b)[mb], sWS, sWS + 3, soff, u * 1024, ST_FLAGS)])
        return g
    fill = Fill()
    n = len(POS)
    place_dma(fill, dma_stage(vDX, sDU, sRU, lambda g: "s_add_u32 m0, s%d, 0x%x" % (sSlotD, g * 4096), dl), 1, DSP)
    fill.put(n - 1, ["s_cmp_lt_u32 s%d, 9" % sCnt])
    k = fill.seq(out_ep(1, sStB), kpos(2))
    assert k <= kpos(18)
    fill.seq([["v_add_u32 v%d, s%d, v%d" % (vC[0], sSlotN, vR[0][0])], ["v_add_u32 v%d, s%d, v%d" % (vC[1], sSlotN, vR[0][1])]], kpos(18 - DIST + 1))
    fill.seq([["s_add_u32 s%d, s%d, 1" % (sCnt, sCnt)], ["s_mov_b32 s%d, s%d" % (sStB, sSt)]], k)
    k = fill.seq(out_ep(0, sSt), kpos(20))
    k = fill.seq([["s_add_u32 s%d, s%d, 2048" % (sSt, sSt)]], k)
    k = max(k, kpos(BAR), 1 + 8 * DSP + 2)
    fill.seq([["v_add_u32 v%d, s%d, v%d" % (vC[2], sSlotN, vR[0][2])], ["v_add_u32 v%d, s%d, v%d" % (vC[3], sSlotN, vR[0][3])],
              ["s_add_u32 s%d, s%d, s%d" % (sSlotD, sWB, sSlotC)], ["s_mov_b32 s%d, s%d" % (sSlotC, sSlotN),
               "s_add_u32 s%d, s%d, 0x%x" % (sSlotN, sSlotN, SLOT)],
              ["s_cmp_ge_u32 s%d, 0x%x" % (sSlotN, 4 * SLOT), "s_cselect_b32 s%d, 0, s%d" % (sSlotN, sSlotN)],
              ["s_cmp_lt_u32 s%d, 6" % sCnt, "s_cselect_b32 s%d, 0x%x, 0" % (sDU + 2, D * F * 2)]], k)
    assert fill.d[POS[n - 1]] == ["s_cmp_lt_u32 s%d, 9" % sCnt], fill.d[POS[n - 1]]
    gstage(V_(vC), V_(vC), mf2, fill, barw(fill, 13))
    a("s_cbranch_scc1 %s_g2" % L)
    a("s_nop 7")
    for grp in out_ep(1, sStB):
        for s_ in grp: a(s_)
    c.side += side

def unpack8(a, src, dst):
    for k in range(4):
        a("v_lshlrev_b32 v%d, 16, v%d" % (dst + 2 * k, src + k))
        a("v_and_b32 v%d, 0xffff0000, v%d" % (dst + 2 * k + 1, src + k))

def phase_D(c):
    a, opt = c.a, c.opt
    LD, ST = "sc1", "sc1"
    L = c.lab("D")
    P0 = 40
    X1, ACC, TM = 8, 232, 24
    a("v_and_b32 v1, 7, v%d" % vLane)
    a("v_lshrrev_b32 v2, 3, v%d" % vLane)
    a("s_mul_i32 s24, s%d, 24" % sW)
    a("v_add_u32 v2, s24, v2")
    a("v_lshlrev_b32 v3, 4, v1")
    a("v_lshl_add_u32 v3, v2, 8, v3")
    a("v_add_u32 v4, 4096, v3")
    a("s_lshl_b32 s25, s%d, 4" % sI)
    a("s_add_u32 s25, s25, s%d" % sJ)
    a("s_lshr_b32 s26, s25, 1")
    a("s_mul_i32 s26, s26, 18432")
    a("s_and_b32 s27, s25, 1")
    a("s_lshl_b32 s27, s27, 7")
    a("s_add_u32 s26, s26, s27")
    a("s_add_u32 s27, s26, s%d" % sL)
    a("s_add_u32 s28, s27, 0x%x" % L_X1)
    a("s_lshl_b32 s29, s25, 8")
    a("s_add_u32 s29, s29, s%d" % sL)
    a("s_add_u32 s29, s29, 0x%x" % L_SSQ)
    a("v_lshlrev_b32 v5, 5, v1")
    a("s_add_u32 s30, s26, 0x%x" % WS_P)
    def ld3(dst, soff):
        a("buffer_load_dwordx4 %s, v3, s[4:7], s%d offen %s" % (vr(dst, 4), soff, LD))
        a("buffer_load_dwordx4 %s, v3, s[4:7], s%d offen offset:2048 %s" % (vr(dst + 4, 4), soff, LD))
        a("buffer_load_dwordx4 %s, v4, s[4:7], s%d offen %s" % (vr(dst + 8, 4), soff, LD))
    ld3(X1, 28)
    a("buffer_load_dwordx4 v[32:35], v5, s[4:7], s29 offen %s" % LD)
    a("buffer_load_dwordx2 v[36:37], v5, s[4:7], s29 offen offset:16 %s" % LD)
    signal(c, 2, 5)
    nopf = c.lab("D_nopf")
    a("s_cmp_lg_u32 s%d, 0" % sL)
    a("s_cbranch_scc1 %s" % nopf)
    a("s_mov_b32 s31, s25")
    prefetch_A(c)
    a("s_mov_b32 s25, s31")
    a.label(nopf)
    wait_flags(c, 2, 16)
    stamp(c)
    w3 = c.lab("D_w3")
    a("s_cmp_eq_u32 s%d, 3" % sW)
    a("s_cbranch_scc1 %s" % w3)
    for j in range(16):
        ld3(P0 + 12 * j, 30)
        if j < 15: a("s_add_u32 s30, s30, 0x%x" % ACT)
    a("s_waitcnt vmcnt(48)")
    a("v_add_f32 v32, v32, v33")
    a("v_add_f32 v34, v34, v35")
    a("v_add_f32 v36, v36, v37")
    a("v_add_f32 v32, v32, v34")
    a("v_add_f32 v32, v32, v36")
    a("v_mov_b32 v33, 0x%x" % f2u(1e-5))
    a("s_mov_b32 s31, 0x%x" % f2u(1.0 / 576))
    a("v_fma_f32 v32, v32, s31, v33")
    a("v_rcp_f32 v32, v32")
    AC = [232, 240, 24]
    T2 = 20
    for j in range(16):
        for q in range(3):
            a("s_waitcnt vmcnt(%d)" % (47 - 3 * j - q))
            src = P0 + 12 * j + 4 * q
            if j == 0:
                unpack8(a, src, AC[q])
            else:
                for k in range(4):
                    a("v_lshlrev_b32 v%d, 16, v%d" % (T2, src + k))
                    a("v_and_b32 v%d, 0xffff0000, v%d" % (T2 + 1, src + k))
                    a("v_add_f32 v%d, v%d, v%d" % (AC[q] + 2 * k, AC[q] + 2 * k, T2))
                    a("v_add_f32 v%d, v%d, v%d" % (AC[q] + 2 * k + 1, AC[q] + 2 * k + 1, T2 + 1))
    XF = 40
    for q in range(3):
        unpack8(a, X1 + 4 * q, XF + 8 * q)
        for k in range(8):
            a("v_fmac_f32 v%d, v%d, v32" % (XF + 8 * q + k, AC[q] + k))
        for k in range(4):
            a("v_cvt_pk_bf16_f32 v%d, v%d, v%d" % (X1 + 4 * q + k, XF + 8 * q + 2 * k, XF + 8 * q + 2 * k + 1))
    fin = c.lab("D_fin")
    a("s_cmp_lg_u32 s%d, 0" % sL)
    a("s_cbranch_scc1 %s" % fin)
    def st3(src, soff):
        a("buffer_store_dwordx4 %s, v3, s[4:7], s%d offen %s" % (vr(src, 4), soff, ST))
        a("buffer_store_dwordx4 %s, v3, s[4:7], s%d offen offset:2048 %s" % (vr(src + 4, 4), soff, ST))
        a("buffer_store_dwordx4 %s, v4, s[4:7], s%d offen %s" % (vr(src + 8, 4), soff, ST))
    for q in range(3): unpack8(a, X1 + 4 * q, XF + 8 * q)
    a("s_add_u32 s28, s26, 0x%x" % (LSTR + L_XR))
    st3(X1, 28)
    a("v_add_f32 v34, v%d, v%d" % (XF, XF + 1))
    a("v_mul_f32 v35, v%d, v%d" % (XF, XF))
    a("v_fmac_f32 v35, v%d, v%d" % (XF + 1, XF + 1))
    for k in range(2, 24):
        a("v_add_f32 v34, v34, v%d" % (XF + k))
        a("v_fmac_f32 v35, v%d, v%d" % (XF + k, XF + k))
    xl_sum(a, [34, 35], [36, 37], [8, 16, 32])
    a("v_lshlrev_b32 v36, 5, v1")
    a("v_add_u32 v36, %d, v36" % LDS_D)
    a("s_lshl_b32 s24, s%d, 3" % sW)
    a("v_add_u32 v37, s24, v36")
    a("ds_write_b64 v37, v[34:35]")
    a("s_waitcnt lgkmcnt(0)")
    a("s_barrier")
    a("ds_read_b128 v[64:67], v36")
    a("ds_read_b64 v[34:35], v36 offset:16")
    a("s_waitcnt lgkmcnt(0)")
    a("v_add_f32 v34, v34, v64")
    a("v_add_f32 v35, v35, v65")
    a("v_add_f32 v34, v34, v66")
    a("v_add_f32 v35, v35, v67")
    a("v_mul_f32 v34, s31, v34")
    a("v_mul_f32 v36, v34, v34")
    a("v_fma_f32 v35, v35, s31, -v36")
    a("v_max_f32 v35, 0, v35")
    a("v_add_f32 v35, 0x%x, v35" % f2u(1e-5))
    a("v_rsq_f32 v35, v35")
    for k in range(24): a("v_sub_f32 v%d, v%d, v34" % (XF + k, XF + k))
    for k in range(24): a("v_mul_f32 v%d, v%d, v35" % (XF + k, XF + k))
    for k in range(12): a("v_cvt_pk_bf16_f32 v%d, v%d, v%d" % (64 + k, XF + 2 * k, XF + 2 * k + 1))
    a("s_add_u32 s28, s26, 0x%x" % (LSTR + L_XN))
    st3(64, 28)
    a("v_lshlrev_b32 v36, 2, v1")
    a("s_lshl_b32 s28, s25, 5")
    a("s_add_u32 s28, s28, 0x%x" % (LSTR + L_MEAN))
    a("s_mov_b64 exec, 0xff")
    a("buffer_store_dword v34, v36, s[4:7], s28 offen %s" % ST)
    a("s_mov_b64 exec, -1")
    j2 = c.lab("D_j2")
    a("s_branch %s" % j2)
    a.label(w3)
    a("s_cmp_lg_u32 s%d, 0" % sL)
    a("s_cbranch_scc1 %s" % c.endlab)
    a("s_barrier")
    a.label(j2)
    signal(c, 3, 0)
    stamp(c)
    a("s_mov_b32 s%d, 0x%x" % (sL, LSTR))
    a("s_add_u32 s%d, s%d, 8192" % (sFL, sFL))
    a("s_branch %s" % c.looplab)
    a.label(fin)
    srd(a, sOUT, 42, ACT)
    a("v_and_b32 v5, 8, v%d" % vLane)
    a("v_cmp_eq_u32 vcc, 0, v5")
    a("v_lshrrev_b32 v6, 2, v2")
    a("v_lshlrev_b32 v6, 6, v6")
    a("v_lshl_add_u32 v6, v5, 2, v6")
    a("v_and_b32 v7, 16, v%d" % vLane)
    a("v_add_u32 v6, v6, v7")
    a("v_mul_u32_u24 v7, 1152, v1")
    a("v_add_u32 v6, v6, v7")
    a("s_mul_i32 s28, s25, %d" % (8 * 1152))
    for q in range(3):
        x = X1 + 4 * q
        for k in range(4):
            a("v_mov_b32_dpp v%d, v%d row_ror:8 row_mask:0xf bank_mask:0xf" % (40 + k, x + k))
        o = 48 + 4 * q
        a("v_cndmask_b32 v%d, v42, v%d, vcc" % (o, x))
        a("v_cndmask_b32 v%d, v43, v%d, vcc" % (o + 1, x + 1))
        a("v_cndmask_b32 v%d, v%d, v40, vcc" % (o + 2, x + 2))
        a("v_cndmask_b32 v%d, v%d, v41, vcc" % (o + 3, x + 3))
        a("buffer_store_dwordx4 %s, v6, s[16:19], s28 offen offset:%d" % (vr(o, 4), 128 * q))

def gen_mega(a, name, opt=None):
    c = Ctx()
    c.a, c.opt = a, (opt or {})
    c.stamp = c.opt.get("stamp", False)
    c.maxpoll = c.opt.get("maxpoll", 200000)
    c.sigwave = c.opt.get("sigwave", 0)
    c.side = []
    c.n = 0
    def lab(p):
        c.n += 1
        return "m_%s_%d" % (p, c.n)
    c.lab = lab
    c.endlab, c.looplab = "m_end", "m_layer"
    kernel_begin(a, name)
    a("s_cmp_ge_u32 s2, 256")
    a("s_cbranch_scc1 m_exit")
    a("s_load_dwordx4 s[36:39], s[0:1], 32")
    a("s_load_dwordx4 s[40:43], s[0:1], 48")
    a("s_load_dwordx2 s[24:25], s[0:1], 72")
    a("v_lshrrev_b32 v1, 6, v0")
    a("v_and_b32 v%d, 63, v0" % vLane)
    a("v_readfirstlane_b32 s%d, v1" % sW)
    xmap(a, c.opt.get("xmap", 4), sJ, sI, 26)
    a("v_lshlrev_b32 v%d, 4, v%d" % (vL16, vLane))
    a("v_add_u32 v%d, 18432, v%d" % (vL16b, vL16))
    a("s_mov_b32 s%d, 0" % sL)
    a("s_lshl_b32 s%d, s%d, 7" % (sFL, sI))
    a("s_add_u32 s%d, s%d, 0x%x" % (sFL, sFL, WS_FL))
    a("s_mov_b32 s%d, 0" % sSTI)
    a("s_waitcnt lgkmcnt(0)")
    srd(a, sWS, 24, WS_END + (0x40000 if c.stamp else 0))
    stamp(c)
    prefetch_A(c)
    a.label(c.looplab)
    phase_A(c)
    phase_B(c, None)
    phase_C(c)
    stamp(c)
    phase_D(c)
    a.label(c.endlab)
    if c.stamp:
        a("s_waitcnt vmcnt(0)")
        stamp(c)
        a("s_lshl_b32 s24, s2, 2")
        a("s_add_u32 s24, s24, s%d" % sW)
        a("s_lshl_b32 s24, s24, 8")
        a("s_add_u32 s24, s24, 0x%x" % WS_END)
        a("v_lshlrev_b32 v0, 2, v%d" % vLane)
        a("buffer_store_dword v%d, v0, s[4:7], s24 offen" % vST)
    if c.opt.get("dbg"):
        a("s_cmp_lg_u32 s2, %d" % c.opt.get("dbg_wg", 37))
        a("s_cbranch_scc1 m_exit")
        a("s_cmp_lg_u32 s%d, 0" % sW)
        a("s_cbranch_scc1 m_exit")
        a("s_load_dwordx2 s[24:25], s[0:1], 64")
        a("s_waitcnt lgkmcnt(0)")
        srd(a, 8, 24, 64)
        a("v_mov_b32 v0, 0x%x" % (WS_WBAR + 4000))
        a("buffer_load_dword v1, v0, s[4:7], 0 offen")
        a("v_mov_b32 v0, 0")
        a("s_waitcnt vmcnt(0)")
        a("buffer_store_dword v1, v0, s[8:11], 0 offen")
        a("s_nop 1")
        sel = [0, 1, 4, 5, 7, 8, 9, 10, 11, 12, 13, 20, 22, 23, 24]
        for k, x in enumerate(sel):
            a("v_readlane_b32 s26, v%d, %d" % (vST, x))
            a("s_nop 3")
            a("v_mov_b32 v1, s26")
            a("v_mov_b32 v0, %d" % (4 * k + 4))
            a("buffer_store_dword v1, v0, s[8:11], 0 offen")
            a("s_nop 1")
    a.label("m_exit")
    a("s_endpgm")
    for s_ in c.side:
        (a.label(s_[:-1]) if s_.endswith(":") else a(s_))
    return kernel_desc(name, 512, 256)
```

```python
from mcommon import *
WS_XN, WS_XR, WS_MEAN = L_XN, L_XR, L_MEAN

def unpack8(a, src, dst):
    for k in range(4):
        a("v_lshlrev_b32 v%d, 16, v%d" % (dst + 2 * k, src + k))
        a("v_and_b32 v%d, 0xffff0000, v%d" % (dst + 2 * k + 1, src + k))

def ln_tail(a, XB, XF, vOff, sWS, sBase, sRow, vTid, L, st_flags=""):
    unpack8(a, XB, XF)
    a("s_add_u32 s30, s%d, 0x%x" % (sBase, WS_XR))
    a("buffer_store_dwordx4 %s, v%d, s[%d:%d], s30 offen %s" % (vr(XB, 4), vOff, sWS, sWS + 3, st_flags))
    a("v_add_f32 v40, v%d, v%d" % (XF, XF + 1))
    a("v_mul_f32 v41, v%d, v%d" % (XF, XF))
    a("v_fmac_f32 v41, v%d, v%d" % (XF + 1, XF + 1))
    for k in range(2, 8):
        a("v_add_f32 v40, v40, v%d" % (XF + k))
        a("v_fmac_f32 v41, v%d, v%d" % (XF + k, XF + k))
    xl_sum(a, [40, 41], [42, 43], [8, 16, 32])
    a("v_and_b32 v44, 7, v%d" % vTid)
    a("v_mul_u32_u24 v44, 80, v44")
    a("v_lshrrev_b32 v45, 6, v%d" % vTid)
    a("v_lshl_add_u32 v45, v45, 3, v44")
    a("ds_write_b64 v45, v[40:41]")
    a("s_waitcnt lgkmcnt(0)")
    a("s_barrier")
    for q in range(4):
        a("ds_read_b128 %s, v44 offset:%d" % (vr(46 + 4 * q, 4), 16 * q))
    a("ds_read_b64 v[40:41], v44 offset:64")
    a("s_waitcnt lgkmcnt(0)")
    for q in range(8):
        a("v_add_f32 v40, v40, v%d" % (46 + 2 * q))
        a("v_add_f32 v41, v41, v%d" % (47 + 2 * q))
    a("s_mov_b32 s31, 0x%x" % f2u(1.0 / 576))
    a("v_mul_f32 v40, s31, v40")
    a("v_mul_f32 v42, v40, v40")
    a("v_fma_f32 v41, v41, s31, -v42")
    a("v_max_f32 v41, 0, v41")
    a("v_add_f32 v41, 0x%x, v41" % f2u(1e-5))
    a("v_rsq_f32 v41, v41")
    for k in range(8):
        a("v_sub_f32 v%d, v%d, v40" % (XF + k, XF + k))
    for k in range(8):
        a("v_mul_f32 v%d, v%d, v41" % (XF + k, XF + k))
    for k in range(4):
        a("v_cvt_pk_bf16_f32 v%d, v%d, v%d" % (46 + k, XF + 2 * k, XF + 2 * k + 1))
    a("s_add_u32 s30, s%d, 0x%x" % (sBase, WS_XN))
    a("buffer_store_dwordx4 v[46:49], v%d, s[%d:%d], s30 offen %s" % (vOff, sWS, sWS + 3, st_flags))
    a("v_lshlrev_b32 v44, 2, v%d" % vTid)
    a("v_cmp_gt_u32 vcc, 8, v%d" % vTid)
    a("s_lshl_b32 s30, s%d, 2" % sRow)
    a("s_add_u32 s30, s30, 0x%x" % WS_MEAN)
    a("s_and_saveexec_b64 s[32:33], vcc")
    a("s_cbranch_execz %s_nomean" % L)
    a("buffer_store_dword v40, v44, s[%d:%d], s30 offen %s" % (sWS, sWS + 3, st_flags))
    a.label("%s_nomean" % L)

import struct
def f2u(x): return struct.unpack("<I", struct.pack("<f", x))[0]

def gen_k0(a, name, opt=None):
    opt = opt or {}
    kernel_begin(a, name)
    L = name
    sWS, sIN = 4, 8
    a("s_cmp_ge_u32 s2, 616")
    a("s_cbranch_scc1 %s_end" % L)
    a("s_load_dwordx2 s[12:13], s[0:1], 72")
    a("s_load_dwordx4 s[24:27], s[0:1], 0")
    a("s_load_dwordx2 s[28:29], s[0:1], 16")
    if opt.get("dbg"):
        a("s_cmp_lg_u32 s2, 0")
        a("s_cbranch_scc1 %s_nd" % L)
        a("s_load_dwordx2 s[34:35], s[0:1], 72")
        a("s_memrealtime s[36:37]")
        a("s_waitcnt lgkmcnt(0)")
        srd(a, 40, 34, WS_END)
        a("v_mov_b32 v1, s36")
        a("v_mov_b32 v2, 0x%x" % (WS_WBAR + 4000))
        a("buffer_store_dword v1, v2, s[40:43], 0 offen")
        a("s_nop 1")
        a.label("%s_nd" % L)
    a("v_lshrrev_b32 v1, 6, v0")
    a("v_and_b32 v2, 63, v0")
    a("v_readfirstlane_b32 s23, v1")
    a("s_cmp_ge_u32 s2, 256")
    a("s_cbranch_scc1 %s_pack" % L)
    a("v_and_b32 v1, 7, v0")
    a("v_lshrrev_b32 v2, 3, v0")
    a("v_lshlrev_b32 v3, 4, v1")
    a("v_lshl_add_u32 v3, v2, 8, v3")
    a("s_lshr_b32 s16, s2, 1")
    a("s_mul_i32 s16, s16, 18432")
    a("s_and_b32 s17, s2, 1")
    a("s_lshl_b32 s17, s17, 7")
    a("s_add_u32 s16, s16, s17")
    a("s_lshl_b32 s18, s2, 3")
    a("v_lshrrev_b32 v5, 2, v2")
    a("v_lshlrev_b32 v5, 6, v5")
    a("v_and_b32 v6, 3, v2")
    a("v_lshl_add_u32 v5, v6, 3, v5")
    a("v_mul_u32_u24 v6, 1152, v1")
    a("v_add_u32 v5, v5, v6")
    a("s_mul_i32 s22, s18, 1152")
    a("s_waitcnt lgkmcnt(0)")
    srd(a, sWS, 12, WS_END)
    srd(a, sIN, 24, ACT)
    a("buffer_load_dwordx2 v[8:9], v5, s[8:11], s22 offen")
    a("buffer_load_dwordx2 v[10:11], v5, s[8:11], s22 offen offset:32")
    a("s_waitcnt vmcnt(0)")
    ln_tail(a, 8, 32, 3, sWS, 16, 18, 0, L, opt.get("st_flags", ""))
    a("s_endpgm")
    a.label("%s_pack" % L)
    a("v_and_b32 v3, 15, v2")
    a("v_lshrrev_b32 v4, 4, v2")
    a("v_lshlrev_b32 v5, 4, v2")
    a("s_sub_u32 s16, s2, 256")
    a("s_mul_i32 s16, s16, 9")
    a("s_add_u32 s16, s16, s23")
    a("s_waitcnt lgkmcnt(0)")
    srd(a, sWS, 12, WS_END)
    a("s_cmp_ge_u32 s2, 480")
    a("s_cbranch_scc1 %s_wo" % L)
    srd(a, sIN, 26, 576 * 1728 * 2)
    a("s_mul_i32 s17, s16, 9363")
    a("s_lshr_b32 s17, s17, 16")
    a("s_mul_i32 s18, s17, 7")
    a("s_sub_u32 s18, s16, s18")
    a("s_mul_i32 s19, s17, 3641")
    a("s_lshr_b32 s19, s19, 16")
    a("s_mul_i32 s20, s19, 18")
    a("s_sub_u32 s20, s17, s20")
    a("s_lshr_b32 s21, s18, 1")
    a("s_add_u32 s21, s21, 1")
    a("s_cmp_eq_u32 s21, 3")
    a("s_cselect_b32 s21, 0, s21")
    a("s_mul_i32 s21, s21, 576")
    a("s_and_b32 s22, s18, 1")
    a("s_mul_i32 s22, s22, 18")
    a("s_add_u32 s21, s21, s22")
    a("v_add_u32 v6, s21, v3")
    a("v_bfe_u32 v7, v3, 1, 1")
    a("v_bfe_u32 v8, v3, 2, 1")
    a("v_mul_u32_u24 v9, 576, v7")
    a("v_mul_u32_u24 v8, 18, v8")
    a("v_add3_u32 v9, v9, v8, 576" if False else "v_add_u32 v9, v9, v8")
    a("v_add_u32 v9, 576, v9")
    a("v_mul_u32_u24 v8, 18, v7")
    a("v_cmp_gt_u32 vcc, 8, v3")
    a("s_nop 1")
    a("v_cndmask_b32 v9, v8, v9, vcc")
    a("v_and_b32 v8, 1, v3")
    a("v_add3_u32 v9, v9, v8, 16")
    a("v_mov_b32 v8, 0x1000000")
    a("v_cmp_gt_u32 vcc, 12, v3")
    a("s_nop 1")
    a("v_cndmask_b32 v9, v8, v9, vcc")
    a("s_cmp_eq_u32 s18, 6")
    a("s_cselect_b64 vcc, -1, 0")
    a("v_cndmask_b32 v6, v6, v9, vcc")
    a("v_lshlrev_b32 v6, 1, v6")
    a("s_movk_i32 s21, %d" % (4 * 3456))
    a("v_mad_u32_u24 v6, v4, s21, v6")
    a("s_mul_i32 s21, s20, %d" % (32 * 3456))
    a("s_mul_i32 s22, s19, 72")
    a("s_add_u32 s21, s21, s22")
    for e in range(8):
        row = e if e < 4 else 16 + e - 4
        a("s_add_u32 s22, s21, %d" % (row * 3456))
        a("buffer_load_ushort v%d, v6, s[8:11], s22 offen" % (20 + e))
    a("s_lshl_b32 s16, s16, 10")
    a("s_add_u32 s16, s16, 0x%x" % WS_WQ)
    a("s_waitcnt vmcnt(0)")
    for p in range(4):
        a("v_lshl_or_b32 v%d, v%d, 16, v%d" % (12 + p, 21 + 2 * p, 20 + 2 * p))
    a("buffer_store_dwordx4 v[12:15], v5, s[4:7], s16 offen")
    a("s_endpgm")
    a.label("%s_wo" % L)
    srd(a, sIN, 28, 576 * 576 * 2)
    a("s_cmp_ge_u32 s2, 552")
    a("s_cbranch_scc1 %s_wbar" % L)
    a("s_sub_u32 s16, s16, 2016")
    a("s_mul_i32 s17, s16, 10923")
    a("s_lshr_b32 s17, s17, 16")
    a("s_mul_i32 s18, s17, 6")
    a("s_sub_u32 s18, s16, s18")
    a("s_mul_i32 s19, s17, 3641")
    a("s_lshr_b32 s19, s19, 16")
    a("s_mul_i32 s20, s19, 18")
    a("s_sub_u32 s20, s17, s20")
    a("s_lshl_b32 s20, s20, 2")
    a("v_add_u32 v6, s20, v4")
    a("v_lshrrev_b32 v9, 1, v6")
    a("v_mul_u32_u24 v9, 18, v9")
    a("v_and_b32 v10, 1, v6")
    a("v_lshl_add_u32 v9, v10, 3, v9")
    a("v_mul_u32_u24 v10, 72, v6")
    a("v_subrev_u32 v10, %d, v10" % (64 * 72 - 16))
    a("v_cmp_le_u32 vcc, 64, v6")
    a("v_mov_b32 v11, %d" % (2 * 1152))
    a("v_mov_b32 v16, %d" % (18 * 1152))
    a("v_cndmask_b32 v9, v9, v10, vcc")
    a("v_cndmask_b32 v11, v11, v16, vcc")
    a("v_mul_u32_u24 v9, 1152, v9")
    a("v_lshl_add_u32 v9, v3, 1, v9")
    a("s_mul_i32 s21, s19, 6")
    a("s_add_u32 s21, s21, s18")
    a("s_lshl_b32 s21, s21, 5")
    for p in range(4):
        a("buffer_load_ushort v%d, v9, s[8:11], s21 offen" % (20 + 2 * p))
        a("buffer_load_ushort v%d, v9, s[8:11], s21 offen offset:1152" % (21 + 2 * p))
        if p < 3: a("v_add_u32 v9, v9, v11")
    a("s_lshl_b32 s16, s16, 10")
    a("s_add_u32 s16, s16, 0x%x" % WS_WO)
    a("s_waitcnt vmcnt(0)")
    for p in range(4):
        a("v_lshl_or_b32 v%d, v%d, 16, v%d" % (12 + p, 21 + 2 * p, 20 + 2 * p))
    a("buffer_store_dwordx4 v[12:15], v5, s[4:7], s16 offen")
    a("s_endpgm")
    a.label("%s_wbar" % L)
    a("s_sub_u32 s16, s16, 2664")
    a("s_sub_u32 s17, s2, 552")
    a("s_lshl_b32 s17, s17, 10")
    a("s_add_u32 s17, s17, 0x%x" % WS_FL)
    a("v_lshlrev_b32 v6, 4, v2")
    for k in range(4): a("v_mov_b32 v%d, 0" % (32 + k))
    a("buffer_store_dwordx4 v[32:35], v6, s[4:7], s17 offen")
    a("s_mul_i32 s21, s16, 1152")
    a("v_lshlrev_b32 v6, 5, v2")
    a("v_mov_b32 v7, 0x1000000")
    a("v_cmp_gt_u32 vcc, 36, v2")
    a("s_nop 1")
    a("v_cndmask_b32 v6, v7, v6, vcc")
    a("buffer_load_dwordx4 v[8:11], v6, s[8:11], s21 offen")
    a("buffer_load_dwordx4 v[12:15], v6, s[8:11], s21 offen offset:16")
    a("s_waitcnt vmcnt(0)")
    unpack8(a, 8, 16)
    unpack8(a, 12, 24)
    for k in range(1, 16):
        a("v_add_f32 v16, v16, v%d" % (16 + k))
    xl_sum(a, [16], [17], [8, 4, 2, 1, 16, 32])
    a("v_mul_f32 v16, 0x%x, v16" % f2u(1.0 / 576))
    a("s_lshl_b32 s16, s16, 2")
    a("s_add_u32 s16, s16, 0x%x" % WS_WBAR)
    a("v_mov_b32 v6, 0")
    a("s_mov_b64 exec, 1")
    a("buffer_store_dword v16, v6, s[4:7], s16 offen")
    a.label("%s_end" % L)
    a("s_endpgm")
    return kernel_desc(name, 64, 64)
```

```python
from common import Asm, kernel_begin, kernel_desc, srd, vr, ar, xl_sum, xmap, S, D, F, ACT
import struct
def f2u(x): return struct.unpack("<I", struct.pack("<f", x))[0]
L_XN, L_XR, L_O, L_X1, L_XC = [k * ACT for k in range(5)]
L_MEAN = 5 * ACT
L_SSQ = L_MEAN + 8192
L_OB = L_SSQ + 2048 * 32
LSTR = (L_OB + 2048 * 256 + 0xffff) & ~0xffff
WS_WBAR = 2 * LSTR
WS_FL = WS_WBAR + 4096
WS_PF = WS_FL + 1048576
WS_WQ = WS_PF + 262144
WS_WO = WS_WQ + 16 * 126 * 1024
WS_P = (WS_WO + 648 * 1024 + 4096 + 0xfffff) & ~0xfffff
HXS = 20480
WS_END = WS_P + 1024 * HXS
sWS, sDG, sDU, sOUT = 4, 8, 12, 16
sW, sJ, sI, sL = 20, 21, 22, 23
sFL = 60
sSTI = 61
vLane, vL16, vL16b, vST = 252, 253, 254, 255
LDS_STG = 111616
LDS_D = 160000
```

```python
from mcommon import *
import math
SLOT = 36 * 1024

class Ctx: pass

def stamp(c):
    if not c.stamp: return
    a = c.a
    a("s_memrealtime s[98:99]")
    a("s_waitcnt lgkmcnt(0)")
    a("s_lshl_b64 exec, 1, s%d" % sSTI)
    a("v_mov_b32 v%d, s98" % vST)
    a("s_mov_b64 exec, -1")
    a("s_add_u32 s%d, s%d, 1" % (sSTI, sSTI))

PH = 4096
def signal(c, phase, nvm, sidx):
    a = c.a
    a("s_add_u32 s62, s%d, s%d" % (sidx, sFL))
    a("v_mov_b32 v250, 1")
    a("v_mov_b32 v251, %d" % (phase * PH))
    a("s_waitcnt vmcnt(%d)" % nvm)
    if c.opt.get("fine"): stamp(c)
    a("s_mov_b64 exec, 1")
    a("buffer_store_dword v250, v251, s[4:7], s62 offen sc1")
    a("s_mov_b64 exec, -1")

def wait_flags(c, phase, sidx, mask, halo=False, prev_layer=False):
    a = c.a
    loop, done = c.lab("wf_loop"), c.lab("wf_done")
    off = phase * PH - (8 * PH if prev_layer else 0)
    a("v_lshlrev_b32 v250, 2, v%d" % vLane)
    a("s_add_u32 s62, s%d, 0x%x" % (sFL, (off - 256) & 0xffffffff))
    a("s_add_u32 s63, s%d, 256" % sidx)
    if halo:
        a("v_add_u32 v251, 160, v250")
        a("v_add_u32 v250, s63, v250")
        a("v_cmp_gt_u32 vcc, 16, v%d" % vLane)
        a("s_cmp_eq_u32 s%d, 0" % sI)
        a("s_cselect_b32 s64, 0, 0x770000")
        a("v_cndmask_b32 v250, v251, v250, vcc")
        a("s_or_b32 s64, s64, 0x%x" % mask)
    else:
        a("v_add_u32 v250, s63, v250")
        a("s_mov_b32 s64, 0x%x" % mask)
    a("s_mov_b32 s65, 0")
    a("s_mov_b64 exec, s[64:65]")
    a("s_mov_b32 s63, 0")
    PD, PS = c.opt.get("pd", 1), c.opt.get("ps", 2)
    ld = lambda k: "buffer_load_dword v%d, v250, s[4:7], s62 offen sc1" % (246 + k)
    for k in range(PD - 1):
        a(ld(k))
        if PS: a("s_sleep %d" % PS)
    a.label(loop)
    for k in range(PD):
        a(ld((k + PD - 1) % PD))
        a("s_waitcnt vmcnt(%d)" % (PD - 1))
        a("v_cmp_eq_u32 vcc, 1, v%d" % (246 + k))
        a("s_cmp_eq_u64 vcc, s[64:65]")
        a("s_cbranch_scc1 %s" % done)
    if c.opt.get("pl", 8): a("s_sleep %d" % c.opt.get("pl", 8))
    a("s_add_u32 s63, s63, 1")
    a("s_cmp_lt_u32 s63, 0x%x" % c.maxpoll)
    a("s_cbranch_scc1 %s" % loop)
    a.label(done)
    a("s_mov_b64 exec, -1")

def sig_store(c, phase):
    pass

def linear_dma(c, src_sreg, ngroups, lab):
    a = c.a
    a("s_mov_b32 s63, 0")
    a.label(lab)
    for q in range(4):
        a("buffer_load_dwordx4 v%d, s[4:7], s%d offen offset:%d lds" % (vL16, src_sreg, q * 1024))
    a("s_add_u32 m0, m0, 4096")
    a("s_add_u32 s%d, s%d, 4096" % (src_sreg, src_sreg))
    a("s_add_u32 s63, s63, 1")
    a("s_cmp_lt_u32 s63, %d" % ngroups)
    a("s_cbranch_scc1 %s" % lab)

def prefetch_A(c, solo=False):
    a = c.a
    if solo: a("s_mov_b32 s24, 0")
    else: a("s_lshl_b32 s24, s%d, 15" % sW)
    a("s_mul_i32 s25, s%d, %d" % (sJ, 126 * 1024))
    a("s_add_u32 s25, s25, s24")
    a("s_add_u32 s25, s25, 0x%x" % WS_WQ)
    a("s_mov_b32 m0, s24")
    linear_dma(c, 25, 32 if solo else 8, c.lab("pfA"))

def phase_A(c):
    a, opt = c.a, c.opt
    LD, ST = "sc1", "sc1"
    L = c.lab("A")
    B0, AF, NB = 0, 144, 12
    ACC, WB = 0, 196
    vLv = [218, 219, 220]; vHv = [221, 222, 223]
    P = 336
    HALO = 126 * 1024
    a("s_lshl_b32 s24, s%d, 10" % sW)
    a("s_lshl_b32 s27, s%d, 3" % sI)
    a("s_max_u32 s28, s27, 1")
    a("s_sub_u32 s28, s28, 1")
    a("s_mul_i32 s28, s28, 18432")
    a("s_add_u32 s28, s28, s%d" % sL)
    a("s_mul_i32 s29, s%d, 5120" % sW)
    a("s_add_u32 s28, s28, s29")
    a("s_add_u32 s29, s29, %d" % HALO)
    a("s_lshl_b32 s30, s%d, 1" % sW)
    a("s_add_u32 s30, s30, s27")
    a("s_mul_i32 s31, s30, 18432")
    a("s_add_u32 s31, s31, s%d" % sL)
    a("s_mov_b32 s32, s31")
    a("v_lshrrev_b32 v2, 5, v%d" % vLane)
    a("v_mul_u32_u24 v233, 72, v2")
    a("s_mul_i32 s33, s%d, 144" % sJ)
    a("s_add_u32 s33, s33, 0x%x" % WS_WBAR)
    LVL = 49152
    for lv in range(3):
        a("v_add_u32 v%d, 0x%x, v%d" % (vLv[lv], lv * LVL, vL16))
        a("v_add_u32 v%d, s24, v%d" % (vHv[lv], vLv[lv]))
    nos = c.lab("A_nosync")
    a("s_cmp_eq_u32 s%d, 0" % sL)
    a("s_cbranch_scc1 %s" % nos)
    a("s_lshl_b32 s34, s%d, 6" % sW)
    wait_flags(c, 3, 34, 0x7777, halo=True, prev_layer=True)
    a.label(nos)
    stamp(c)
    log = []
    def em(lst, tag):
        for s_ in lst:
            a(s_)
            if s_.startswith("buffer_"): log.append(tag)
    def need(tag):
        idx = max(k for k, t_ in enumerate(log) if t_ == tag)
        return min(63, len(log) - 1 - idx)
    def xl(t):
        o = []
        for mb in range(2):
            g = []
            if mb == 0 and t % 4 == 0 and t: g.append("s_add_u32 s32, s32, 4096")
            g.append("buffer_load_dwordx4 %s, v%d, s[4:7], s32 offen offset:%d %s" % (ar(B0 + 4 * (18 * mb + t), 4), (vL16, vL16b)[mb], (t % 4) * 1024, LD))
            o.append(g)
        return o
    PRE = opt.get("A_pre", 6)
    for t in range(PRE):
        for g in xl(t): em(g, t)
    a("s_waitcnt vmcnt(%d)" % len(log))
    a("s_barrier")
    pend = [(g, t) for t in range(PRE, 18) for g in xl(t)]
    pend += [(["s_mov_b32 m0, s29"], "h")]
    pend += [(["buffer_load_dwordx4 v%d, s[4:7], s28 offen offset:%d %s lds" % (vL16, q * 1024, LD)], "h") for q in range(4)]
    pend += [(["s_add_u32 m0, m0, 4096", "s_add_u32 s28, s28, 4096"], "h"), (["buffer_load_dwordx4 v%d, s[4:7], s28 offen %s lds" % (vL16, LD)], "h")]
    pend += [(["buffer_load_dwordx4 %s, v233, s[4:7], s33 offen offset:%d" % (vr(WB + 4 * q, 4), 16 * q)], "wb") for q in range(4)]
    pend += [(["buffer_load_dwordx2 %s, v233, s[4:7], s33 offen offset:64" % vr(WB + 16, 2)], "wb")]
    stream = [("m", f) for f in range(126)] + [(k, t) for t in range(18) for k in ("hb", "a6", "aw")]
    def rd(n):
        k, x = stream[n]
        vs = vLv
        if k == "m": o = x * 1024
        elif k == "hb": o = HALO + x * 1024
        elif k == "a6": o = (x * 7 + 6) * 1024
        else: o = x * 7168; vs = vHv
        lv = min(o // LVL, 2)
        return "ds_read_b128 %s, v%d offset:%d" % (ar(AF + 4 * (n % NB), 4), vs[lv], o - lv * LVL)
    def fb(n): return ar(AF + 4 * (n % NB), 4)
    DIST = NB - 4
    nxt = 0
    for _ in range(DIST):
        a(rd(nxt)); nxt += 1
    def mf(acc, A, B, first):
        return "v_mfma_f32_16x16x32_bf16 %s, %s, %s, %s" % (vr(acc, 4), A, B, "0" if first else vr(acc, 4))
    for f in range(126):
        t, k = f // 7, f % 7
        if k == 0: a("s_waitcnt vmcnt(%d)" % need(t))
        if nxt == 126:
            a("s_waitcnt vmcnt(%d)" % need("h"))
            a("s_barrier")
        if f % 2 == 0: a("s_waitcnt lgkmcnt(%d)" % (nxt - 1 - (f + 1)))
        a(mf(ACC + 4 * k, fb(f), ar(B0 + 4 * t, 4), t == 0))
        a(rd(nxt)); nxt += 1
        a(mf(ACC + 4 * (7 + k), fb(f), ar(B0 + 4 * (18 + t), 4), t == 0))
        if pend and f % 2 == 0:
            g, tag = pend.pop(0); em(g, tag)
    assert not pend
    for t in range(18):
        n = 126 + 3 * t
        a("s_waitcnt lgkmcnt(%d)" % (nxt - 1 - (n + 2)))
        a(mf(ACC + 60, fb(n + 1), fb(n), t == 0))
        for _ in range(2):
            if nxt < len(stream): a(rd(nxt)); nxt += 1
        a(mf(ACC + 56, fb(n + 2), fb(n), t == 0))
        if nxt < len(stream): a(rd(nxt)); nxt += 1
    stamp(c)
    a("s_cmp_ge_u32 s%d, 6" % sJ)
    a("s_cselect_b32 s66, 6, 0")
    a("s_cselect_b32 s67, 4, 0")
    a("s_sub_u32 s66, s%d, s66" % sJ)
    a("s_add_u32 s67, s67, s27")
    a("s_add_u32 s67, s67, s%d" % sW)
    a("s_mul_i32 s46, s66, %d" % (108 * 1024))
    a("s_mul_i32 s47, s%d, %d" % (sW, 27 * 1024))
    a("s_add_u32 s46, s46, s47")
    a("s_add_u32 s46, s46, 0x%x" % WS_WO)
    a("s_cmp_ge_u32 s%d, 12" % sJ)
    a("s_cselect_b32 s46, 0x7f000000, s46")
    a("s_mov_b32 m0, s47")
    pf = []
    for g in range(7):
        for q in range(4):
            if g == 6 and q == 3: continue
            x = ["buffer_load_dwordx4 v%d, s[4:7], s46 offen offset:%d lds" % (vL16, q * 1024)]
            if q == 3: x += ["s_add_u32 m0, m0, 4096", "s_add_u32 s46, s46, 4096"]
            pf.append(x)
    cnt = [0]
    PFS = opt.get("A_pfs", 5)
    def v(s_):
        a(s_)
        cnt[0] += 1
        if pf and cnt[0] % PFS == 0:
            for x in pf.pop(0): a(x)
    a("v_and_b32 v64, 15, v%d" % vLane)
    a("v_lshrrev_b32 v65, 4, v%d" % vLane)
    a("v_mul_u32_u24 v64, %d, v64" % P)
    a("v_add_u32 v64, %d, v64" % LDS_STG)
    a("v_lshl_add_u32 v66, v65, 3, v64")
    a("v_lshl_add_u32 v67, v65, 4, v64")
    a("s_mul_i32 s34, s%d, %d" % (sW, 32 * P))
    a("s_add_u32 s34, s34, %d" % (16 * P))
    a("v_add_u32 v68, s34, v66")
    a("v_add_u32 v69, s34, v67")
    a("s_barrier")
    for mb in range(2):
        for nb, off in ((2, 128), (3, 192), (6, 256)):
            r = ACC + 4 * (7 * mb + nb)
            a("ds_write_b128 v69, %s offset:%d" % (vr(r, 4), off + mb * 16 * P))
        for nb, off in ((0, 0), (1, 32), (4, 64), (5, 96)):
            r = ACC + 4 * (7 * mb + nb)
            a("v_cvt_pk_bf16_f32 v%d, v%d, v%d" % (r, r, r + 1))
            a("v_cvt_pk_bf16_f32 v%d, v%d, v%d" % (r + 1, r + 2, r + 3))
            a("ds_write_b64 v68, %s offset:%d" % (vr(r, 2), off + mb * 16 * P))
    a("ds_write_b128 v67, v[60:63] offset:256")
    a("s_cmp_ge_u32 s%d, 2" % sW)
    a("s_cbranch_scc1 %s_hv" % L)
    a("s_lshl_b32 s35, s%d, 5" % sW)
    a("v_add_u32 v66, s35, v66")
    a("v_cvt_pk_bf16_f32 v56, v56, v57")
    a("v_cvt_pk_bf16_f32 v57, v58, v59")
    a("ds_write_b64 v66, v[56:57]")
    a("s_branch %s_hd" % L)
    a.label("%s_hv" % L)
    a("s_lshl_b32 s35, s%d, 6" % sW)
    a("v_add_u32 v67, s35, v67")
    a("ds_write_b128 v67, v[56:59]")
    a.label("%s_hd" % L)
    vK, vV, vTt, vQt, vGR = 225, 226, 227, 228, 229
    v("v_and_b32 v64, 31, v%d" % vLane)
    v("v_lshrrev_b32 v65, 5, v%d" % vLane)
    v("v_mul_u32_u24 v66, %d, v64" % P)
    v("s_add_u32 s34, s34, %d" % (LDS_STG - 14 * P))
    v("v_add_u32 v66, s34, v66")
    v("v_lshl_add_u32 v%d, v65, 5, v66" % vK)
    v("v_lshl_add_u32 v%d, v65, 6, v66" % vV)
    v("v_lshl_add_u32 v%d, v65, 4, v66" % vTt)
    v("v_lshl_add_u32 v%d, v65, 3, v66" % vQt)
    v("s_lshl_b32 s35, s30, 4")
    v("v_add_u32 v%d, s35, v64" % vGR)
    vO, vO2, vOB = 230, 231, 232
    v("v_lshrrev_b32 v66, 4, v64")
    v("v_mul_u32_u24 v66, 18432, v66")
    v("v_and_b32 v67, 15, v64")
    v("v_lshl_add_u32 v66, v67, 4, v66")
    v("v_lshl_add_u32 v%d, v65, 9, v66" % vO)
    v("v_lshrrev_b32 v66, 4, v64")
    v("v_lshlrev_b32 v66, 12, v66")
    v("v_lshl_add_u32 v%d, v67, 4, v66" % vOB)
    v("s_lshl_b32 s48, s%d, 10" % sJ)
    v("s_add_u32 s48, s48, s31")
    v("s_add_u32 s48, s48, 0x%x" % L_O)
    v("s_lshl_b32 s51, s%d, 8" % sJ)
    v("s_lshl_b32 s49, s30, 12")
    v("s_add_u32 s51, s51, s49")
    v("s_add_u32 s51, s51, s%d" % sL)
    v("s_add_u32 s51, s51, 0x%x" % L_OB)
    a("s_waitcnt lgkmcnt(0)")
    a("s_barrier")
    stamp(c)
    KR, TR, VA, Q, S_, O = 0, 64, 96, 160, 170, 178
    dl = []
    def ds(s_, tag):
        a(s_); dl.append(tag)
    def dwait(tag):
        idx = max(k for k, t_ in enumerate(dl) if t_ == tag)
        a("s_waitcnt lgkmcnt(%d)" % min(15, len(dl) - 1 - idx))
    ds("ds_read_b128 %s, v%d offset:%d" % (vr(Q, 4), vK, 14 * P + 64), "q")
    ds("ds_read_b128 %s, v%d offset:%d" % (vr(Q + 4, 4), vK, 14 * P + 80), "q")
    ds("ds_read_b64 %s, v%d offset:%d" % (vr(Q + 8, 2), vQt, 14 * P + 288), "q")
    def kread(j):
        o = (14 - 2 * j) * P
        ds("ds_read_b128 %s, v%d offset:%d" % (vr(KR + 8 * j, 4), vK, o), "k%d" % j)
        ds("ds_read_b128 %s, v%d offset:%d" % (vr(KR + 8 * j + 4, 4), vK, o + 16), "k%d" % j)
        ds("ds_read_b128 %s, v%d offset:%d" % (vr(TR + 4 * j, 4), vTt, o + 256), "k%d" % j)
    def vreg(j): return (VA + 16 * j) if j < 4 else (KR + 16 * (j - 4))
    def vread(j):
        o = (14 - 2 * j) * P + 128
        for q in range(4):
            ds("ds_read_b128 %s, v%d offset:%d" % (vr(vreg(j) + 4 * q, 4), vV, o + 16 * q), "v%d" % j)
    for j in range(4): kread(j)
    a("v_mov_b32 v%d, 0xff7fffff" % (O + 1))
    for j in range(8):
        dwait("k%d" % j)
        if j < 4: kread(j + 4)
        else: vread(j - 4)
        v("v_mul_f32 v%d, v%d, v%d" % (S_ + j, Q + 8, TR + 4 * j))
        v("v_fmac_f32 v%d, v%d, v%d" % (S_ + j, Q + 9, TR + 4 * j + 1))
        for p in range(8):
            v("v_dot2_f32_bf16 v%d, v%d, v%d, v%d" % (S_ + j, Q + p, KR + 8 * j + p, S_ + j))
        if j > 0:
            a("v_cmp_le_u32 vcc, %d, v%d" % (2 * j, vGR))
            a("s_nop 1")
            a("v_cndmask_b32 v%d, v%d, v%d, vcc" % (S_ + j, O + 1, S_ + j))
    for j in range(4, 8): vread(j)
    v("v_max3_f32 v%d, v%d, v%d, v%d" % (O, S_, S_ + 1, S_ + 2))
    v("v_max3_f32 v%d, v%d, v%d, v%d" % (O, O, S_ + 3, S_ + 4))
    v("v_max3_f32 v%d, v%d, v%d, v%d" % (O, O, S_ + 5, S_ + 6))
    v("v_max_f32 v%d, v%d, v%d" % (O, O, S_ + 7))
    a("s_mov_b32 s52, 0x%x" % f2u(18 ** -0.5 * math.log2(math.e)))
    for j in range(8): v("v_sub_f32 v%d, v%d, v%d" % (S_ + j, S_ + j, O))
    for j in range(8): v("v_mul_f32 v%d, s52, v%d" % (S_ + j, S_ + j))
    for j in range(8): v("v_exp_f32 v%d, v%d" % (S_ + j, S_ + j))
    SUM = Q
    v("v_add_f32 v%d, v%d, v%d" % (SUM, S_, S_ + 1))
    for j in range(2, 8): v("v_add_f32 v%d, v%d, v%d" % (SUM, SUM, S_ + j))
    a("v_rcp_f32 v%d, v%d" % (SUM, SUM))
    a("s_nop 0")
    for j in range(8): v("v_mul_f32 v%d, v%d, v%d" % (S_ + j, S_ + j, SUM))
    while pf:
        for x in pf.pop(0): a(x)
    for j in range(8):
        dwait("v%d" % j)
        pj = vr(S_ + (j & ~1), 2)
        sel = "op_sel:[0,%d,0] op_sel_hi:[1,%d,1]" % (j & 1, j & 1)
        for p in range(9):
            src = vr(vreg(j) + 2 * p, 2) if p < 8 else vr(TR + 4 * j + 2, 2)
            if j == 0:
                a("v_pk_mul_f32 %s, %s, %s op_sel:[0,0] op_sel_hi:[1,0]" % (vr(O + 2 * p, 2), src, pj))
            else:
                a("v_pk_fma_f32 %s, %s, %s, %s %s" % (vr(O + 2 * p, 2), src, pj, vr(O + 2 * p, 2), sel))
    for p in range(9):
        a("v_cvt_pk_bf16_f32 v%d, v%d, v%d" % (VA + p, O + 2 * p, O + 2 * p + 1))
    a("buffer_store_dwordx4 %s, v%d, s[4:7], s48 offen %s" % (vr(VA, 4), vO, ST))
    a("buffer_store_dwordx4 %s, v%d, s[4:7], s48 offen offset:256 %s" % (vr(VA + 4, 4), vO, ST))
    a("s_waitcnt vmcnt(29)")
    a("v_mul_f32 v%d, v%d, v%d" % (VA + 10, O, WB))
    a("v_mul_f32 v%d, v%d, v%d" % (VA + 11, O + 1, WB + 1))
    for p in range(2, 18):
        a("v_fmac_f32 v%d, v%d, v%d" % (VA + 10 + (p & 1), O + p, WB + p))
    a("v_mov_b32 v%d, v%d" % (VA + 9, VA + 8))
    a("v_add_f32 v%d, v%d, v%d" % (VA + 10, VA + 10, VA + 11))
    a("s_nop 0")
    a("v_permlane32_swap_b32 v%d, v%d" % (VA + 8, VA + 9))
    xl_sum(a, [VA + 10], [VA + 11], [32])
    a("s_mov_b64 exec, 0xffffffff")
    a("buffer_store_dwordx4 %s, v%d, s[4:7], s51 offen %s" % (vr(VA + 8, 4), vOB, ST))
    a("s_mov_b64 exec, -1")
    stamp(c)

def phase_B(c):
    a, opt = c.a, c.opt
    LD, ST = "sc1", "sc1"
    B0, AF, NB = 0, 72, 8
    ACC, XR, RC = 32, 56, 68
    idle, join = c.lab("B_idle"), c.lab("B_join")
    a("s_mul_i32 s68, s67, 18432")
    a("s_add_u32 s68, s68, s%d" % sL)
    a("s_add_u32 s69, s68, 0x%x" % L_O)
    a("s_mul_i32 s70, s66, 3072")
    a("s_add_u32 s68, s68, s70")
    a("v_and_b32 v4, 15, v%d" % vLane)
    a("v_lshrrev_b32 v5, 4, v%d" % vLane)
    a("v_lshlrev_b32 v6, 4, v4")
    a("v_lshl_add_u32 v6, v5, 9, v6")
    a("v_lshlrev_b32 v7, 2, v4")
    a("s_lshl_b32 s70, s67, 12")
    a("s_add_u32 s70, s70, s%d" % sL)
    a("s_add_u32 s70, s70, 0x%x" % L_OB)
    a("s_lshl_b32 s71, s67, 6")
    a("s_add_u32 s71, s71, s%d" % sL)
    a("s_add_u32 s71, s71, 0x%x" % L_MEAN)
    a("s_add_u32 s72, s68, 0x%x" % L_XR)
    a("s_lshl_b32 s73, s%d, 6" % sW)
    a("s_lshl_b32 s74, s%d, 2" % sJ)
    a("s_add_u32 s73, s73, s74")
    signal(c, 0, 0, 73)
    a("s_barrier")
    a("s_cmp_ge_u32 s%d, 12" % sJ)
    a("s_cbranch_scc1 %s" % idle)
    a("v_add_u32 v13, 0xd800, v%d" % vL16)
    def rd(i):
        o = i * 1024
        v = vL16
        if o >= 0xd800: v, o = 13, o - 0xd800
        return "ds_read_b128 %s, v%d offset:%d" % (ar(AF + 4 * (i % NB), 4), v, o)
    for i in range(NB - 1): a(rd(i))
    a("s_bfe_u32 s73, s67, 0x20001")
    a("s_lshl_b32 s73, s73, 6")
    wait_flags(c, 0, 73, 0xffff)
    stamp(c)
    log = []
    def em(x, tag):
        a(x)
        if x.startswith("buffer_"): log.append(tag)
    def need(tag):
        idx = max(k for k, t_ in enumerate(log) if t_ == tag)
        return min(63, len(log) - 1 - idx)
    for t in range(16):
        if t % 4 == 0 and t: a("s_add_u32 s69, s69, 4096")
        em("buffer_load_dwordx4 %s, v%d, s[4:7], s69 offen offset:%d %s" % (ar(B0 + 4 * t, 4), vL16, (t % 4) * 1024, LD), t)
    for q in range(4):
        em("buffer_load_dwordx4 %s, v6, s[4:7], s70 offen offset:%d %s" % (vr(RC + 4 * q, 4), (q >> 1) * 2048 + (q & 1) * 256, LD), "rc")
    for u in range(3):
        em("buffer_load_dwordx4 %s, v%d, s[4:7], s72 offen offset:%d %s" % (vr(XR + 4 * u, 4), vL16, u * 1024, LD), "xr")
    em("buffer_load_dword v12, v7, s[4:7], s71 offen %s" % LD, "xr")
    slo = list(c.C_slo)
    for f in range(108):
        t, db = f // 6, f % 6
        if db == 0 and t < 16: a("s_waitcnt vmcnt(%d)" % need(t))
        if f == 90:
            a("s_waitcnt vmcnt(%d)" % need("rc"))
            a("v_add_f32 v8, v%d, v%d" % (RC + 2, RC + 6))
            a("v_add_f32 v9, v%d, v%d" % (RC + 10, RC + 14))
            for q in (0, 2):
                a("v_mov_b32 v%d, v%d" % (RC + 4 * q + 2, RC + 4 * q + 4))
                a("v_mov_b32 v%d, v%d" % (RC + 4 * q + 3, RC + 4 * q + 5))
            a("v_add_f32 v8, v8, v9")
            xl_sum(a, [8], [9], [16, 32])
        if f % 2 == 0: a("s_waitcnt lgkmcnt(%d)" % max(0, min(NB - 3, 106 - f)))
        cc = "0" if t == 0 else vr(ACC + 4 * db, 4)
        bop = ar(B0 + 4 * t, 4) if t < 16 else vr(RC + 8 * (t - 16), 4)
        a("v_mfma_f32_16x16x32_bf16 %s, %s, %s, %s" % (vr(ACC + 4 * db, 4), ar(AF + 4 * (f % NB), 4), bop, cc))
        if f + NB - 1 < 108: a(rd(f + NB - 1))
        if slo and f % 6 == 5 and f >= opt.get("B_slo", 5):
            for x in slo.pop(0): em(x, "slo")
        if f == 44:
            assert not slo
            a("s_barrier")
            slo = list(c.C_shi)
    assert not slo
    stamp(c)
    a("s_add_u32 s71, s68, 0x%x" % L_X1)
    a("s_add_u32 s72, s68, 0x%x" % L_XC)
    a("s_waitcnt vmcnt(%d)" % need("xr"))
    a("v_add_f32 v8, v8, v12")
    a("v_mov_b32 v9, 0")
    for u in range(3):
        for k in range(4):
            a("v_lshlrev_b32 v16, 16, v%d" % (XR + 4 * u + k))
            a("v_and_b32 v17, 0xffff0000, v%d" % (XR + 4 * u + k))
            a("v_add_f32 v16, v16, v%d" % (ACC + 8 * u + 2 * k))
            a("v_add_f32 v17, v17, v%d" % (ACC + 8 * u + 2 * k + 1))
            a("v_cvt_pk_bf16_f32 v%d, v16, v17" % (XR + 4 * u + k))
            a("v_lshlrev_b32 v16, 16, v%d" % (XR + 4 * u + k))
            a("v_and_b32 v17, 0xffff0000, v%d" % (XR + 4 * u + k))
            a("v_sub_f32 v%d, v16, v8" % (ACC + 8 * u + 2 * k))
            a("v_sub_f32 v%d, v17, v8" % (ACC + 8 * u + 2 * k + 1))
            a("v_cvt_pk_bf16_f32 v%d, v%d, v%d" % (20 + 4 * u + k, ACC + 8 * u + 2 * k, ACC + 8 * u + 2 * k + 1))
        a("buffer_store_dwordx4 %s, v%d, s[4:7], s72 offen offset:%d %s" % (vr(20 + 4 * u, 4), vL16, u * 1024, ST))
    a("s_and_b32 s73, s67, 7")
    a("s_lshl_b32 s73, s73, 5")
    a("s_lshl_b32 s74, s66, 2")
    a("s_add_u32 s73, s73, s74")
    for k in range(24):
        a("v_fmac_f32 v9, v%d, v%d" % (ACC + k, ACC + k))
    xl_sum(a, [9], [10], [16, 32])
    signal(c, 1, 0, 73)
    a("s_barrier")
    for g in c.C_rest:
        for x in g: a(x)
    for u in range(3):
        a("buffer_store_dwordx4 %s, v%d, s[4:7], s71 offen offset:%d %s" % (vr(XR + 4 * u, 4), vL16, u * 1024, ST))
    a("v_lshlrev_b32 v6, 5, v4")
    a("s_lshl_b32 s69, s67, 9")
    a("s_add_u32 s69, s69, s74")
    a("s_add_u32 s69, s69, s%d" % sL)
    a("s_add_u32 s69, s69, 0x%x" % L_SSQ)
    a("s_mov_b64 exec, 0xffff")
    a("buffer_store_dword v9, v6, s[4:7], s69 offen %s" % ST)
    a("s_mov_b64 exec, -1")
    a("s_branch %s" % join)
    a.label(idle)
    for g in c.C_slo + c.C_shi + c.C_rest:
        for x in g: a(x)
    a("s_waitcnt vmcnt(9)")
    a("s_barrier")
    stamp(c); stamp(c)
    if c.opt.get("fine"): stamp(c)
    a.label(join)
    stamp(c)

def phase_C(c):
    a, opt = c.a, c.opt
    ST_FLAGS, LD_FLAGS = "sc1", "sc1"
    NB = opt.get("nb", 6)
    L = c.lab("C")
    T0, AG, AU, HB = 0, 32, 64, 96
    H0 = HB + 8
    vDX = [176, 177, 178, 179]
    vDW = [180, 181, 182, 183]
    vR = [[186 + 4 * lv + fb for fb in range(4)] for lv in range(3)]
    vN = [198, 199]
    NV = 200
    LVL = 49152
    X0, AF = 0, 144
    NA = AF + 4 * NB
    sWB = 24
    sRG, sRU = 25, 26
    sD0, sD1, sD2l, sD2h = 27, 28, 29, 30
    sCnt, sHI = 32, 33
    sSt, sStB = 34, 35
    sSlotN, sSlotD, sSlotC = 44, 45, 48
    sW0, sWd0 = 46, 47
    sT, sS, sX = 49, 50, 51

    a("s_mul_i32 s%d, s%d, 9216" % (sWB, sW))
    a("v_mov_b32 v2, v%d" % vLane)
    a("v_lshrrev_b32 v3, 3, v2")
    a("v_and_b32 v4, 7, v2")
    a("v_bfe_u32 v5, v2, 4, 2")
    a("v_lshlrev_b32 v5, 1, v5")
    a("v_xor_b32 v4, v4, v5")
    a("v_and_b32 v6, 3, v4")
    a("v_lshlrev_b32 v4, 4, v4")
    a("v_lshlrev_b32 v6, 4, v6")
    a("s_movk_i32 s%d, 9216" % sT)
    a("v_mad_u32_u24 v%d, v3, s%d, v4" % (vDX[0], sT))
    a("v_mad_u32_u24 v200, v3, s%d, v6" % sT)
    a("s_movk_i32 s%d, 1152" % sT)
    a("v_mad_u32_u24 v%d, v3, s%d, v4" % (vDW[0], sT))
    a("v_mad_u32_u24 v236, v3, s%d, v6" % sT)
    for q in (1, 2, 3):
        a("v_add_u32 v%d, 0x%x, v%d" % (vDX[q], q * (8 * 9216 - 1024), vDX[0]))
        a("v_add_u32 v%d, 0x%x, v200" % (200 + q, q * (8 * 9216 - 1024)))
        a("v_add_u32 v%d, 0x%x, v%d" % (vDW[q], q * (8 * 1152 - 1024), vDW[0]))
        a("v_add_u32 v%d, 0x%x, v236" % (236 + q, q * (8 * 1152 - 1024)))
    a("v_lshrrev_b32 v3, 2, v2")
    a("v_and_b32 v4, 3, v2")
    a("v_lshlrev_b32 v4, 3, v4")
    a("v_lshl_add_u32 v4, v3, 7, v4")
    a("v_bfe_u32 v5, v2, 3, 2")
    a("v_lshl_add_u32 v%d, v5, 5, v4" % vR[0][0])
    for fb in (1, 2, 3):
        a("v_xor_b32 v%d, %d, v%d" % (vR[0][fb], fb << 5, vR[0][0]))
    for lv in (1, 2):
        for fb in range(4):
            a("v_add_u32 v%d, 0x%x, v%d" % (vR[lv][fb], lv * LVL, vR[0][fb]))
    a("s_mul_i32 s%d, s%d, 576" % (sRG, sJ))
    a("s_mul_i32 s%d, s%d, %d" % (sT, sW, 72 * 9216))
    a("s_add_u32 s%d, s%d, s%d" % (sRG, sRG, sT))
    sHXo, sHXp, sW0p, sD0p, sFo, sFp, sStH, sT2 = 76, 77, 78, 79, 80, 81, 82, 83
    a("s_mul_i32 s%d, s%d, %d" % (sW0, sJ, 288 * 1152))
    a("s_xor_b32 s%d, s%d, 1" % (sT2, sJ))
    a("s_mul_i32 s%d, s%d, %d" % (sW0p, sT2, 288 * 1152))
    a("s_mul_i32 s%d, s%d, %d" % (sT, sW, 72 * 1152))
    a("s_add_u32 s%d, s%d, s%d" % (sW0, sW0, sT))
    a("s_add_u32 s%d, s%d, s%d" % (sW0p, sW0p, sT))
    a("s_cmp_eq_u32 s%d, 0" % sW)
    a("s_cselect_b32 s52, 8, -1")
    a("s_cselect_b32 s53, -8, 1")
    a("s_mul_i32 s52, s52, %d" % (32 * 1152))
    a("s_mul_i32 s53, s53, %d" % (32 * 1152))
    a("s_bitcmp0_b32 s%d, 0" % sJ)
    a("s_cselect_b32 s%d, 512, 0" % sS)
    a("s_cselect_b32 s54, 0, 64")
    a("s_cselect_b32 s%d, s53, %d" % (sWd0, 32 * 1152))
    a("s_cselect_b32 s%d, %d, s53" % (sD0p, 32 * 1152))
    a("s_cselect_b32 s53, s52, 640")
    a("s_cselect_b32 s55, 0, 640")
    a("s_cselect_b32 s52, 0, s52")
    a("s_cselect_b32 s%d, 9, 1" % sStH)
    a("s_cselect_b32 s%d, 1, 2" % sSt)
    a("s_lshl_b32 s%d, s%d, 11" % (sStH, sStH))
    a("s_lshl_b32 s%d, s%d, 11" % (sSt, sSt))
    a("s_add_u32 s%d, s%d, s%d" % (sS, sS, sRG))
    a("s_add_u32 s%d, s%d, s54" % (sRG, sRG))
    a("s_mov_b32 s%d, s%d" % (sRU, sRG))
    a("s_add_u32 s%d, s%d, s53" % (sW0, sW0))
    a("s_add_u32 s%d, s%d, s52" % (sW0p, sW0p))
    a("s_add_u32 s%d, s%d, s55" % (sW0p, sW0p))
    a("s_lshl_b32 s%d, s%d, 6" % (sT, sI))
    a("s_add_u32 s%d, s%d, s%d" % (sT, sT, sW))
    a("s_lshl_b32 s52, s%d, 2" % sJ)
    a("s_lshl_b32 s53, s%d, 2" % sT2)
    a("s_add_u32 s%d, s%d, s52" % (sHXo, sT))
    a("s_add_u32 s%d, s%d, s53" % (sHXp, sT))
    a("s_mul_i32 s%d, s%d, %d" % (sHXo, sHXo, HXS))
    a("s_mul_i32 s%d, s%d, %d" % (sHXp, sHXp, HXS))
    a("s_add_u32 s%d, s%d, 0x%x" % (sHXo, sHXo, WS_P))
    a("s_add_u32 s%d, s%d, 0x%x" % (sHXp, sHXp, WS_P))
    a("s_add_u32 s%d, s%d, s%d" % (sSt, sSt, sHXp))
    a("s_add_u32 s%d, s%d, s%d" % (sStH, sStH, sHXp))
    a("s_add_u32 s%d, s%d, 2048" % (sHXp, sHXp))
    a("s_lshl_b32 s%d, s%d, 6" % (sT, sW))
    a("s_add_u32 s%d, s%d, s%d" % (sT, sT, sFL))
    a("s_add_u32 s%d, s%d, 0x%x" % (sT, sT, 4 * PH))
    a("s_add_u32 s%d, s%d, s52" % (sFo, sT))
    a("s_add_u32 s%d, s%d, s53" % (sFp, sT))
    a("v_cmp_eq_u32 vcc, 0, v%d" % vLane)
    a("v_bfrev_b32 v240, 1")
    a("v_cndmask_b32 v240, v240, 0, vcc")
    a("v_mov_b32 v242, 1")
    a("s_mov_b32 s%d, 0x%x" % (sD0, 32 * 9216))
    a("s_mov_b32 s%d, 0x%x" % (sD1, 32 * 9216))
    a("s_mov_b32 s%d, 0x%x" % (sD2l, (288 - 64) * 9216))
    a("s_mov_b32 s%d, 0x%x" % (sD2h, (-(288 + 64) * 9216 + 128) & 0xffffffff))
    a("s_lshl_b32 s%d, s%d, 2" % (sT, sI))
    a("s_add_u32 s%d, s%d, s%d" % (sT, sT, sW))
    a("s_mul_i32 s%d, s%d, %d" % (sT, sT, 36 * 1024))
    a("s_add_u32 s%d, s%d, 0x%x" % (sX, sT, L_XC))
    a("s_add_u32 s%d, s%d, s%d" % (sX, sX, sL))
    a("s_mov_b32 s%d, 0" % sHI)
    a("s_mov_b32 s%d, -1" % sCnt)
    a("s_mov_b32 s56, 0x0f0f0f0f")
    a("s_mov_b32 s57, 0xf0f0f0f0")
    srd(a, sDG, 36, D * F * 2)
    srd(a, sDU, 38, D * F * 2)
    def dma_stage(vo, srdn, run, m0f, deltas):
        out = []
        for g in range(3):
            n = 4 if g < 2 else 1
            out.append([m0f(g)])
            for q in range(n):
                grp = ["buffer_load_dwordx4 v%d, s[%d:%d], s%d offen offset:%d lds" % (vo[q], srdn, srdn + 3, run, q * 1024)]
                if q == n - 1:
                    grp.append("s_add_u32 s%d, s%d, %s" % (run, run, deltas[g]))
                out.append(grp)
        return out
    def R(s_): return (s_ + 3) % 4

    def m0s(slot):
        return lambda g: "s_add_u32 m0, s%d, 0x%x" % (sWB, R(slot) * SLOT + g * 4096)
    def s_stage(slot, half):
        oo = []
        for g in range(3):
            n = 4 if g < 2 else 1
            o = []
            oo.append(o)
            o.append("s_add_u32 s55, s%d, 0x%x" % (sS, (288 * half + 32 * g) * 9216))
            o.append(m0s(slot)(g))
            for (srdn, ex) in ((sDG, "s_mov_b64 exec, s[56:57]"), (sDU, "s_not_b64 exec, s[56:57]")):
                o.append(ex)
                for q in range(n):
                    o.append("buffer_load_dwordx4 v%d, s[%d:%d], s55 offen offset:%d lds" % (200 + q, srdn, srdn + 3, q * 1024))
            o.append("s_mov_b64 exec, -1")
        return oo
    def xload(t):
        o = []
        if t % 4 == 0 and t:
            o.append("s_add_u32 s%d, s%d, 4096" % (sX, sX))
        for mb in range(2):
            o.append("buffer_load_dwordx4 %s, v%d, s[%d:%d], s%d offen offset:%d %s" % (ar(X0 + 4 * (18 * mb + t), 4), (vL16, vL16b)[mb], sWS, sWS + 3, sX, (t % 4) * 1024, LD_FLAGS))
        return o
    log = []
    def emit_logged(lst, tag, out=None):
        for s_ in lst:
            (out.append(s_) if out is not None else a(s_))
            if s_.startswith("buffer_"):
                log.append(tag)
    def need(tag):
        idx = max(k for k, t_ in enumerate(log) if t_ == tag)
        return min(63, len(log) - 1 - idx)

    def fr(i):
        return AF + 4 * (i % NB)
    def reads(i, desc):
        fb, t = desc[2](i)
        if desc[0] == "D":
            o = R(desc[1]) * SLOT + t * 4096
            lv = min(o // LVL, 2)
            v = vR[lv][fb]; o -= lv * LVL
        else:
            v = desc[1][fb]; o = t * 4096
        assert o + 2048 < 65536
        return ["ds_read_b64_tr_b16 %s, v%d offset:%d" % (ar(fr(i), 2), v, o),
                "ds_read_b64_tr_b16 %s, v%d offset:%d" % (ar(fr(i) + 2, 2), v, o + 2048)]
    DIST = NB - 1
    BAR = 36 - DIST
    assert 36 % NB == 0
    IDXSPAN = opt.get("idxspan", False)
    DSP = opt.get("dsp", 5)
    POS = [(i, g) for i in range(36) for g in ((0, 1) if i % 2 == 0 else (0,))]
    class Fill:
        def __init__(s): s.d = {}
        def free(s, p): return p not in s.d
        def put(s, k, grp):
            s.d.setdefault(POS[k], []).extend(grp)
        def seq(s, items, start, step=1):
            k = start
            for g in items:
                while k < len(POS) and POS[k] in s.d: k += 1
                if k >= len(POS):
                    k = len(POS) - 1
                s.d.setdefault(POS[k], []).extend(g)
                k += step
            return k
        def nvm(s, lo, hi):
            return sum(1 for (i, g), l in s.d.items() if lo <= i < hi for x in l if x.startswith("buffer_"))
    def kpos(i):
        return POS.index((i, 0))
    def place_dma(fill, groups, start, step):
        k = start
        pend = []
        for g in groups:
            if "m0" in g[0]:
                pend = g; continue
            if pend:
                fill.put(k - 1, pend); pend = []
            fill.put(k, g[:1])
            if len(g) > 1: fill.put(k + 1, g[1:])
            k += step
    o1 = lambda i: (i % 4, i // 4)
    o2 = lambda i: (2 * (i // 18) + (i % 2), (i % 18) // 2)
    def mf_g1(acc, kbase, first):
        def f(i):
            fb, t = o1(i)
            r = []
            for mb in range(2):
                ac = acc + (fb * 2 + mb) * 4
                c = "0" if (first and t == 0) else vr(ac, 4)
                r.append("v_mfma_f32_16x16x32_bf16 %s, %s, %s, %s" % (vr(ac, 4), ar(fr(i), 4), ar(X0 + 4 * (18 * mb + kbase + t), 4), c))
            return r
        return f
    def cvts(hbase, src):
        cv = []
        for u in range(2):
            for mb in range(2):
                for k in range(4):
                    t = src + ((2 * u + k // 2) * 2 + mb) * 4 + 2 * (k % 2)
                    cv.append("v_cvt_pk_bf16_f32 v%d, v%d, v%d" % (hbase + 8 * u + 4 * mb + k, t, t + 1))
        return cv
    def em(s_):
        if opt.get("nodma") and s_.endswith(" lds"): return
        if opt.get("nost") and s_.startswith("buffer_store"): return
        (a.label(s_[:-1]) if s_.endswith(":") else a(s_))
    def gstage(cur, nxt, mf, fill, barwait, em=em):
        for i in range(36):
            if i == BAR and nxt is not None:
                for s_ in barwait: em(s_)
                a("s_barrier")
            if i % 2 == 0:
                a("s_waitcnt lgkmcnt(%d)" % (2 * (DIST - 2) if nxt is not None else max(0, min(2 * (DIST - 2), 2 * (34 - i)))))
            if i + DIST < 36: rd = reads(i + DIST, cur)
            elif nxt is not None: rd = reads(i + DIST - 36, nxt)
            else: rd = []
            m = mf(i)
            a(m[0])
            if rd: a(rd[0])
            for s_ in fill.d.get((i, 0), []): em(s_)
            a(m[1])
            if rd: a(rd[1])
            for s_ in fill.d.get((i, 1), []): em(s_)

    dl = ["s%d" % sD0, "s%d" % sD1, "s%d" % sD2l]
    dh = ["s%d" % sD0, "s%d" % sD1, "s%d" % sD2h]
    D_ = lambda s: ("D", s, o1)
    side = []

    c.C_slo = s_stage(0, 0)
    c.C_shi = s_stage(1, 1)
    c.C_rest = [(g + ["s_nop 0"] if "m0" in g[0] else g) for g in dma_stage(vDX, sDG, sRG, m0s(2), dl)]
    yield
    for i in range(DIST):
        for s_ in reads(i, D_(0)): a(s_)
    a("s_lshl_b32 s%d, s%d, 6" % (sT, sW))
    wait_flags(c, 1, sT, 0x3f3f)
    stamp(c)
    CPRE = opt.get("C_pre", 6)
    for t in range(CPRE):
        emit_logged(xload(t), "x%d" % t)
    rest = list(range(CPRE, 18))
    sched = {}
    tt = 1
    while rest:
        sched[tt] = [(xload(t), "x%d" % t) for t in rest[:2]]; rest = rest[2:]; tt += 1
    a("s_mov_b64 vcc, -1")
    a("s_waitcnt vmcnt(%d)" % need("x0"))
    a("s_branch %s_C" % L)
    fillC, fillD = Fill(), Fill()
    for (nm, fill) in (("C", fillC), ("D", fillD)):
        for t in range(1, 10 if nm == "C" else 9):
            lab = "%s_s%s%d" % (L, nm, t)
            fill.d[(4 * t - 1, 0)] = ["s_cbranch_vccnz %s" % lab, lab + "r:"]
    place_dma(fillC, dma_stage(vDX, sDG, sRG, m0s(3), dh), 1, DSP)
    place_dma(fillD, dma_stage(vDX, sDU, sRU, m0s(0), dl), 1, DSP)
    fillD.put(len(POS) - 2, ["s_add_u32 s%d, s%d, 1" % (sCnt, sCnt)])
    fillD.put(len(POS) - 1, ["s_cmp_lt_u32 s%d, 4" % sCnt])
    mx = [["v_max_f32 v%d, 0, v%d" % (T0 + r, AG + r)] for r in range(32)]
    fillC.seq(mx[:14], 4)
    fillD.seq(mx[14:], 0)
    bars = {}
    for (nm, fill, kb) in (("C", fillC, 0), ("D", fillD, 9)):
        for i in range(36):
            if i == BAR:
                lab = "%s_b%s" % (L, nm)
                bars[nm] = ["s_cbranch_vccnz %s" % lab, "s_waitcnt vmcnt(%d)" % ((13 if nm == "C" else fillC.nvm(0, 36)) + fill.nvm(0, BAR)), lab + "r:"]
                side.append(lab + ":")
                pass
                side.append("s_branch %sr" % lab)
            for g in (0, 1):
                for s_ in fill.d.get((i, g), []):
                    if s_.startswith("buffer_"): log.append("f" + nm)
                    if s_.startswith("s_cbranch_vccnz"):
                        t = (i + 1) // 4
                        lab = s_.split()[1]
                        side.append(lab + ":")
                        if nm == "C":
                            for (lst, tag) in sched.get(t, []):
                                emit_logged(lst, tag, side)
                        side.append("s_waitcnt vmcnt(%d)" % need("x%d" % (kb + t)))
                        side.append("s_branch %sr" % lab)
    def barw(fill, prevn=9):
        return ["s_waitcnt vmcnt(%d)" % (prevn + fill.nvm(0, BAR))]

    a.label("%s_g1" % L)
    fill = Fill()
    place_dma(fill, dma_stage(vDX, sDU, sRU, m0s(1), dh), 1, DSP)
    fill.put(3, ["s_cbranch_vccnz %s_fix" % L, "%s_fixr:" % L])
    fill.seq([["v_mul_f32 v%d, v%d, v%d" % (T0 + r, T0 + r, AU + r)] for r in range(32)], 4)
    side.append("%s_fix:" % L)
    for r in range(16):
        side.append("v_max_f32 v%d, 0, v%d" % (T0 + 16 + r, AU + r))
    side.append("s_mov_b64 vcc, 0")
    side.append("s_branch %s_fixr" % L)
    gstage(D_(2), D_(3), mf_g1(AG, 0, True), fill, barw(fill))
    fill = Fill()
    cv = cvts(HB, T0)
    on, off = "s_set_gpr_idx_on s%d, 0x8" % sHI, "s_set_gpr_idx_off"
    fill.put(0, ["s_cmp_eq_u32 s%d, 3" % sCnt, "s_cbranch_scc1 %s_sw" % L, "%s_swr:" % L])
    k = fill.seq([[on] + cv[4 * q:4 * q + 4] + [off] for q in range(4)], 1, 2)
    place_dma(fill, dma_stage(vDX, sDG, sRG, m0s(2), dl), k + 1, opt.get("dspB", 4))
    STG = 204
    def hstores(base, soff):
        return [["buffer_store_dwordx4 %s, v%d, s[%d:%d], s%d offen offset:%d %s" % (vr(base + 4 * q, 4), vL16, sWS, sWS + 3, soff, q * 1024, ST_FLAGS)] for q in range(4)]
    cv2 = cvts(STG, T0)
    hs = hstores(STG, sHXo)
    items = []
    for q in range(4): items += [[x] for x in cv2[4 * q:4 * q + 4]] + [hs[q]]
    k = fill.seq(items, k)
    k = fill.seq([["s_add_u32 s%d, s%d, 16" % (sHI, sHI)], ["s_add_u32 s%d, s%d, 4096" % (sHXo, sHXo)]], k)
    assert fill.nvm(0, 36) == 13
    side.append("%s_sw:" % L)
    for q in range(4):
        side.append("v_mov_b32 v%d, v%d" % (vDX[q], vDW[q]))
    side += ["s_mov_b32 s%d, s40" % sDG, "s_and_b32 s%d, s41, 0xffff" % (sDG + 1),
             "s_mov_b32 s%d, s40" % sDU, "s_and_b32 s%d, s41, 0xffff" % (sDU + 1),
             "s_mov_b32 s%d, s%d" % (sRG, sW0), "s_add_u32 s%d, s%d, 256" % (sRU, sW0),
             "s_mov_b32 s%d, s%d" % (sD0, sWd0), "s_mov_b32 s%d, %d" % (sD1, 32 * 1152),
             "s_sub_u32 s%d, %d, s%d" % (sD2l, 128 - 32 * 1152, sWd0), "s_mov_b32 s%d, s%d" % (sD2h, sD2l),
             "s_branch %s_swr" % L]
    gstage(D_(3), D_(0), mf_g1(AG, 9, False), fill, barw(fill))
    a.label("%s_C" % L)
    gstage(D_(0), D_(1), mf_g1(AU, 0, True), fillC, bars["C"])
    gstage(D_(1), D_(2), mf_g1(AU, 9, False), fillD, bars["D"])
    a("s_cbranch_scc1 %s_g1" % L)
    stamp(c)
    ACCS = [AG, AU, T0, STG]
    glog = ["c"] * fillC.nvm(0, 36) + ["W2"] * 9
    glog = ["W1"] * 9 + ["W2"] * 9
    def gneed(tag):
        idx = max(k for k, t_ in enumerate(glog) if t_ == tag)
        return min(63, len(glog) - 1 - idx)
    def tagd(groups, tag):
        return [[(x + " ;#" + tag if x.startswith("buffer_") else x) for x in g] for g in groups]
    def em2(s_):
        if s_.startswith("@need "):
            a("s_waitcnt vmcnt(%d)" % gneed(s_.split()[1])); return
        if s_.startswith("buffer_"): glog.append(s_.split(";#")[1] if ";#" in s_ else "o")
        (a.label(s_[:-1]) if s_.endswith(":") else a(s_))
    def mf2(s_):
        def f(i):
            fb, t = o1(i)
            r = []
            for mb in range(2):
                if s_ < 8:
                    ac = ACCS[s_ % 4] + (fb * 2 + mb) * 4
                    first = (s_ < 4 and t == 0)
                    own = s_ < 4
                else:
                    ac = AG + ((fb & 1) * 2 + mb) * 4
                    first = (t == 0 and fb < 2)
                    own = fb < 2
                b = vr(H0 + 8 * t + 4 * mb, 4) if own else ar(X0 + 8 * t + 4 * mb, 4)
                r.append("v_mfma_f32_16x16x32_bf16 %s, %s, %s, %s" % (vr(ac, 4), ar(fr(i), 4), b, "0" if first else vr(ac, 4)))
            return r
        return f
    def out_ep(acc, us, soff):
        g = []
        for u in us:
            for mb in range(2):
                tb = acc + ((2 * u) * 2 + mb) * 4
                for k in range(4):
                    s_ = acc + ((2 * u + k // 2) * 2 + mb) * 4 + 2 * (k % 2)
                    g.append(["v_cvt_pk_bf16_f32 v%d, v%d, v%d" % (tb + k, s_, s_ + 1)])
                g.append(["buffer_store_dwordx4 %s, v%d, s[%d:%d], s%d offen offset:%d %s" % (vr(tb, 4), vL16, sWS, sWS + 3, soff, u * 2048 + mb * 1024, ST_FLAGS)])
        return g
    dp = ["s%d" % sD0p, "s%d" % sD1, "s%d" % sD2h]
    POLL_S, CHK_S = opt.get("poll_s", (2, 0)), opt.get("chk_s", (2, 50))
    for s_ in range(9):
        fill = Fill()
        bw = ["@need W%d" % (s_ + 1)]
        if s_ == 0:
            its = [["v_mul_f32 v%d, v%d, v%d" % (T0 + r, T0 + r, AU + r), "v_mul_f32 v%d, v%d, v%d" % (T0 + r + 1, T0 + r + 1, AU + r + 1)] for r in range(0, 32, 2)]
            cvf = cvts(HB + 64, T0)
            hs = tagd(hstores(HB + 64, sHXo), "hs")
            for q in range(4): its += [[x] for x in cvf[4 * q:4 * q + 4]] + [hs[q]]
            k = fill.seq(its, 2)
            assert k <= kpos(27), k
            place_dma(fill, tagd(dma_stage(vDX, sDU, sRU, m0s(5), dl), "W3"), k + 1, 1)
        elif s_ <= 4:
            if s_ == 1:
                fill.put(0, ["s_mov_b32 s%d, s%d" % (sRU, sW0p), "s_sub_u32 s%d, %d, s%d" % (sD2h, 128 - 32 * 1152, sD0p)])
                fill.put(opt.get("flag_k", 12), ["@need hs", "buffer_store_dword v242, v240, s[4:7], s%d offen sc1" % sFo])
            place_dma(fill, tagd(dma_stage(vDX, sDU, sRU, m0s(5 + s_), dp), "W%d" % (s_ + 3)), 2, DSP)
        elif s_ == 5:
            fill.put(0, ["s_bitcmp0_b32 s%d, 0" % sJ, "s_cselect_b32 s%d, 8, -1" % sT2, "s_mul_i32 s%d, s%d, 64" % (sT2, sT2)])
            fill.put(1, ["s_add_u32 s%d, s%d, s%d" % (sRG, sW0, sT2), "s_add_u32 s%d, s%d, s%d" % (sRU, sW0p, sT2)])
            k = 3
            for g in range(3):
                for q in range(4 if g < 2 else 1):
                    grp = [m0s(10)(g)] if q == 0 else []
                    grp += ["s_mov_b64 exec, s[56:57]",
                            "buffer_load_dwordx4 v%d, s[%d:%d], s%d offen offset:%d lds ;#W8" % (236 + q, sDU, sDU + 3, sRG, q * 1024),
                            "s_not_b64 exec, s[56:57]",
                            "buffer_load_dwordx4 v%d, s[%d:%d], s%d offen offset:%d lds ;#W8" % (236 + q, sDU, sDU + 3, sRU, q * 1024),
                            "s_mov_b64 exec, -1"]
                    fill.put(k, grp)
                    if q == 3:
                        fill.put(k + 1, ["s_add_u32 s%d, s%d, s%d" % (sRG, sRG, sWd0 if g == 0 else sD1), "s_add_u32 s%d, s%d, s%d" % (sRU, sRU, sD0p if g == 0 else sD1)])
                    k += DSP
        if s_ == POLL_S[0]:
            fill.seq([["buffer_load_dword v241, v240, s[4:7], s%d offen sc1 ;#pl" % sFp]], POLL_S[1])
        if s_ == CHK_S[0]:
            fill.seq([["@need pl", "v_readfirstlane_b32 s%d, v241" % sT2], ["s_cmp_lg_u32 s%d, 1" % sT2, "s_cbranch_scc1 %s_slow" % L, "%s_slowr:" % L]], CHK_S[1])
        if s_ == 3:
            its = []
            for n in range(18):
                g = ["buffer_load_dwordx4 %s, v%d, s[4:7], s%d offen offset:%d %s ;#h%d" % (ar(X0 + 4 * n, 4), vL16, sHXp, (n % 4) * 1024, LD_FLAGS, n // 2)]
                if n % 4 == 3: g.append("s_add_u32 s%d, s%d, 4096" % (sHXp, sHXp))
                its.append(g)
            fill.seq(its, 0, opt.get("hsp", 2))
            fill.put(len(POS) - 1, ["@need h0"])
        if s_ == 4:
            for t in range(1, 9): fill.d.setdefault((4 * t - 1, 0), []).append("@need h%d" % t)
        if s_ >= 5:
            k = fill.seq(out_ep(ACCS[s_ - 5], (0, 1), sSt), 4, 2 if s_ > 5 else 1)
            fill.seq([["s_add_u32 s%d, s%d, 4096" % (sSt, sSt)]], k)
        em_save = em
        gstage(D_(2 + s_), D_(3 + s_) if s_ < 8 else None, mf2(s_), fill, bw, em2)
    side += ["%s_slow:" % L, "s_mov_b32 s63, 0", "%s_slowl:" % L,
             "buffer_load_dword v241, v240, s[4:7], s%d offen sc1" % sFp, "s_add_u32 s63, s63, 1", "s_waitcnt vmcnt(0)",
             "v_readfirstlane_b32 s%d, v241" % sT2, "s_cmp_eq_u32 s%d, 1" % sT2, "s_cbranch_scc1 %s_slowr" % L,
             "s_cmp_lt_u32 s63, 0x%x" % c.maxpoll, "s_cbranch_scc1 %s_slowl" % L, "s_branch %s_slowr" % L]
    a("s_nop 7")
    for grp in out_ep(AG, (0,), sStH):
        for s_ in grp: a(s_)
    c.side += side
    yield

def unpack8(a, src, dst):
    for k in range(4):
        a("v_lshlrev_b32 v%d, 16, v%d" % (dst + 2 * k, src + k))
        a("v_and_b32 v%d, 0xffff0000, v%d" % (dst + 2 * k + 1, src + k))

def phase_D(c):
    a, opt = c.a, c.opt
    LD, ST = "sc1", "sc1"
    L = c.lab("D")
    P0 = 40
    X1, ACC, TM = 8, 232, 24
    a("v_and_b32 v1, 7, v%d" % vLane)
    a("v_lshrrev_b32 v2, 3, v%d" % vLane)
    a("s_mul_i32 s24, s%d, 24" % sW)
    a("v_add_u32 v2, s24, v2")
    a("v_lshlrev_b32 v3, 4, v1")
    a("v_lshl_add_u32 v3, v2, 8, v3")
    a("v_add_u32 v4, 4096, v3")
    a("s_lshl_b32 s25, s%d, 4" % sI)
    a("s_add_u32 s25, s25, s%d" % sJ)
    a("s_lshr_b32 s26, s25, 1")
    a("s_mul_i32 s26, s26, 18432")
    a("s_and_b32 s27, s25, 1")
    a("s_lshl_b32 s27, s27, 7")
    a("s_add_u32 s26, s26, s27")
    a("s_add_u32 s27, s26, s%d" % sL)
    a("s_add_u32 s28, s27, 0x%x" % L_X1)
    a("s_lshl_b32 s29, s25, 8")
    a("s_add_u32 s29, s29, s%d" % sL)
    a("s_add_u32 s29, s29, 0x%x" % L_SSQ)
    a("v_lshlrev_b32 v5, 5, v1")
    a("s_lshl_b32 s30, s%d, 6" % sI)
    a("s_lshr_b32 s31, s%d, 2" % sJ)
    a("s_add_u32 s30, s30, s31")
    a("s_mul_i32 s30, s30, %d" % HXS)
    a("s_bfe_u32 s31, s%d, 0x10001" % sJ)
    a("s_lshl_b32 s31, s31, 10")
    a("s_add_u32 s30, s30, s31")
    a("s_and_b32 s31, s%d, 1" % sJ)
    a("s_lshl_b32 s31, s31, 7")
    a("s_add_u32 s30, s30, s31")
    a("s_add_u32 s30, s30, 0x%x" % (WS_P + 2048))
    for q in range(3):
        a("v_add_u32 v6, %d, v2" % (8 * q))
        a("v_lshrrev_b32 v7, 2, v6")
        a("v_and_b32 v6, 3, v6")
        a("v_lshlrev_b32 v6, 8, v6")
        a("v_lshl_add_u32 v6, v1, 4, v6")
        a("v_lshl_add_u32 v6, v7, 11, v6")
        a("v_add_u32 v38, %d, v6" % (4 * HXS))
        a("v_subrev_u32 v6, %d, v6" % (9 * 2048))
        a("v_cmp_gt_u32 vcc, 9, v7")
        a("s_nop 1")
        a("v_cndmask_b32 v%d, v6, v38, vcc" % (200 + q))
    def ld3(dst, soff):
        a("buffer_load_dwordx4 %s, v3, s[4:7], s%d offen %s" % (vr(dst, 4), soff, LD))
        a("buffer_load_dwordx4 %s, v3, s[4:7], s%d offen offset:2048 %s" % (vr(dst + 4, 4), soff, LD))
        a("buffer_load_dwordx4 %s, v4, s[4:7], s%d offen %s" % (vr(dst + 8, 4), soff, LD))
    a("s_lshl_b32 s31, s%d, 6" % sW)
    a("s_lshl_b32 s32, s%d, 2" % sJ)
    a("s_add_u32 s31, s31, s32")
    signal(c, 2, 0, 31)
    a("s_barrier")
    w3 = c.lab("D_w3")
    a("s_cmp_eq_u32 s%d, 3" % sW)
    a("s_cbranch_scc1 %s" % w3)
    a("s_lshr_b32 s31, s%d, 2" % sJ)
    a("s_lshl_b32 s31, s31, 6")
    wait_flags(c, 2, 31, 0xffff)
    stamp(c)
    NP = c.NP
    for j in range(NP):
        for q in range(3):
            a("buffer_load_dwordx4 %s, v%d, s[4:7], s30 offen %s" % (vr(P0 + 12 * j + 4 * q, 4), 200 + q, LD))
        if j < NP - 1: a("s_add_u32 s30, s30, 0x%x" % (8 * HXS))
    ld3(X1, 28)
    a("buffer_load_dwordx4 v[32:35], v5, s[4:7], s29 offen %s" % LD)
    a("buffer_load_dwordx2 v[36:37], v5, s[4:7], s29 offen offset:16 %s" % LD)
    AC = [232, 240, 24]
    T2 = 20
    for j in range(NP):
        for q in range(3):
            a("s_waitcnt vmcnt(%d)" % (3 * NP + 4 - 3 * j - q))
            src = P0 + 12 * j + 4 * q
            if j == 0:
                unpack8(a, src, AC[q])
            else:
                for k in range(4):
                    a("v_lshlrev_b32 v%d, 16, v%d" % (T2, src + k))
                    a("v_and_b32 v%d, 0xffff0000, v%d" % (T2 + 1, src + k))
                    a("v_add_f32 v%d, v%d, v%d" % (AC[q] + 2 * k, AC[q] + 2 * k, T2))
                    a("v_add_f32 v%d, v%d, v%d" % (AC[q] + 2 * k + 1, AC[q] + 2 * k + 1, T2 + 1))
    a("s_waitcnt vmcnt(0)")
    a("v_add_f32 v32, v32, v33")
    a("v_add_f32 v34, v34, v35")
    a("v_add_f32 v36, v36, v37")
    a("v_add_f32 v32, v32, v34")
    a("v_add_f32 v32, v32, v36")
    a("v_mov_b32 v33, 0x%x" % f2u(1e-5))
    a("s_mov_b32 s31, 0x%x" % f2u(1.0 / 576))
    a("v_fma_f32 v32, v32, s31, v33")
    a("v_rcp_f32 v32, v32")
    XF = 40
    for q in range(3):
        unpack8(a, X1 + 4 * q, XF + 8 * q)
        for k in range(8):
            a("v_fmac_f32 v%d, v%d, v32" % (XF + 8 * q + k, AC[q] + k))
        for k in range(4):
            a("v_cvt_pk_bf16_f32 v%d, v%d, v%d" % (X1 + 4 * q + k, XF + 8 * q + 2 * k, XF + 8 * q + 2 * k + 1))
    fin = c.lab("D_fin")
    a("s_cmp_lg_u32 s%d, 0" % sL)
    a("s_cbranch_scc1 %s" % fin)
    def st3(src, soff):
        a("buffer_store_dwordx4 %s, v3, s[4:7], s%d offen %s" % (vr(src, 4), soff, ST))
        a("buffer_store_dwordx4 %s, v3, s[4:7], s%d offen offset:2048 %s" % (vr(src + 4, 4), soff, ST))
        a("buffer_store_dwordx4 %s, v4, s[4:7], s%d offen %s" % (vr(src + 8, 4), soff, ST))
    for q in range(3): unpack8(a, X1 + 4 * q, XF + 8 * q)
    a("s_add_u32 s28, s26, 0x%x" % (LSTR + L_XR))
    st3(X1, 28)
    a("v_add_f32 v34, v%d, v%d" % (XF, XF + 1))
    a("v_mul_f32 v35, v%d, v%d" % (XF, XF))
    a("v_fmac_f32 v35, v%d, v%d" % (XF + 1, XF + 1))
    for k in range(2, 24):
        a("v_add_f32 v34, v34, v%d" % (XF + k))
        a("v_fmac_f32 v35, v%d, v%d" % (XF + k, XF + k))
    xl_sum(a, [34, 35], [36, 37], [8, 16, 32])
    a("v_lshlrev_b32 v36, 5, v1")
    a("v_add_u32 v36, %d, v36" % LDS_D)
    a("s_lshl_b32 s24, s%d, 3" % sW)
    a("v_add_u32 v37, s24, v36")
    a("ds_write_b64 v37, v[34:35]")
    a("s_waitcnt lgkmcnt(0)")
    a("s_barrier")
    a("ds_read_b128 v[64:67], v36")
    a("ds_read_b64 v[34:35], v36 offset:16")
    a("s_waitcnt lgkmcnt(0)")
    a("v_add_f32 v34, v34, v64")
    a("v_add_f32 v35, v35, v65")
    a("v_add_f32 v34, v34, v66")
    a("v_add_f32 v35, v35, v67")
    a("v_mul_f32 v34, s31, v34")
    a("v_mul_f32 v36, v34, v34")
    a("v_fma_f32 v35, v35, s31, -v36")
    a("v_max_f32 v35, 0, v35")
    a("v_add_f32 v35, 0x%x, v35" % f2u(1e-5))
    a("v_rsq_f32 v35, v35")
    for k in range(24): a("v_sub_f32 v%d, v%d, v34" % (XF + k, XF + k))
    for k in range(24): a("v_mul_f32 v%d, v%d, v35" % (XF + k, XF + k))
    for k in range(12): a("v_cvt_pk_bf16_f32 v%d, v%d, v%d" % (64 + k, XF + 2 * k, XF + 2 * k + 1))
    a("s_add_u32 s28, s26, 0x%x" % (LSTR + L_XN))
    st3(64, 28)
    a("v_lshlrev_b32 v36, 2, v1")
    a("s_lshl_b32 s28, s25, 5")
    a("s_add_u32 s28, s28, 0x%x" % (LSTR + L_MEAN))
    a("s_mov_b64 exec, 0xff")
    a("buffer_store_dword v34, v36, s[4:7], s28 offen %s" % ST)
    a("s_mov_b64 exec, -1")
    a("s_lshl_b32 s33, s%d, 4" % sJ)
    a("s_lshl_b32 s32, s%d, 2" % sW)
    a("s_add_u32 s33, s33, s32")
    signal(c, 3, 1, 33)
    j2 = c.lab("D_j2")
    a("s_branch %s" % j2)
    a.label(w3)
    a("s_cmp_lg_u32 s%d, 0" % sL)
    a("s_cbranch_scc1 %s" % c.endlab)
    prefetch_A(c, solo=True)
    a("s_barrier")
    a.label(j2)
    stamp(c)
    a("s_mov_b32 s%d, 0x%x" % (sL, LSTR))
    a("s_add_u32 s%d, s%d, %d" % (sFL, sFL, 8 * PH))
    a("s_branch %s" % c.looplab)
    a.label(fin)
    srd(a, sOUT, 42, ACT)
    a("v_and_b32 v5, 8, v%d" % vLane)
    a("v_cmp_eq_u32 vcc, 0, v5")
    a("v_lshrrev_b32 v6, 2, v2")
    a("v_lshlrev_b32 v6, 6, v6")
    a("v_lshl_add_u32 v6, v5, 2, v6")
    a("v_and_b32 v7, 16, v%d" % vLane)
    a("v_add_u32 v6, v6, v7")
    a("v_mul_u32_u24 v7, 1152, v1")
    a("v_add_u32 v6, v6, v7")
    a("s_mul_i32 s28, s25, %d" % (8 * 1152))
    for q in range(3):
        x = X1 + 4 * q
        for k in range(4):
            a("v_mov_b32_dpp v%d, v%d row_ror:8 row_mask:0xf bank_mask:0xf" % (40 + k, x + k))
        o = 48 + 4 * q
        a("v_cndmask_b32 v%d, v42, v%d, vcc" % (o, x))
        a("v_cndmask_b32 v%d, v43, v%d, vcc" % (o + 1, x + 1))
        a("v_cndmask_b32 v%d, v%d, v40, vcc" % (o + 2, x + 2))
        a("v_cndmask_b32 v%d, v%d, v41, vcc" % (o + 3, x + 3))
        a("buffer_store_dwordx4 %s, v6, s[16:19], s28 offen offset:%d" % (vr(o, 4), 128 * q))

def gen_mega(a, name, opt=None):
    c = Ctx()
    c.a, c.opt = a, (opt or {})
    c.stamp = c.opt.get("stamp", False)
    c.maxpoll = c.opt.get("maxpoll", 200000)
    c.sigwave = c.opt.get("sigwave", 0)
    c.side = []
    c.NP = 8
    c.n = 0
    def lab(p):
        c.n += 1
        return "m_%s_%d" % (p, c.n)
    c.lab = lab
    c.endlab, c.looplab = "m_end", "m_layer"
    kernel_begin(a, name)
    a("s_cmp_ge_u32 s2, 256")
    a("s_cbranch_scc1 m_exit")
    a("s_load_dwordx4 s[36:39], s[0:1], 32")
    a("s_load_dwordx4 s[40:43], s[0:1], 48")
    a("s_load_dwordx2 s[24:25], s[0:1], 72")
    a("v_lshrrev_b32 v1, 6, v0")
    a("v_and_b32 v%d, 63, v0" % vLane)
    a("v_readfirstlane_b32 s%d, v1" % sW)
    xmap(a, c.opt.get("xmap", 4), sJ, sI, 26)
    a("v_lshlrev_b32 v%d, 4, v%d" % (vL16, vLane))
    a("v_add_u32 v%d, 18432, v%d" % (vL16b, vL16))
    a("s_mov_b32 s%d, 0" % sL)
    a("s_lshl_b32 s%d, s%d, 8" % (sFL, sI))
    a("s_add_u32 s%d, s%d, 0x%x" % (sFL, sFL, WS_FL))
    a("s_mov_b32 s%d, 0" % sSTI)
    a("s_waitcnt lgkmcnt(0)")
    srd(a, sWS, 24, WS_END + (0x40000 if c.stamp else 0))
    stamp(c)
    prefetch_A(c)
    a.label(c.looplab)
    phase_A(c)
    gC = phase_C(c)
    next(gC)
    phase_B(c)
    next(gC)
    stamp(c)
    phase_D(c)
    a.label(c.endlab)
    if c.stamp:
        a("s_waitcnt vmcnt(0)")
        stamp(c)
        a("s_lshl_b32 s24, s2, 2")
        a("s_add_u32 s24, s24, s%d" % sW)
        a("s_lshl_b32 s24, s24, 8")
        a("s_add_u32 s24, s24, 0x%x" % WS_END)
        a("v_lshlrev_b32 v0, 2, v%d" % vLane)
        a("buffer_store_dword v%d, v0, s[4:7], s24 offen" % vST)
    if c.opt.get("dbg"):
        a("s_cmp_lg_u32 s2, %d" % c.opt.get("dbg_wg", 37))
        a("s_cbranch_scc1 m_exit")
        a("s_cmp_lg_u32 s%d, 0" % sW)
        a("s_cbranch_scc1 m_exit")
        a("s_load_dwordx2 s[24:25], s[0:1], 64")
        a("s_waitcnt lgkmcnt(0)")
        srd(a, 8, 24, 64)
        a("v_mov_b32 v0, 0x%x" % (WS_WBAR + 4000))
        a("buffer_load_dword v1, v0, s[4:7], 0 offen")
        a("v_mov_b32 v0, 0")
        a("s_waitcnt vmcnt(0)")
        a("buffer_store_dword v1, v0, s[8:11], 0 offen")
        a("s_nop 1")
        sel = [0, 1, 4, 5, 7, 8, 9, 10, 11, 12, 13, 20, 22, 23, 24]
        for k, x in enumerate(sel):
            a("v_readlane_b32 s26, v%d, %d" % (vST, x))
            a("s_nop 3")
            a("v_mov_b32 v1, s26")
            a("v_mov_b32 v0, %d" % (4 * k + 4))
            a("buffer_store_dword v1, v0, s[8:11], 0 offen")
            a("s_nop 1")
    a.label("m_exit")
    a("s_endpgm")
    for s_ in c.side:
        (a.label(s_[:-1]) if s_.endswith(":") else a(s_))
    return kernel_desc(name, 512, 256)
```

```python
from mcommon import *
import math
SLOT = 36 * 1024

class Ctx: pass

def lstamp(c):
    if not c.opt.get("cst"): return
    a = c.a
    a("s_lshl_b64 exec, 1, s%d" % sSTI)
    a("v_mov_b32 v%d, s98" % vST)
    a("s_mov_b64 exec, -1")
    a("s_add_u32 s%d, s%d, 1" % (sSTI, sSTI))
    a("%s s[98:99]" % ("s_memtime" if c.opt["cst"] == 2 else "s_memrealtime"))

def stamp(c):
    if not c.stamp or c.opt.get("cst"): return
    a = c.a
    a("s_memrealtime s[98:99]")
    a("s_waitcnt lgkmcnt(0)")
    a("s_lshl_b64 exec, 1, s%d" % sSTI)
    a("v_mov_b32 v%d, s98" % vST)
    a("s_mov_b64 exec, -1")
    a("s_add_u32 s%d, s%d, 1" % (sSTI, sSTI))

PH = 4096
def signal(c, phase, nvm, sidx):
    a = c.a
    a("s_add_u32 s62, s%d, s%d" % (sidx, sFL))
    a("v_mov_b32 v250, 1")
    a("v_mov_b32 v251, %d" % (phase * PH))
    a("s_waitcnt vmcnt(%d)" % nvm)
    if c.opt.get("fine"): stamp(c)
    a("s_mov_b64 exec, 1")
    a("buffer_store_dword v250, v251, s[4:7], s62 offen sc1")
    a("s_mov_b64 exec, -1")

def wait_flags(c, phase, sidx, mask, halo=False, prev_layer=False, solo=None):
    a = c.a
    loop, done = c.lab("wf_loop"), c.lab("wf_done")
    off = phase * PH - (8 * PH if prev_layer else 0)
    solo = solo if str(phase) in c.opt.get("solo", "0123") else None
    c.solo_skip = None
    if solo:
        c.solo_skip = c.lab("wf_skip")
        a("s_cmp_lg_u32 s%d, %d" % (sW, solo[0]))
        a("s_cbranch_scc1 %s" % c.solo_skip)
        sidx, mask = solo[1], solo[2]
    a("v_lshlrev_b32 v250, 2, v%d" % vLane)
    a("s_add_u32 s62, s%d, 0x%x" % (sFL, (off - 256) & 0xffffffff))
    if sidx is None: a("s_movk_i32 s63, 256")
    else: a("s_add_u32 s63, s%d, 256" % sidx)
    if halo and solo:
        a("v_lshrrev_b32 v251, 2, v%d" % vLane)
        a("v_lshlrev_b32 v251, 2, v251")
        a("v_add_u32 v251, 224, v251")
        a("v_add_u32 v250, s63, v250")
        a("s_mov_b32 vcc_lo, 0x08880888")
        a("s_mov_b32 vcc_hi, 0")
        a("s_cmp_eq_u32 s%d, 0" % sI)
        a("s_cselect_b32 s64, 0, 0x08880888")
        a("v_cndmask_b32 v250, v250, v251, vcc")
        a("s_or_b32 s64, s64, 0x%x" % (mask & 0xffffffff))
    elif halo:
        a("v_add_u32 v251, 160, v250")
        a("v_add_u32 v250, s63, v250")
        a("v_cmp_gt_u32 vcc, 16, v%d" % vLane)
        a("s_cmp_eq_u32 s%d, 0" % sI)
        a("s_cselect_b32 s64, 0, 0x770000")
        a("v_cndmask_b32 v250, v251, v250, vcc")
        a("s_or_b32 s64, s64, 0x%x" % mask)
    else:
        a("v_add_u32 v250, s63, v250")
        a("s_mov_b32 s64, 0x%x" % (mask & 0xffffffff))
    a("s_mov_b32 s65, 0x%x" % (mask >> 32))
    a("s_mov_b64 exec, s[64:65]")
    a("s_mov_b32 s63, 0")
    PD, PS = c.opt.get("pd", 1), c.opt.get("ps", 2)
    ld = lambda k: "buffer_load_dword v%d, v250, s[4:7], s62 offen sc1" % (246 + k)
    for k in range(PD - 1):
        a(ld(k))
        if PS: a("s_sleep %d" % PS)
    a.label(loop)
    for k in range(PD):
        a(ld((k + PD - 1) % PD))
        a("s_waitcnt vmcnt(%d)" % (PD - 1))
        a("v_cmp_eq_u32 vcc, 1, v%d" % (246 + k))
        a("s_cmp_eq_u64 vcc, s[64:65]")
        a("s_cbranch_scc1 %s" % done)
    pl = c.opt.get("pls", 1) if solo else c.opt.get("pl", 8)
    if pl: a("s_sleep %d" % pl)
    a("s_add_u32 s63, s63, 1")
    a("s_cmp_lt_u32 s63, 0x%x" % c.maxpoll)
    a("s_cbranch_scc1 %s" % loop)
    a.label(done)
    a("s_mov_b64 exec, -1")
    if solo:
        a.label(c.solo_skip)
        a("s_barrier")

def sig_store(c, phase):
    pass

def linear_dma(c, src_sreg, ngroups, lab):
    a = c.a
    a("s_mov_b32 s63, 0")
    a.label(lab)
    for q in range(4):
        a("buffer_load_dwordx4 v%d, s[4:7], s%d offen offset:%d lds" % (vL16, src_sreg, q * 1024))
    a("s_add_u32 m0, m0, 4096")
    a("s_add_u32 s%d, s%d, 4096" % (src_sreg, src_sreg))
    a("s_add_u32 s63, s63, 1")
    a("s_cmp_lt_u32 s63, %d" % ngroups)
    a("s_cbranch_scc1 %s" % lab)

def prefetch_A(c, solo=False):
    a = c.a
    if solo: a("s_mov_b32 s24, 0")
    else: a("s_lshl_b32 s24, s%d, 15" % sW)
    a("s_mul_i32 s25, s%d, %d" % (sJ, 126 * 1024))
    a("s_add_u32 s25, s25, s24")
    a("s_add_u32 s25, s25, 0x%x" % WS_WQ)
    a("s_mov_b32 m0, s24")
    linear_dma(c, 25, 32 if solo else 8, c.lab("pfA"))

def phase_A(c):
    a, opt = c.a, c.opt
    LD, ST = "sc1", "sc1"
    L = c.lab("A")
    B0, AF, NB = 0, 144, 12
    ACC, WB = 0, 196
    vLv = [218, 219, 220]; vHv = [221, 222, 223]
    P = 336
    HALO = 126 * 1024
    a("s_lshl_b32 s24, s%d, 10" % sW)
    a("s_lshl_b32 s27, s%d, 3" % sI)
    a("s_max_u32 s28, s27, 1")
    a("s_sub_u32 s28, s28, 1")
    a("s_mul_i32 s28, s28, 18432")
    a("s_add_u32 s28, s28, s%d" % sL)
    a("s_mul_i32 s29, s%d, 5120" % sW)
    a("s_add_u32 s28, s28, s29")
    a("s_add_u32 s29, s29, %d" % HALO)
    a("s_lshl_b32 s30, s%d, 1" % sW)
    a("s_add_u32 s30, s30, s27")
    a("s_mul_i32 s31, s30, 18432")
    a("s_add_u32 s31, s31, s%d" % sL)
    a("s_mov_b32 s32, s31")
    a("v_lshrrev_b32 v2, 5, v%d" % vLane)
    a("v_mul_u32_u24 v233, 72, v2")
    a("s_mul_i32 s33, s%d, 144" % sJ)
    a("s_add_u32 s33, s33, 0x%x" % WS_WBAR)
    LVL = 49152
    for lv in range(3):
        a("v_add_u32 v%d, 0x%x, v%d" % (vLv[lv], lv * LVL, vL16))
        a("v_add_u32 v%d, s24, v%d" % (vHv[lv], vLv[lv]))
    nos = c.lab("A_nosync")
    a("s_cmp_eq_u32 s%d, 0" % sL)
    a("s_cbranch_scc1 %s" % nos)
    a("s_lshl_b32 s34, s%d, 6" % sW)
    wait_flags(c, 3, 34, 0x7777, halo=True, prev_layer=True, solo=(0, None, 0x7777777777777777))
    a.label(nos)
    stamp(c)
    log = []
    def em(lst, tag):
        for s_ in lst:
            a(s_)
            if s_.startswith("buffer_"): log.append(tag)
    def need(tag):
        idx = max(k for k, t_ in enumerate(log) if t_ == tag)
        return min(63, len(log) - 1 - idx)
    def xl(t):
        o = []
        for mb in range(2):
            g = []
            if mb == 0 and t % 4 == 0 and t: g.append("s_add_u32 s32, s32, 4096")
            g.append("buffer_load_dwordx4 %s, v%d, s[4:7], s32 offen offset:%d %s" % (ar(B0 + 4 * (18 * mb + t), 4), (vL16, vL16b)[mb], (t % 4) * 1024, LD))
            o.append(g)
        return o
    PRE = opt.get("A_pre", 6)
    for t in range(PRE):
        for g in xl(t): em(g, t)
    a("s_waitcnt vmcnt(%d)" % len(log))
    a("s_barrier")
    pend = [(g, t) for t in range(PRE, 18) for g in xl(t)]
    pend += [(["s_mov_b32 m0, s29"], "h")]
    pend += [(["buffer_load_dwordx4 v%d, s[4:7], s28 offen offset:%d %s lds" % (vL16, q * 1024, LD)], "h") for q in range(4)]
    pend += [(["s_add_u32 m0, m0, 4096", "s_add_u32 s28, s28, 4096"], "h"), (["buffer_load_dwordx4 v%d, s[4:7], s28 offen %s lds" % (vL16, LD)], "h")]
    pend += [(["buffer_load_dwordx4 %s, v233, s[4:7], s33 offen offset:%d" % (vr(WB + 4 * q, 4), 16 * q)], "wb") for q in range(4)]
    pend += [(["buffer_load_dwordx2 %s, v233, s[4:7], s33 offen offset:64" % vr(WB + 16, 2)], "wb")]
    WPF = opt.get("wpf", 2)
    if WPF >= 2:
        a("s_lshl_b32 s34, s%d, 2" % sI)
        a("s_and_b32 s35, s%d, 3" % sJ)
        a("s_add_u32 s34, s34, s35")
        a("s_lshl_b32 s34, s34, 2")
        a("s_add_u32 s34, s34, s%d" % sW)
        a("s_mul_i32 s34, s34, 41")
        a("v_min_u32 v234, 40, v%d" % vLane)
        a("v_add_u32 v234, s34, v234")
        a("v_min_u32 v234, 0x287f, v234")
        a("v_mul_u32_u24 v235, 3641, v234")
        a("v_lshrrev_b32 v235, 16, v235")
        a("v_lshlrev_b32 v234, 7, v234")
        a("v_mul_u32_u24 v235, %d, v235" % (9216 - 18 * 128))
        a("v_add_u32 v234, v235, v234")
        a("s_lshr_b32 s35, s%d, 2" % sJ)
        a("s_mul_i32 s35, s35, 2304")
        a("s_cmp_eq_u32 s%d, 0" % sL)
        a("s_cselect_b32 s35, s35, 0x7f000000")
        srd(a, sDG, 36, D * F * 2)
        srd(a, sDU, 38, D * F * 2)
        pend += [(["buffer_load_dword v235, v234, s[%d:%d], s35 offen" % (sDG, sDG + 3)], "tw"), (["buffer_load_dword v236, v234, s[%d:%d], s35 offen" % (sDU, sDU + 3)], "tw")]
        if opt.get("w64"):
            pend += [(["buffer_load_dword v235, v234, s[%d:%d], s35 offen offset:64" % (sDG, sDG + 3)], "tw"), (["buffer_load_dword v236, v234, s[%d:%d], s35 offen offset:64" % (sDU, sDU + 3)], "tw")]
    stream = [("m", f) for f in range(126)] + [(k, t) for t in range(18) for k in ("hb", "a6", "aw")]
    def rd(n):
        k, x = stream[n]
        vs = vLv
        if k == "m": o = x * 1024
        elif k == "hb": o = HALO + x * 1024
        elif k == "a6": o = (x * 7 + 6) * 1024
        else: o = x * 7168; vs = vHv
        lv = min(o // LVL, 2)
        return "ds_read_b128 %s, v%d offset:%d" % (ar(AF + 4 * (n % NB), 4), vs[lv], o - lv * LVL)
    def fb(n): return ar(AF + 4 * (n % NB), 4)
    DIST = NB - 4
    nxt = 0
    for _ in range(DIST):
        a(rd(nxt)); nxt += 1
    def mf(acc, A, B, first):
        return "v_mfma_f32_16x16x32_bf16 %s, %s, %s, %s" % (vr(acc, 4), A, B, "0" if first else vr(acc, 4))
    for f in range(126):
        t, k = f // 7, f % 7
        if k == 0: a("s_waitcnt vmcnt(%d)" % need(t))
        if nxt == 126:
            a("s_waitcnt vmcnt(%d)" % need("h"))
            a("s_barrier")
        if f % 2 == 0: a("s_waitcnt lgkmcnt(%d)" % (nxt - 1 - (f + 1)))
        a(mf(ACC + 4 * k, fb(f), ar(B0 + 4 * t, 4), t == 0))
        a(rd(nxt)); nxt += 1
        a(mf(ACC + 4 * (7 + k), fb(f), ar(B0 + 4 * (18 + t), 4), t == 0))
        if pend and f % 2 == 0:
            g, tag = pend.pop(0); em(g, tag)
    assert not pend
    for t in range(18):
        n = 126 + 3 * t
        a("s_waitcnt lgkmcnt(%d)" % (nxt - 1 - (n + 2)))
        a(mf(ACC + 60, fb(n + 1), fb(n), t == 0))
        for _ in range(2):
            if nxt < len(stream): a(rd(nxt)); nxt += 1
        a(mf(ACC + 56, fb(n + 2), fb(n), t == 0))
        if nxt < len(stream): a(rd(nxt)); nxt += 1
    stamp(c)
    a("s_lshr_b32 s46, s%d, 2" % sJ)
    a("s_sub_u32 s46, s%d, s46" % sJ)
    a("s_cmp_ge_u32 s46, 6")
    a("s_cselect_b32 s66, 6, 0")
    a("s_cselect_b32 s67, 4, 0")
    a("s_sub_u32 s66, s46, s66")
    a("s_add_u32 s67, s67, s27")
    a("s_add_u32 s67, s67, s%d" % sW)
    a("s_mul_i32 s46, s66, %d" % (108 * 1024))
    a("s_mul_i32 s47, s%d, %d" % (sW, 27 * 1024))
    a("s_add_u32 s46, s46, s47")
    a("s_add_u32 s46, s46, 0x%x" % WS_WO)
    a("s_and_b32 s75, s%d, 3" % sJ)
    a("s_cmp_eq_u32 s75, 3")
    a("s_cselect_b32 s46, 0x7f000000, s46")
    a("s_mov_b32 m0, s47")
    pf = []
    for g in range(7):
        for q in range(4):
            if g == 6 and q == 3: continue
            x = ["buffer_load_dwordx4 v%d, s[4:7], s46 offen offset:%d lds" % (vL16, q * 1024)]
            if q == 3: x += ["s_add_u32 m0, m0, 4096", "s_add_u32 s46, s46, 4096"]
            pf.append(x)
    cnt = [0]
    PFS = opt.get("A_pfs", 5)
    def v(s_):
        a(s_)
        cnt[0] += 1
        if pf and cnt[0] % PFS == 0:
            for x in pf.pop(0): a(x)
    a("v_and_b32 v64, 15, v%d" % vLane)
    a("v_lshrrev_b32 v65, 4, v%d" % vLane)
    a("v_mul_u32_u24 v64, %d, v64" % P)
    a("v_add_u32 v64, %d, v64" % LDS_STG)
    a("v_lshl_add_u32 v66, v65, 3, v64")
    a("v_lshl_add_u32 v67, v65, 4, v64")
    a("s_mul_i32 s34, s%d, %d" % (sW, 32 * P))
    a("s_add_u32 s34, s34, %d" % (16 * P))
    a("v_add_u32 v68, s34, v66")
    a("v_add_u32 v69, s34, v67")
    a("s_barrier")
    for mb in range(2):
        for nb, off in ((2, 128), (3, 192), (6, 256)):
            r = ACC + 4 * (7 * mb + nb)
            a("ds_write_b128 v69, %s offset:%d" % (vr(r, 4), off + mb * 16 * P))
        for nb, off in ((0, 0), (1, 32), (4, 64), (5, 96)):
            r = ACC + 4 * (7 * mb + nb)
            a("v_cvt_pk_bf16_f32 v%d, v%d, v%d" % (r, r, r + 1))
            a("v_cvt_pk_bf16_f32 v%d, v%d, v%d" % (r + 1, r + 2, r + 3))
            a("ds_write_b64 v68, %s offset:%d" % (vr(r, 2), off + mb * 16 * P))
    a("ds_write_b128 v67, v[60:63] offset:256")
    a("s_cmp_ge_u32 s%d, 2" % sW)
    a("s_cbranch_scc1 %s_hv" % L)
    a("s_lshl_b32 s35, s%d, 5" % sW)
    a("v_add_u32 v66, s35, v66")
    a("v_cvt_pk_bf16_f32 v56, v56, v57")
    a("v_cvt_pk_bf16_f32 v57, v58, v59")
    a("ds_write_b64 v66, v[56:57]")
    a("s_branch %s_hd" % L)
    a.label("%s_hv" % L)
    a("s_lshl_b32 s35, s%d, 6" % sW)
    a("v_add_u32 v67, s35, v67")
    a("ds_write_b128 v67, v[56:59]")
    a.label("%s_hd" % L)
    vK, vV, vTt, vQt, vGR = 225, 226, 227, 228, 229
    v("v_and_b32 v64, 31, v%d" % vLane)
    v("v_lshrrev_b32 v65, 5, v%d" % vLane)
    v("v_mul_u32_u24 v66, %d, v64" % P)
    v("s_add_u32 s34, s34, %d" % (LDS_STG - 14 * P))
    v("v_add_u32 v66, s34, v66")
    v("v_lshl_add_u32 v%d, v65, 5, v66" % vK)
    v("v_lshl_add_u32 v%d, v65, 6, v66" % vV)
    v("v_lshl_add_u32 v%d, v65, 4, v66" % vTt)
    v("v_lshl_add_u32 v%d, v65, 3, v66" % vQt)
    v("s_lshl_b32 s35, s30, 4")
    v("v_add_u32 v%d, s35, v64" % vGR)
    vO, vO2, vOB = 230, 231, 232
    v("v_lshrrev_b32 v66, 4, v64")
    v("v_mul_u32_u24 v66, 18432, v66")
    v("v_and_b32 v67, 15, v64")
    v("v_lshl_add_u32 v66, v67, 4, v66")
    v("v_lshl_add_u32 v%d, v65, 9, v66" % vO)
    v("v_lshrrev_b32 v66, 4, v64")
    v("v_lshlrev_b32 v66, 12, v66")
    v("v_lshl_add_u32 v%d, v67, 4, v66" % vOB)
    v("s_lshl_b32 s48, s%d, 10" % sJ)
    v("s_add_u32 s48, s48, s31")
    v("s_add_u32 s48, s48, 0x%x" % L_O)
    v("s_lshl_b32 s51, s%d, 8" % sJ)
    v("s_lshl_b32 s49, s30, 12")
    v("s_add_u32 s51, s51, s49")
    v("s_add_u32 s51, s51, s%d" % sL)
    v("s_add_u32 s51, s51, 0x%x" % L_OB)
    a("s_waitcnt lgkmcnt(0)")
    a("s_barrier")
    stamp(c)
    KR, TR, VA, Q, S_, O = 0, 64, 96, 160, 170, 178
    dl = []
    def ds(s_, tag):
        a(s_); dl.append(tag)
    def dwait(tag):
        idx = max(k for k, t_ in enumerate(dl) if t_ == tag)
        a("s_waitcnt lgkmcnt(%d)" % min(15, len(dl) - 1 - idx))
    ds("ds_read_b128 %s, v%d offset:%d" % (vr(Q, 4), vK, 14 * P + 64), "q")
    ds("ds_read_b128 %s, v%d offset:%d" % (vr(Q + 4, 4), vK, 14 * P + 80), "q")
    ds("ds_read_b64 %s, v%d offset:%d" % (vr(Q + 8, 2), vQt, 14 * P + 288), "q")
    def kread(j):
        o = (14 - 2 * j) * P
        ds("ds_read_b128 %s, v%d offset:%d" % (vr(KR + 8 * j, 4), vK, o), "k%d" % j)
        ds("ds_read_b128 %s, v%d offset:%d" % (vr(KR + 8 * j + 4, 4), vK, o + 16), "k%d" % j)
        ds("ds_read_b128 %s, v%d offset:%d" % (vr(TR + 4 * j, 4), vTt, o + 256), "k%d" % j)
    def vreg(j): return (VA + 16 * j) if j < 4 else (KR + 16 * (j - 4))
    def vread(j):
        o = (14 - 2 * j) * P + 128
        for q in range(4):
            ds("ds_read_b128 %s, v%d offset:%d" % (vr(vreg(j) + 4 * q, 4), vV, o + 16 * q), "v%d" % j)
    for j in range(4): kread(j)
    a("v_mov_b32 v%d, 0xff7fffff" % (O + 1))
    for j in range(8):
        dwait("k%d" % j)
        if j < 4: kread(j + 4)
        else: vread(j - 4)
        v("v_mul_f32 v%d, v%d, v%d" % (S_ + j, Q + 8, TR + 4 * j))
        v("v_fmac_f32 v%d, v%d, v%d" % (S_ + j, Q + 9, TR + 4 * j + 1))
        for p in range(8):
            v("v_dot2_f32_bf16 v%d, v%d, v%d, v%d" % (S_ + j, Q + p, KR + 8 * j + p, S_ + j))
        if j > 0:
            a("v_cmp_le_u32 vcc, %d, v%d" % (2 * j, vGR))
            a("s_nop 1")
            a("v_cndmask_b32 v%d, v%d, v%d, vcc" % (S_ + j, O + 1, S_ + j))
    for j in range(4, 8): vread(j)
    v("v_max3_f32 v%d, v%d, v%d, v%d" % (O, S_, S_ + 1, S_ + 2))
    v("v_max3_f32 v%d, v%d, v%d, v%d" % (O, O, S_ + 3, S_ + 4))
    v("v_max3_f32 v%d, v%d, v%d, v%d" % (O, O, S_ + 5, S_ + 6))
    v("v_max_f32 v%d, v%d, v%d" % (O, O, S_ + 7))
    a("s_mov_b32 s52, 0x%x" % f2u(18 ** -0.5 * math.log2(math.e)))
    for j in range(8): v("v_sub_f32 v%d, v%d, v%d" % (S_ + j, S_ + j, O))
    for j in range(8): v("v_mul_f32 v%d, s52, v%d" % (S_ + j, S_ + j))
    for j in range(8): v("v_exp_f32 v%d, v%d" % (S_ + j, S_ + j))
    SUM = Q
    v("v_add_f32 v%d, v%d, v%d" % (SUM, S_, S_ + 1))
    for j in range(2, 8): v("v_add_f32 v%d, v%d, v%d" % (SUM, SUM, S_ + j))
    a("v_rcp_f32 v%d, v%d" % (SUM, SUM))
    a("s_nop 0")
    for j in range(8): v("v_mul_f32 v%d, v%d, v%d" % (S_ + j, S_ + j, SUM))
    while pf:
        for x in pf.pop(0): a(x)
    for j in range(8):
        dwait("v%d" % j)
        pj = vr(S_ + (j & ~1), 2)
        sel = "op_sel:[0,%d,0] op_sel_hi:[1,%d,1]" % (j & 1, j & 1)
        for p in range(9):
            src = vr(vreg(j) + 2 * p, 2) if p < 8 else vr(TR + 4 * j + 2, 2)
            if j == 0:
                a("v_pk_mul_f32 %s, %s, %s op_sel:[0,0] op_sel_hi:[1,0]" % (vr(O + 2 * p, 2), src, pj))
            else:
                a("v_pk_fma_f32 %s, %s, %s, %s %s" % (vr(O + 2 * p, 2), src, pj, vr(O + 2 * p, 2), sel))
    for p in range(9):
        a("v_cvt_pk_bf16_f32 v%d, v%d, v%d" % (VA + p, O + 2 * p, O + 2 * p + 1))
    a("buffer_store_dwordx4 %s, v%d, s[4:7], s48 offen %s" % (vr(VA, 4), vO, ST))
    a("buffer_store_dwordx4 %s, v%d, s[4:7], s48 offen offset:256 %s" % (vr(VA + 4, 4), vO, ST))
    a("s_waitcnt vmcnt(%d)" % ((33 if opt.get("w64") else 31) if WPF >= 2 else 29))
    a("v_mul_f32 v%d, v%d, v%d" % (VA + 10, O, WB))
    a("v_mul_f32 v%d, v%d, v%d" % (VA + 11, O + 1, WB + 1))
    for p in range(2, 18):
        a("v_fmac_f32 v%d, v%d, v%d" % (VA + 10 + (p & 1), O + p, WB + p))
    a("v_mov_b32 v%d, v%d" % (VA + 9, VA + 8))
    a("v_add_f32 v%d, v%d, v%d" % (VA + 10, VA + 10, VA + 11))
    a("s_nop 0")
    a("v_permlane32_swap_b32 v%d, v%d" % (VA + 8, VA + 9))
    xl_sum(a, [VA + 10], [VA + 11], [32])
    a("s_mov_b64 exec, 0xffffffff")
    a("buffer_store_dwordx4 %s, v%d, s[4:7], s51 offen %s" % (vr(VA + 8, 4), vOB, ST))
    a("s_mov_b64 exec, -1")
    stamp(c)

def phase_B(c):
    a, opt = c.a, c.opt
    LD, ST = "sc1", "sc1"
    B0, AF, NB = 0, 72, 8
    ACC, XR, RC = 32, 56, 68
    idle, join = c.lab("B_idle"), c.lab("B_join")
    a("s_mul_i32 s68, s67, 18432")
    a("s_add_u32 s68, s68, s%d" % sL)
    a("s_add_u32 s69, s68, 0x%x" % L_O)
    a("s_mul_i32 s70, s66, 3072")
    a("s_add_u32 s68, s68, s70")
    a("v_and_b32 v4, 15, v%d" % vLane)
    a("v_lshrrev_b32 v5, 4, v%d" % vLane)
    a("v_lshlrev_b32 v6, 4, v4")
    a("v_lshl_add_u32 v6, v5, 9, v6")
    a("v_lshlrev_b32 v7, 2, v4")
    a("s_lshl_b32 s70, s67, 12")
    a("s_add_u32 s70, s70, s%d" % sL)
    a("s_add_u32 s70, s70, 0x%x" % L_OB)
    a("s_lshl_b32 s71, s67, 6")
    a("s_add_u32 s71, s71, s%d" % sL)
    a("s_add_u32 s71, s71, 0x%x" % L_MEAN)
    a("s_add_u32 s72, s68, 0x%x" % L_XR)
    a("s_lshl_b32 s73, s%d, 6" % sW)
    a("s_lshl_b32 s74, s%d, 2" % sJ)
    a("s_add_u32 s73, s73, s74")
    signal(c, 0, 0, 73)
    a("s_barrier")
    a("s_cmp_eq_u32 s75, 3")
    a("s_cbranch_scc1 %s" % idle)
    a("v_add_u32 v13, 0xd800, v%d" % vL16)
    def rd(i):
        o = i * 1024
        v = vL16
        if o >= 0xd800: v, o = 13, o - 0xd800
        return "ds_read_b128 %s, v%d offset:%d" % (ar(AF + 4 * (i % NB), 4), v, o)
    for i in range(NB - 1): a(rd(i))
    a("s_bfe_u32 s73, s67, 0x20001")
    a("s_lshl_b32 s73, s73, 6")
    a("s_and_b32 s74, s73, 0x80")
    wait_flags(c, 0, 73, 0xffff, solo=(0, 74, 0xffffffff))
    stamp(c)
    log = []
    def em(x, tag):
        a(x)
        if x.startswith("buffer_"): log.append(tag)
    def need(tag):
        idx = max(k for k, t_ in enumerate(log) if t_ == tag)
        return min(63, len(log) - 1 - idx)
    for t in range(16):
        if t % 4 == 0 and t: a("s_add_u32 s69, s69, 4096")
        em("buffer_load_dwordx4 %s, v%d, s[4:7], s69 offen offset:%d %s" % (ar(B0 + 4 * t, 4), vL16, (t % 4) * 1024, LD), t)
    for q in range(4):
        em("buffer_load_dwordx4 %s, v6, s[4:7], s70 offen offset:%d %s" % (vr(RC + 4 * q, 4), (q >> 1) * 2048 + (q & 1) * 256, LD), "rc")
    for u in range(3):
        em("buffer_load_dwordx4 %s, v%d, s[4:7], s72 offen offset:%d %s" % (vr(XR + 4 * u, 4), vL16, u * 1024, LD), "xr")
    em("buffer_load_dword v12, v7, s[4:7], s71 offen %s" % LD, "xr")
    slo = list(c.C_slo)
    for f in range(108):
        t, db = f // 6, f % 6
        if db == 0 and t < 16: a("s_waitcnt vmcnt(%d)" % need(t))
        if f == 90:
            a("s_waitcnt vmcnt(%d)" % need("rc"))
            a("v_add_f32 v8, v%d, v%d" % (RC + 2, RC + 6))
            a("v_add_f32 v9, v%d, v%d" % (RC + 10, RC + 14))
            for q in (0, 2):
                a("v_mov_b32 v%d, v%d" % (RC + 4 * q + 2, RC + 4 * q + 4))
                a("v_mov_b32 v%d, v%d" % (RC + 4 * q + 3, RC + 4 * q + 5))
            a("v_add_f32 v8, v8, v9")
            xl_sum(a, [8], [9], [16, 32])
        if f % 2 == 0: a("s_waitcnt lgkmcnt(%d)" % max(0, min(NB - 3, 106 - f)))
        cc = "0" if t == 0 else vr(ACC + 4 * db, 4)
        bop = ar(B0 + 4 * t, 4) if t < 16 else vr(RC + 8 * (t - 16), 4)
        a("v_mfma_f32_16x16x32_bf16 %s, %s, %s, %s" % (vr(ACC + 4 * db, 4), ar(AF + 4 * (f % NB), 4), bop, cc))
        if f + NB - 1 < 108: a(rd(f + NB - 1))
        if slo and f % 6 == 5 and f >= opt.get("B_slo", 5):
            for x in slo.pop(0): em(x, "slo")
        if f == 44:
            assert not slo
            a("s_barrier")
            slo = list(c.C_shi)
    assert not slo
    stamp(c)
    a("s_add_u32 s71, s68, 0x%x" % L_X1)
    a("s_add_u32 s72, s68, 0x%x" % L_XC)
    a("s_waitcnt vmcnt(%d)" % need("xr"))
    a("v_add_f32 v8, v8, v12")
    a("v_mov_b32 v9, 0")
    for u in range(3):
        for k in range(4):
            a("v_lshlrev_b32 v16, 16, v%d" % (XR + 4 * u + k))
            a("v_and_b32 v17, 0xffff0000, v%d" % (XR + 4 * u + k))
            a("v_add_f32 v16, v16, v%d" % (ACC + 8 * u + 2 * k))
            a("v_add_f32 v17, v17, v%d" % (ACC + 8 * u + 2 * k + 1))
            a("v_cvt_pk_bf16_f32 v%d, v16, v17" % (XR + 4 * u + k))
            a("v_lshlrev_b32 v16, 16, v%d" % (XR + 4 * u + k))
            a("v_and_b32 v17, 0xffff0000, v%d" % (XR + 4 * u + k))
            a("v_sub_f32 v%d, v16, v8" % (ACC + 8 * u + 2 * k))
            a("v_sub_f32 v%d, v17, v8" % (ACC + 8 * u + 2 * k + 1))
            a("v_cvt_pk_bf16_f32 v%d, v%d, v%d" % (20 + 4 * u + k, ACC + 8 * u + 2 * k, ACC + 8 * u + 2 * k + 1))
        a("buffer_store_dwordx4 %s, v%d, s[4:7], s72 offen offset:%d %s" % (vr(20 + 4 * u, 4), vL16, u * 1024, ST))
    a("s_and_b32 s73, s67, 7")
    a("s_lshl_b32 s73, s73, 5")
    a("s_lshl_b32 s74, s66, 2")
    a("s_add_u32 s73, s73, s74")
    for k in range(24):
        a("v_fmac_f32 v9, v%d, v%d" % (ACC + k, ACC + k))
    xl_sum(a, [9], [10], [16, 32])
    signal(c, 1, 0, 73)
    a("s_barrier")
    for g in c.C_rest:
        for x in g: a(x)
    for u in range(3):
        a("buffer_store_dwordx4 %s, v%d, s[4:7], s71 offen offset:%d %s" % (vr(XR + 4 * u, 4), vL16, u * 1024, ST))
    a("v_lshlrev_b32 v6, 5, v4")
    a("s_lshl_b32 s69, s67, 9")
    a("s_add_u32 s69, s69, s74")
    a("s_add_u32 s69, s69, s%d" % sL)
    a("s_add_u32 s69, s69, 0x%x" % L_SSQ)
    a("s_mov_b64 exec, 0xffff")
    a("buffer_store_dword v9, v6, s[4:7], s69 offen %s" % ST)
    a("s_mov_b64 exec, -1")
    a("s_branch %s" % join)
    a.label(idle)
    for g in c.C_slo + c.C_shi + c.C_rest:
        for x in g: a(x)
    nt = 0
    WPF = opt.get("wpf", 2)
    if WPF:
        nopf = c.lab("B_nopf")
        a("s_cmp_lg_u32 s%d, 0" % sL)
        a("s_cbranch_scc1 %s" % nopf)
        a("s_lshl_b32 s68, s%d, 2" % sI)
        a("s_add_u32 s68, s68, s%d" % sW)
        a("s_lshr_b32 s69, s%d, 2" % sJ)
        a("s_mul_i32 s70, s68, %d" % (9 * 9216))
        a("s_mul_i32 s71, s69, 2304")
        a("s_add_u32 s70, s70, s71")
        a("s_mul_i32 s71, s68, 20736")
        a("s_mul_i32 s72, s69, %d" % (1152 * 1152))
        a("s_add_u32 s71, s71, s72")
        srd(a, 84, 40, D * F * 2)
        for k in range(3):
            a("v_add_u32 v4, %d, v%d" % (64 * k, vLane))
            a("v_min_u32 v4, 161, v4")
            a("v_mul_u32_u24 v5, 3641, v4")
            a("v_lshrrev_b32 v5, 16, v5")
            a("v_lshlrev_b32 v%d, 7, v4" % (8 + k))
            a("v_mul_u32_u24 v5, %d, v5" % (9216 - 18 * 128))
            a("v_add_u32 v%d, v5, v%d" % (12 + k, 8 + k))
        for k in range(3 if WPF == 1 else 0):
            a("buffer_load_dword v%d, v%d, s[%d:%d], s70 offen" % (16 + k, 12 + k, sDG, sDG + 3))
            a("buffer_load_dword v%d, v%d, s[%d:%d], s70 offen" % (20 + k, 12 + k, sDU, sDU + 3))
        for k in range(3):
            a("buffer_load_dword v%d, v%d, s[84:87], s71 offen" % (24 + k, 8 + k))
            if opt.get("w64"): a("buffer_load_dword v%d, v%d, s[84:87], s71 offen offset:64" % (28 + k, 8 + k))
        a("s_waitcnt vmcnt(%d)" % (18 if WPF == 1 else (15 if opt.get("w64") else 12)))
        a("s_branch %s" % (nopf + "j"))
        a.label(nopf)
        a("s_waitcnt vmcnt(9)")
        a.label(nopf + "j")
    else:
        a("s_waitcnt vmcnt(9)")
    a("s_barrier")
    stamp(c); stamp(c)
    if c.opt.get("fine"): stamp(c)
    a.label(join)
    stamp(c)

def phase_C(c):
    a, opt = c.a, c.opt
    ST_FLAGS, LD_FLAGS = "sc1", "sc1"
    NB = opt.get("nb", 6)
    L = c.lab("C")
    T0, AG, AU, HB = 0, 32, 64, 96
    H0 = HB + 8
    vDX = [176, 177, 178, 179]
    vDW = [180, 181, 182, 183]
    vR = [[186 + 4 * lv + fb for fb in range(4)] for lv in range(3)]
    vN = [198, 199]
    NV = 200
    LVL = 49152
    X0, AF = 0, 144
    NA = AF + 4 * NB
    sWB = 24
    sRG, sRU = 25, 26
    sD0, sD1, sD2l, sD2h = 27, 28, 29, 30
    sCnt, sHI = 32, 33
    sSt, sStB = 34, 35
    sSlotN, sSlotD, sSlotC = 44, 45, 48
    sW0, sWd0 = 46, 47
    sT, sS, sX = 49, 50, 51

    a("s_mul_i32 s%d, s%d, 9216" % (sWB, sW))
    a("v_mov_b32 v2, v%d" % vLane)
    a("v_lshrrev_b32 v3, 3, v2")
    a("v_and_b32 v4, 7, v2")
    a("v_bfe_u32 v5, v2, 4, 2")
    a("v_lshlrev_b32 v5, 1, v5")
    a("v_xor_b32 v4, v4, v5")
    a("v_and_b32 v6, 3, v4")
    a("v_lshlrev_b32 v4, 4, v4")
    a("v_lshlrev_b32 v6, 4, v6")
    a("s_movk_i32 s%d, 9216" % sT)
    a("v_mad_u32_u24 v%d, v3, s%d, v4" % (vDX[0], sT))
    a("v_mad_u32_u24 v200, v3, s%d, v6" % sT)
    a("s_movk_i32 s%d, 1152" % sT)
    a("v_mad_u32_u24 v%d, v3, s%d, v4" % (vDW[0], sT))
    a("v_mad_u32_u24 v236, v3, s%d, v6" % sT)
    for q in (1, 2, 3):
        a("v_add_u32 v%d, 0x%x, v%d" % (vDX[q], q * (8 * 9216 - 1024), vDX[0]))
        a("v_add_u32 v%d, 0x%x, v200" % (200 + q, q * (8 * 9216 - 1024)))
        a("v_add_u32 v%d, 0x%x, v%d" % (vDW[q], q * (8 * 1152 - 1024), vDW[0]))
    a("v_lshrrev_b32 v3, 2, v2")
    a("v_and_b32 v4, 3, v2")
    a("v_lshlrev_b32 v4, 3, v4")
    a("v_lshl_add_u32 v4, v3, 7, v4")
    a("v_bfe_u32 v5, v2, 3, 2")
    a("v_lshl_add_u32 v%d, v5, 5, v4" % vR[0][0])
    for fb in (1, 2, 3):
        a("v_xor_b32 v%d, %d, v%d" % (vR[0][fb], fb << 5, vR[0][0]))
    for lv in (1, 2):
        for fb in range(4):
            a("v_add_u32 v%d, 0x%x, v%d" % (vR[lv][fb], lv * LVL, vR[0][fb]))
    a("s_mul_i32 s%d, s%d, 576" % (sRG, sJ))
    a("s_mul_i32 s%d, s%d, %d" % (sT, sW, 72 * 9216))
    a("s_add_u32 s%d, s%d, s%d" % (sRG, sRG, sT))
    sHXo, sHXp, sW0p, sD0p, sFo, sFp, sStH, sT2 = 76, 77, 78, 79, 80, 81, 82, 83
    a("s_mul_i32 s%d, s%d, %d" % (sW0, sJ, 288 * 1152))
    a("s_xor_b32 s%d, s%d, 1" % (sT2, sJ))
    a("s_mul_i32 s%d, s%d, %d" % (sW0p, sT2, 288 * 1152))
    a("s_mul_i32 s%d, s%d, %d" % (sT, sW, 72 * 1152))
    a("s_add_u32 s%d, s%d, s%d" % (sW0, sW0, sT))
    a("s_add_u32 s%d, s%d, s%d" % (sW0p, sW0p, sT))
    a("s_cmp_eq_u32 s%d, 0" % sW)
    a("s_cselect_b32 s52, 8, -1")
    a("s_cselect_b32 s53, -8, 1")
    a("s_mul_i32 s52, s52, %d" % (32 * 1152))
    a("s_mul_i32 s53, s53, %d" % (32 * 1152))
    a("s_bitcmp0_b32 s%d, 0" % sJ)
    a("s_cselect_b32 s%d, 512, 0" % sS)
    a("s_cselect_b32 s54, 0, 64")
    a("s_cselect_b32 s%d, s53, %d" % (sWd0, 32 * 1152))
    a("s_cselect_b32 s%d, %d, s53" % (sD0p, 32 * 1152))
    a("s_cselect_b32 s53, s52, 640")
    a("s_cselect_b32 s55, 0, 640")
    a("s_cselect_b32 s52, 0, s52")
    a("s_cselect_b32 s%d, 9, 1" % sStH)
    a("s_cselect_b32 s%d, 1, 2" % sSt)
    a("s_lshl_b32 s%d, s%d, 11" % (sStH, sStH))
    a("s_lshl_b32 s%d, s%d, 11" % (sSt, sSt))
    a("s_add_u32 s%d, s%d, s%d" % (sS, sS, sRG))
    a("s_add_u32 s%d, s%d, s54" % (sRG, sRG))
    a("s_mov_b32 s%d, s%d" % (sRU, sRG))
    a("s_add_u32 s%d, s%d, s53" % (sW0, sW0))
    a("s_add_u32 s%d, s%d, s52" % (sW0p, sW0p))
    a("s_add_u32 s%d, s%d, s55" % (sW0p, sW0p))
    a("s_lshl_b32 s%d, s%d, 6" % (sT, sI))
    a("s_add_u32 s%d, s%d, s%d" % (sT, sT, sW))
    a("s_lshl_b32 s52, s%d, 2" % sJ)
    a("s_lshl_b32 s53, s%d, 2" % sT2)
    a("s_add_u32 s%d, s%d, s52" % (sHXo, sT))
    a("s_add_u32 s%d, s%d, s53" % (sHXp, sT))
    a("s_mul_i32 s%d, s%d, %d" % (sHXo, sHXo, HXS))
    a("s_mul_i32 s%d, s%d, %d" % (sHXp, sHXp, HXS))
    a("s_add_u32 s%d, s%d, 0x%x" % (sHXo, sHXo, WS_P))
    a("s_add_u32 s%d, s%d, 0x%x" % (sHXp, sHXp, WS_P))
    a("s_add_u32 s%d, s%d, s%d" % (sSt, sSt, sHXp))
    a("s_add_u32 s%d, s%d, s%d" % (sStH, sStH, sHXp))
    a("s_add_u32 s%d, s%d, 2048" % (sHXp, sHXp))
    a("s_lshl_b32 s%d, s%d, 6" % (sT, sW))
    a("s_add_u32 s%d, s%d, s%d" % (sT, sT, sFL))
    a("s_add_u32 s%d, s%d, 0x%x" % (sT, sT, 4 * PH))
    a("s_add_u32 s%d, s%d, s52" % (sFo, sT))
    a("s_add_u32 s%d, s%d, s53" % (sFp, sT))
    a("v_cmp_eq_u32 vcc, 0, v%d" % vLane)
    a("v_bfrev_b32 v240, 1")
    a("v_cndmask_b32 v240, v240, 0, vcc")
    a("v_mov_b32 v242, 0")
    a("s_mov_b32 s%d, 0x%x" % (sD0, 32 * 9216))
    a("s_mov_b32 s%d, 0x%x" % (sD1, 32 * 9216))
    a("s_mov_b32 s%d, 0x%x" % (sD2l, (288 - 64) * 9216))
    a("s_mov_b32 s%d, 0x%x" % (sD2h, (-(288 + 64) * 9216 + 128) & 0xffffffff))
    a("s_lshl_b32 s%d, s%d, 2" % (sT, sI))
    a("s_add_u32 s%d, s%d, s%d" % (sT, sT, sW))
    a("s_mul_i32 s%d, s%d, %d" % (sT, sT, 36 * 1024))
    a("s_add_u32 s%d, s%d, 0x%x" % (sX, sT, L_XC))
    a("s_add_u32 s%d, s%d, s%d" % (sX, sX, sL))
    a("s_mov_b32 s%d, 0" % sHI)
    a("s_mov_b32 s%d, -1" % sCnt)
    a("s_mov_b32 s56, 0x0f0f0f0f")
    a("s_mov_b32 s57, 0xf0f0f0f0")
    a("s_bitcmp0_b32 s%d, 0" % sJ)
    a("s_cselect_b32 s52, 8, -1")
    a("s_mul_i32 s52, s52, 64")
    a("v_add_u32 v236, s52, v236")
    a("v_mov_b32 v2, s%d" % sW0)
    a("v_mov_b32 v3, s%d" % sW0p)
    a("v_mov_b32 v4, s%d" % sWd0)
    a("v_mov_b32 v5, s%d" % sD0p)
    a("v_cndmask_b32 v2, v3, v2, s[56:57]")
    a("v_cndmask_b32 v4, v5, v4, s[56:57]")
    a("v_add_u32 v236, v236, v2")
    a("v_add_u32 v237, v236, v4")
    srd(a, sDG, 36, D * F * 2)
    srd(a, sDU, 38, D * F * 2)
    def dma_stage(vo, srdn, run, m0f, deltas):
        out = []
        for g in range(3):
            n = 4 if g < 2 else 1
            out.append([m0f(g)])
            for q in range(n):
                grp = ["buffer_load_dwordx4 v%d, s[%d:%d], s%d offen offset:%d lds" % (vo[q], srdn, srdn + 3, run, q * 1024)]
                if q == n - 1:
                    grp.append("s_add_u32 s%d, s%d, %s" % (run, run, deltas[g]))
                out.append(grp)
        return out
    def R(s_): return (s_ + 3) % 4

    def m0s(slot):
        return lambda g: "s_add_u32 m0, s%d, 0x%x" % (sWB, R(slot) * SLOT + g * 4096)
    def s_stage(slot, half):
        oo = []
        for g in range(3):
            n = 4 if g < 2 else 1
            o = []
            oo.append(o)
            o.append("s_add_u32 s55, s%d, 0x%x" % (sS, (288 * half + 32 * g) * 9216))
            o.append(m0s(slot)(g))
            for (srdn, ex) in ((sDG, "s_mov_b64 exec, s[56:57]"), (sDU, "s_not_b64 exec, s[56:57]")):
                o.append(ex)
                for q in range(n):
                    o.append("buffer_load_dwordx4 v%d, s[%d:%d], s55 offen offset:%d lds" % (200 + q, srdn, srdn + 3, q * 1024))
            o.append("s_mov_b64 exec, -1")
        return oo
    def xload(t):
        o = []
        if t % 4 == 0 and t:
            o.append("s_add_u32 s%d, s%d, 4096" % (sX, sX))
        for mb in range(2):
            o.append("buffer_load_dwordx4 %s, v%d, s[%d:%d], s%d offen offset:%d %s" % (ar(X0 + 4 * (18 * mb + t), 4), (vL16, vL16b)[mb], sWS, sWS + 3, sX, (t % 4) * 1024, LD_FLAGS))
        return o
    log = []
    def emit_logged(lst, tag, out=None):
        for s_ in lst:
            (out.append(s_) if out is not None else a(s_))
            if s_.startswith("buffer_"):
                log.append(tag)
    def need(tag):
        idx = max(k for k, t_ in enumerate(log) if t_ == tag)
        return min(63, len(log) - 1 - idx)

    def fr(i):
        return AF + 4 * (i % NB)
    def reads(i, desc):
        fb, t = desc[2](i)
        if desc[0] == "D":
            o = R(desc[1]) * SLOT + t * 4096
            lv = min(o // LVL, 2)
            v = vR[lv][fb]; o -= lv * LVL
        else:
            v = desc[1][fb]; o = t * 4096
        assert o + 2048 < 65536
        return ["ds_read_b64_tr_b16 %s, v%d offset:%d" % (ar(fr(i), 2), v, o),
                "ds_read_b64_tr_b16 %s, v%d offset:%d" % (ar(fr(i) + 2, 2), v, o + 2048)]
    DIST = NB - 1
    BAR = 36 - DIST
    assert 36 % NB == 0
    IDXSPAN = opt.get("idxspan", False)
    DSP = opt.get("dsp", 5)
    POS = [(i, g) for i in range(36) for g in ((0, 1) if i % 2 == 0 else (0,))]
    class Fill:
        def __init__(s): s.d = {}
        def free(s, p): return p not in s.d
        def put(s, k, grp):
            s.d.setdefault(POS[k], []).extend(grp)
        def seq(s, items, start, step=1):
            k = start
            for g in items:
                while k < len(POS) and POS[k] in s.d: k += 1
                if k >= len(POS):
                    k = len(POS) - 1
                s.d.setdefault(POS[k], []).extend(g)
                k += step
            return k
        def nvm(s, lo, hi):
            return sum(1 for (i, g), l in s.d.items() if lo <= i < hi for x in l if x.startswith("buffer_"))
    def kpos(i):
        return POS.index((i, 0))
    def place_dma(fill, groups, start, step):
        k = start
        pend = []
        for g in groups:
            if "m0" in g[0]:
                pend = g; continue
            if pend:
                fill.put(k - 1, pend); pend = []
            fill.put(k, g[:1])
            if len(g) > 1: fill.put(k + 1, g[1:])
            k += step
    o1 = lambda i: (i % 4, i // 4)
    o2 = lambda i: (2 * (i // 18) + (i % 2), (i % 18) // 2)
    def mf_g1(acc, kbase, first):
        def f(i):
            fb, t = o1(i)
            r = []
            for mb in range(2):
                ac = acc + (fb * 2 + mb) * 4
                c = "0" if (first and t == 0) else vr(ac, 4)
                r.append("v_mfma_f32_16x16x32_bf16 %s, %s, %s, %s" % (vr(ac, 4), ar(fr(i), 4), ar(X0 + 4 * (18 * mb + kbase + t), 4), c))
            return r
        return f
    def cvts(hbase, src):
        cv = []
        for u in range(2):
            for mb in range(2):
                for k in range(4):
                    t = src + ((2 * u + k // 2) * 2 + mb) * 4 + 2 * (k % 2)
                    cv.append("v_cvt_pk_bf16_f32 v%d, v%d, v%d" % (hbase + 8 * u + 4 * mb + k, t, t + 1))
        return cv
    def em(s_):
        if opt.get("nodma") and s_.endswith(" lds"): return
        if opt.get("nost") and s_.startswith("buffer_store"): return
        (a.label(s_[:-1]) if s_.endswith(":") else a(s_))
    def gstage(cur, nxt, mf, fill, barwait, em=em):
        for i in range(36):
            if i == 1: lstamp(c)
            if i == BAR and nxt is not None:
                for s_ in barwait: em(s_)
                a("s_barrier")
            if i % 2 == 0:
                a("s_waitcnt lgkmcnt(%d)" % (2 * (DIST - 2) if nxt is not None else max(0, min(2 * (DIST - 2), 2 * (34 - i)))))
            if i + DIST < 36: rd = reads(i + DIST, cur)
            elif nxt is not None: rd = reads(i + DIST - 36, nxt)
            else: rd = []
            m = mf(i)
            a(m[0])
            if rd: a(rd[0])
            for s_ in fill.d.get((i, 0), []): em(s_)
            a(m[1])
            if rd: a(rd[1])
            for s_ in fill.d.get((i, 1), []): em(s_)

    dl = ["s%d" % sD0, "s%d" % sD1, "s%d" % sD2l]
    dh = ["s%d" % sD0, "s%d" % sD1, "s%d" % sD2h]
    D_ = lambda s: ("D", s, o1)
    side = []

    c.C_slo = s_stage(0, 0)
    c.C_shi = s_stage(1, 1)
    c.C_rest = [(g + ["s_nop 0"] if "m0" in g[0] else g) for g in dma_stage(vDX, sDG, sRG, m0s(2), dl)]
    yield
    for i in range(DIST):
        for s_ in reads(i, D_(0)): a(s_)
    a("s_lshl_b32 s%d, s%d, 6" % (sT, sW))
    wait_flags(c, 1, sT, 0x3f3f, solo=(0, None, 0x3f3f3f3f3f3f3f3f))
    stamp(c)
    lstamp(c)
    CPRE = opt.get("C_pre", 6)
    for t in range(CPRE):
        emit_logged(xload(t), "x%d" % t)
    rest = list(range(CPRE, 18))
    sched = {}
    tt = 1
    while rest:
        sched[tt] = [(xload(t), "x%d" % t) for t in rest[:2]]; rest = rest[2:]; tt += 1
    a("s_mov_b64 vcc, -1")
    a("s_waitcnt vmcnt(%d)" % need("x0"))
    a("s_branch %s_C" % L)
    fillC, fillD = Fill(), Fill()
    for (nm, fill) in (("C", fillC), ("D", fillD)):
        for t in range(1, 10 if nm == "C" else 9):
            lab = "%s_s%s%d" % (L, nm, t)
            fill.d[(4 * t - 1, 0)] = ["s_cbranch_vccnz %s" % lab, lab + "r:"]
    place_dma(fillC, dma_stage(vDX, sDG, sRG, m0s(3), dh), 1, DSP)
    place_dma(fillD, dma_stage(vDX, sDU, sRU, m0s(0), dl), 1, DSP)
    fillD.put(kpos(BAR), ["buffer_store_dword v242, v240, s[4:7], s%d offen sc1" % sFo])
    fillD.put(kpos(BAR) + 2, ["v_add_u32 v242, 1, v242"])
    fillD.put(len(POS) - 2, ["s_add_u32 s%d, s%d, 1" % (sCnt, sCnt)])
    fillD.put(len(POS) - 1, ["s_cmp_lt_u32 s%d, 4" % sCnt])
    mx = [["v_max_f32 v%d, 0, v%d" % (T0 + r, AG + r)] for r in range(32)]
    fillC.seq(mx[:14], 4)
    fillD.seq(mx[14:], 0)
    bars = {}
    for (nm, fill, kb) in (("C", fillC, 0), ("D", fillD, 9)):
        for i in range(36):
            if i == BAR:
                lab = "%s_b%s" % (L, nm)
                bars[nm] = ["s_cbranch_vccnz %s" % lab, "s_waitcnt vmcnt(%d)" % ((13 if nm == "C" else fillC.nvm(0, 36)) + fill.nvm(0, BAR)), lab + "r:"]
                side.append(lab + ":")
                side.append("s_branch %sr" % lab)
            for g in (0, 1):
                for s_ in fill.d.get((i, g), []):
                    if s_.startswith("buffer_"): log.append("f" + nm)
                    if s_.startswith("s_cbranch_vccnz"):
                        t = (i + 1) // 4
                        lab = s_.split()[1]
                        side.append(lab + ":")
                        if nm == "C":
                            for (lst, tag) in sched.get(t, []):
                                emit_logged(lst, tag, side)
                        side.append("s_waitcnt vmcnt(%d)" % need("x%d" % (kb + t)))
                        side.append("s_branch %sr" % lab)
    def barw(fill, prevn=9):
        return ["s_waitcnt vmcnt(%d)" % (prevn + fill.nvm(0, BAR))]

    a.label("%s_g1" % L)
    fill = Fill()
    place_dma(fill, dma_stage(vDX, sDU, sRU, m0s(1), dh), 1, DSP)
    fill.put(3, ["s_cbranch_vccnz %s_fix" % L, "%s_fixr:" % L])
    fill.seq([["v_mul_f32 v%d, v%d, v%d" % (T0 + r, T0 + r, AU + r)] for r in range(32)], 4)
    side.append("%s_fix:" % L)
    for r in range(16):
        side.append("v_max_f32 v%d, 0, v%d" % (T0 + 16 + r, AU + r))
    side.append("s_mov_b64 vcc, 0")
    side.append("s_branch %s_fixr" % L)
    gstage(D_(2), D_(3), mf_g1(AG, 0, True), fill, barw(fill, 10))
    fill = Fill()
    cv = cvts(HB, T0)
    on, off = "s_set_gpr_idx_on s%d, 0x8" % sHI, "s_set_gpr_idx_off"
    fill.put(0, ["s_cmp_eq_u32 s%d, 3" % sCnt, "s_cbranch_scc1 %s_sw" % L, "%s_swr:" % L])
    k = fill.seq([[on] + cv[4 * q:4 * q + 4] + [off] for q in range(4)], 1, 2)
    place_dma(fill, dma_stage(vDX, sDG, sRG, m0s(2), dl), k + 1, opt.get("dspB", 4))
    STG = 204
    def hstores(base, soff):
        return [["buffer_store_dwordx4 %s, v%d, s[%d:%d], s%d offen offset:%d %s" % (vr(base + 4 * q, 4), vL16, sWS, sWS + 3, soff, q * 1024, ST_FLAGS)] for q in range(4)]
    cv2 = cvts(STG, T0)
    hs = hstores(STG, sHXo)
    items = []
    for q in range(4): items += [[x] for x in cv2[4 * q:4 * q + 4]] + [hs[q]]
    k = fill.seq(items, k)
    k = fill.seq([["s_add_u32 s%d, s%d, 16" % (sHI, sHI)], ["s_add_u32 s%d, s%d, 4096" % (sHXo, sHXo)]], k)
    assert fill.nvm(0, 36) == 13
    side.append("%s_sw:" % L)
    for q in range(4):
        side.append("v_mov_b32 v%d, v%d" % (vDX[q], vDW[q]))
    side += ["s_mov_b32 s%d, s40" % sDG, "s_and_b32 s%d, s41, 0xffff" % (sDG + 1),
             "s_mov_b32 s%d, s40" % sDU, "s_and_b32 s%d, s41, 0xffff" % (sDU + 1),
             "s_mov_b32 s%d, s%d" % (sRG, sW0), "s_add_u32 s%d, s%d, 256" % (sRU, sW0),
             "s_mov_b32 s%d, s%d" % (sD0, sWd0), "s_mov_b32 s%d, %d" % (sD1, 32 * 1152),
             "s_sub_u32 s%d, %d, s%d" % (sD2l, 128 - 32 * 1152, sWd0), "s_mov_b32 s%d, s%d" % (sD2h, sD2l),
             "s_branch %s_swr" % L]
    gstage(D_(3), D_(0), mf_g1(AG, 9, False), fill, barw(fill))
    a.label("%s_C" % L)
    gstage(D_(0), D_(1), mf_g1(AU, 0, True), fillC, bars["C"])
    gstage(D_(1), D_(2), mf_g1(AU, 9, False), fillD, bars["D"])
    a("s_cbranch_scc1 %s_g1" % L)
    stamp(c)
    ACCS = [AG, AU, T0, STG]
    glog = ["c"] * fillC.nvm(0, 36) + ["W2"] * 9
    glog = ["W1"] * 9 + ["W2"] * 9 + ["o"]
    def gneed(tag):
        idx = max(k for k, t_ in enumerate(glog) if t_ == tag)
        return min(63, len(glog) - 1 - idx)
    def tagd(groups, tag):
        return [[(x + " ;#" + tag if x.startswith("buffer_") else x) for x in g] for g in groups]
    def em2(s_):
        if s_.startswith("@need "):
            a("s_waitcnt vmcnt(%d)" % gneed(s_.split()[1])); return
        if s_.startswith("buffer_"): glog.append(s_.split(";#")[1] if ";#" in s_ else "o")
        (a.label(s_[:-1]) if s_.endswith(":") else a(s_))
    def mf2(s_):
        def f(i):
            fb, t = o1(i)
            r = []
            for mb in range(2):
                if s_ < 8:
                    ac = ACCS[s_ % 4] + (fb * 2 + mb) * 4
                    first = (s_ < 4 and t == 0)
                    own = s_ < 4
                else:
                    ac = AG + ((fb & 1) * 2 + mb) * 4
                    first = (t == 0 and fb < 2)
                    own = fb < 2
                b = vr(H0 + 8 * t + 4 * mb, 4) if own else ar(X0 + 8 * t + 4 * mb, 4)
                r.append("v_mfma_f32_16x16x32_bf16 %s, %s, %s, %s" % (vr(ac, 4), ar(fr(i), 4), b, "0" if first else vr(ac, 4)))
            return r
        return f
    def out_ep(acc, us, soff):
        g = []
        for u in us:
            for mb in range(2):
                tb = acc + ((2 * u) * 2 + mb) * 4
                for k in range(4):
                    s_ = acc + ((2 * u + k // 2) * 2 + mb) * 4 + 2 * (k % 2)
                    g.append(["v_cvt_pk_bf16_f32 v%d, v%d, v%d" % (tb + k, s_, s_ + 1)])
                g.append(["buffer_store_dwordx4 %s, v%d, s[%d:%d], s%d offen offset:%d %s" % (vr(tb, 4), vL16, sWS, sWS + 3, soff, u * 2048 + mb * 1024, ST_FLAGS)])
        return g
    dp = ["s%d" % sD0p, "s%d" % sD1, "s%d" % sD2h]
    POLL_S, CHK_S = opt.get("poll_s", (2, 0)), opt.get("chk_s", (2, 50))
    for s_ in range(9):
        fill = Fill()
        bw = ["@need W%d" % (s_ + 1)]
        if s_ == 0:
            its = [["v_mul_f32 v%d, v%d, v%d" % (T0 + r, T0 + r, AU + r), "v_mul_f32 v%d, v%d, v%d" % (T0 + r + 1, T0 + r + 1, AU + r + 1)] for r in range(0, 32, 2)]
            cvf = cvts(HB + 64, T0)
            hs = tagd(hstores(HB + 64, sHXo), "hs")
            for q in range(4): its += [[x] for x in cvf[4 * q:4 * q + 4]] + [hs[q]]
            k = fill.seq(its, 2)
            assert k <= kpos(27), k
            place_dma(fill, tagd(dma_stage(vDX, sDU, sRU, m0s(5), dl), "W3"), k + 1, 1)
        elif s_ <= 4:
            if s_ == 1:
                fill.put(0, ["s_mov_b32 s%d, s%d" % (sRU, sW0p), "s_sub_u32 s%d, %d, s%d" % (sD2h, 128 - 32 * 1152, sD0p)])
                fill.put(opt.get("flag_k", 12), ["@need hs", "buffer_store_dword v242, v240, s[4:7], s%d offen sc1" % sFo])
            place_dma(fill, tagd(dma_stage(vDX, sDU, sRU, m0s(5 + s_), dp), "W%d" % (s_ + 3)), 2, DSP)
        NC5 = opt.get("nc5", 9)
        if s_ in (5, 6):
            k = 2
            for n in (range(NC5) if s_ == 5 else range(NC5, 9)):
                fill.put(k - 1, ["s_add_u32 m0, s%d, 0x%x" % (sWB, R(10) * SLOT + n * 1024), "s_mov_b32 s%d, %d" % (sRG, (n if n < 4 else n - 4) * 9216)])
                fill.put(k, ["buffer_load_dwordx4 v%d, s[%d:%d], s%d offen lds ;#W8" % (236 if n < 4 else 237, sDU, sDU + 3, sRG)])
                k += max(DSP, 45 // NC5)
        for n_, (ps, cs) in enumerate((((0, 1), (0, 50)), (POLL_S, CHK_S))):
            if s_ == ps[0]:
                fill.seq([["buffer_load_dword v241, v240, s[4:7], s%d offen sc1 ;#pl%d" % (sFp, n_)]], ps[1])
            if s_ == cs[0]:
                fill.seq([["@need pl%d" % n_, "v_readfirstlane_b32 s%d, v241" % sT2], ["s_cmp_lt_u32 s%d, %d" % (sT2, 4 + n_), "s_cbranch_scc1 %s_slow%d" % (L, n_), "%s_slowr%d:" % (L, n_)]], cs[1])
        HSPL = opt.get("hspl", (0, 7, 14, 18))
        if 1 <= s_ <= 3:
            its = []
            for n in range(HSPL[s_ - 1], HSPL[s_]):
                g = ["buffer_load_dwordx4 %s, v%d, s[4:7], s%d offen offset:%d %s ;#h%d" % (ar(X0 + 4 * n, 4), vL16, sHXp, (n % 4) * 1024, LD_FLAGS, n // 2)]
                if n % 4 == 3: g.append("s_add_u32 s%d, s%d, 4096" % (sHXp, sHXp))
                its.append(g)
            fill.seq(its, 4, min(6, 44 // max(1, len(its))))
        if s_ == 3:
            fill.put(len(POS) - 1, ["@need h0"])
        if s_ == 4:
            for t in range(1, 9): fill.d.setdefault((4 * t - 1, 0), []).append("@need h%d" % t)
        if s_ >= 5:
            k = fill.seq(out_ep(ACCS[s_ - 5], (0, 1), sSt), 4, 2 if s_ > 5 else 1)
            fill.seq([["s_add_u32 s%d, s%d, 4096" % (sSt, sSt)]], k)
        em_save = em
        gstage(D_(2 + s_), D_(3 + s_) if s_ < 8 else None, mf2(s_), fill, bw, em2)
    for n_ in range(2):
        side += ["%s_slow%d:" % (L, n_), "s_mov_b32 s63, 0", "%s_slowl%d:" % (L, n_),
             "buffer_load_dword v241, v240, s[4:7], s%d offen sc1" % sFp, "s_add_u32 s63, s63, 1", "s_waitcnt vmcnt(0)",
             "v_readfirstlane_b32 s%d, v241" % sT2, "s_cmp_ge_u32 s%d, %d" % (sT2, 4 + n_), "s_cbranch_scc1 %s_slowr%d" % (L, n_),
             "s_cmp_lt_u32 s63, 0x%x" % c.maxpoll, "s_cbranch_scc1 %s_slowl%d" % (L, n_), "s_branch %s_slowr%d" % (L, n_)]
    lstamp(c)
    a("s_nop 7")
    for grp in out_ep(AG, (0,), sStH):
        for s_ in grp: a(s_)
    if opt.get("cst"):
        a("s_waitcnt lgkmcnt(0)")
        lstamp(c)
    c.side += side
    yield

def unpack8(a, src, dst):
    for k in range(4):
        a("v_lshlrev_b32 v%d, 16, v%d" % (dst + 2 * k, src + k))
        a("v_and_b32 v%d, 0xffff0000, v%d" % (dst + 2 * k + 1, src + k))

def phase_D(c):
    a, opt = c.a, c.opt
    LD, ST = "sc1", "sc1"
    L = c.lab("D")
    P0 = 40
    X1, ACC, TM = 8, 232, 24
    a("v_and_b32 v1, 7, v%d" % vLane)
    a("v_lshrrev_b32 v2, 3, v%d" % vLane)
    a("s_mul_i32 s24, s%d, 24" % sW)
    a("v_add_u32 v2, s24, v2")
    a("v_lshlrev_b32 v3, 4, v1")
    a("v_lshl_add_u32 v3, v2, 8, v3")
    a("v_add_u32 v4, 4096, v3")
    a("s_lshl_b32 s25, s%d, 4" % sI)
    a("s_add_u32 s25, s25, s%d" % sJ)
    a("s_lshr_b32 s26, s25, 1")
    a("s_mul_i32 s26, s26, 18432")
    a("s_and_b32 s27, s25, 1")
    a("s_lshl_b32 s27, s27, 7")
    a("s_add_u32 s26, s26, s27")
    a("s_add_u32 s27, s26, s%d" % sL)
    a("s_add_u32 s28, s27, 0x%x" % L_X1)
    a("s_lshl_b32 s29, s25, 8")
    a("s_add_u32 s29, s29, s%d" % sL)
    a("s_add_u32 s29, s29, 0x%x" % L_SSQ)
    a("v_lshlrev_b32 v5, 5, v1")
    a("s_lshl_b32 s30, s%d, 6" % sI)
    a("s_lshr_b32 s31, s%d, 2" % sJ)
    a("s_add_u32 s30, s30, s31")
    a("s_mul_i32 s30, s30, %d" % HXS)
    a("s_bfe_u32 s31, s%d, 0x10001" % sJ)
    a("s_lshl_b32 s31, s31, 10")
    a("s_add_u32 s30, s30, s31")
    a("s_and_b32 s31, s%d, 1" % sJ)
    a("s_lshl_b32 s31, s31, 7")
    a("s_add_u32 s30, s30, s31")
    a("s_add_u32 s30, s30, 0x%x" % (WS_P + 2048))
    for q in range(3):
        a("v_add_u32 v6, %d, v2" % (8 * q))
        a("v_lshrrev_b32 v7, 2, v6")
        a("v_and_b32 v6, 3, v6")
        a("v_lshlrev_b32 v6, 8, v6")
        a("v_lshl_add_u32 v6, v1, 4, v6")
        a("v_lshl_add_u32 v6, v7, 11, v6")
        a("v_add_u32 v38, %d, v6" % (4 * HXS))
        a("v_subrev_u32 v6, %d, v6" % (9 * 2048))
        a("v_cmp_gt_u32 vcc, 9, v7")
        a("s_nop 1")
        a("v_cndmask_b32 v%d, v6, v38, vcc" % (200 + q))
    def ld3(dst, soff):
        a("buffer_load_dwordx4 %s, v3, s[4:7], s%d offen %s" % (vr(dst, 4), soff, LD))
        a("buffer_load_dwordx4 %s, v3, s[4:7], s%d offen offset:2048 %s" % (vr(dst + 4, 4), soff, LD))
        a("buffer_load_dwordx4 %s, v4, s[4:7], s%d offen %s" % (vr(dst + 8, 4), soff, LD))
    a("s_lshl_b32 s31, s%d, 6" % sW)
    a("s_lshl_b32 s32, s%d, 2" % sJ)
    a("s_add_u32 s31, s31, s32")
    a("s_barrier")
    signal(c, 2, 0, 31)
    w3 = c.lab("D_w3")
    a("s_cmp_eq_u32 s%d, 3" % sW)
    a("s_cbranch_scc1 %s" % w3)
    a("s_lshr_b32 s31, s%d, 2" % sJ)
    a("s_lshl_b32 s31, s31, 6")
    wait_flags(c, 2, 31, 0xffff, solo=(0, 31, 0xffff))
    stamp(c)
    NP = c.NP
    for j in range(NP):
        for q in range(3):
            a("buffer_load_dwordx4 %s, v%d, s[4:7], s30 offen %s" % (vr(P0 + 12 * j + 4 * q, 4), 200 + q, LD))
        if j < NP - 1: a("s_add_u32 s30, s30, 0x%x" % (8 * HXS))
    ld3(X1, 28)
    a("buffer_load_dwordx4 v[32:35], v5, s[4:7], s29 offen %s" % LD)
    a("buffer_load_dwordx2 v[36:37], v5, s[4:7], s29 offen offset:16 %s" % LD)
    AC = [232, 240, 24]
    T2 = 20
    for j in range(NP):
        for q in range(3):
            a("s_waitcnt vmcnt(%d)" % (3 * NP + 4 - 3 * j - q))
            src = P0 + 12 * j + 4 * q
            if j == 0:
                unpack8(a, src, AC[q])
            else:
                for k in range(4):
                    a("v_lshlrev_b32 v%d, 16, v%d" % (T2, src + k))
                    a("v_and_b32 v%d, 0xffff0000, v%d" % (T2 + 1, src + k))
                    a("v_add_f32 v%d, v%d, v%d" % (AC[q] + 2 * k, AC[q] + 2 * k, T2))
                    a("v_add_f32 v%d, v%d, v%d" % (AC[q] + 2 * k + 1, AC[q] + 2 * k + 1, T2 + 1))
    a("s_waitcnt vmcnt(0)")
    a("v_add_f32 v32, v32, v33")
    a("v_add_f32 v34, v34, v35")
    a("v_add_f32 v36, v36, v37")
    a("v_add_f32 v32, v32, v34")
    a("v_add_f32 v32, v32, v36")
    a("v_mov_b32 v33, 0x%x" % f2u(1e-5))
    a("s_mov_b32 s31, 0x%x" % f2u(1.0 / 576))
    a("v_fma_f32 v32, v32, s31, v33")
    a("v_rcp_f32 v32, v32")
    XF = 40
    for q in range(3):
        unpack8(a, X1 + 4 * q, XF + 8 * q)
        for k in range(8):
            a("v_fmac_f32 v%d, v%d, v32" % (XF + 8 * q + k, AC[q] + k))
        for k in range(4):
            a("v_cvt_pk_bf16_f32 v%d, v%d, v%d" % (X1 + 4 * q + k, XF + 8 * q + 2 * k, XF + 8 * q + 2 * k + 1))
    fin = c.lab("D_fin")
    a("s_cmp_lg_u32 s%d, 0" % sL)
    a("s_cbranch_scc1 %s" % fin)
    def st3(src, soff):
        a("buffer_store_dwordx4 %s, v3, s[4:7], s%d offen %s" % (vr(src, 4), soff, ST))
        a("buffer_store_dwordx4 %s, v3, s[4:7], s%d offen offset:2048 %s" % (vr(src + 4, 4), soff, ST))
        a("buffer_store_dwordx4 %s, v4, s[4:7], s%d offen %s" % (vr(src + 8, 4), soff, ST))
    for q in range(3): unpack8(a, X1 + 4 * q, XF + 8 * q)
    a("s_add_u32 s28, s26, 0x%x" % (LSTR + L_XR))
    st3(X1, 28)
    a("v_add_f32 v34, v%d, v%d" % (XF, XF + 1))
    a("v_mul_f32 v35, v%d, v%d" % (XF, XF))
    a("v_fmac_f32 v35, v%d, v%d" % (XF + 1, XF + 1))
    for k in range(2, 24):
        a("v_add_f32 v34, v34, v%d" % (XF + k))
        a("v_fmac_f32 v35, v%d, v%d" % (XF + k, XF + k))
    xl_sum(a, [34, 35], [36, 37], [8, 16, 32])
    a("v_lshlrev_b32 v36, 5, v1")
    a("v_add_u32 v36, %d, v36" % LDS_D)
    a("s_lshl_b32 s24, s%d, 3" % sW)
    a("v_add_u32 v37, s24, v36")
    a("ds_write_b64 v37, v[34:35]")
    a("s_waitcnt lgkmcnt(0)")
    a("s_barrier")
    a("ds_read_b128 v[64:67], v36")
    a("ds_read_b64 v[34:35], v36 offset:16")
    a("s_waitcnt lgkmcnt(0)")
    a("v_add_f32 v34, v34, v64")
    a("v_add_f32 v35, v35, v65")
    a("v_add_f32 v34, v34, v66")
    a("v_add_f32 v35, v35, v67")
    a("v_mul_f32 v34, s31, v34")
    a("v_mul_f32 v36, v34, v34")
    a("v_fma_f32 v35, v35, s31, -v36")
    a("v_max_f32 v35, 0, v35")
    a("v_add_f32 v35, 0x%x, v35" % f2u(1e-5))
    a("v_rsq_f32 v35, v35")
    for k in range(24): a("v_sub_f32 v%d, v%d, v34" % (XF + k, XF + k))
    for k in range(24): a("v_mul_f32 v%d, v%d, v35" % (XF + k, XF + k))
    for k in range(12): a("v_cvt_pk_bf16_f32 v%d, v%d, v%d" % (64 + k, XF + 2 * k, XF + 2 * k + 1))
    a("s_add_u32 s28, s26, 0x%x" % (LSTR + L_XN))
    st3(64, 28)
    a("v_lshlrev_b32 v36, 2, v1")
    a("s_lshl_b32 s28, s25, 5")
    a("s_add_u32 s28, s28, 0x%x" % (LSTR + L_MEAN))
    a("s_mov_b64 exec, 0xff")
    a("buffer_store_dword v34, v36, s[4:7], s28 offen %s" % ST)
    a("s_mov_b64 exec, -1")
    a("s_lshl_b32 s33, s%d, 4" % sJ)
    a("s_lshl_b32 s32, s%d, 2" % sW)
    a("s_add_u32 s33, s33, s32")
    signal(c, 3, 1, 33)
    j2 = c.lab("D_j2")
    a("s_branch %s" % j2)
    a.label(w3)
    a("s_cmp_lg_u32 s%d, 0" % sL)
    a("s_cbranch_scc1 %s" % c.endlab)
    if "2" in c.opt.get("solo", "0123"): a("s_barrier")
    prefetch_A(c, solo=True)
    a("s_barrier")
    a.label(j2)
    stamp(c)
    a("s_mov_b32 s%d, 0x%x" % (sL, LSTR))
    a("s_add_u32 s%d, s%d, %d" % (sFL, sFL, 8 * PH))
    a("s_branch %s" % c.looplab)
    a.label(fin)
    srd(a, sOUT, 42, ACT)
    a("v_and_b32 v5, 8, v%d" % vLane)
    a("v_cmp_eq_u32 vcc, 0, v5")
    a("v_lshrrev_b32 v6, 2, v2")
    a("v_lshlrev_b32 v6, 6, v6")
    a("v_lshl_add_u32 v6, v5, 2, v6")
    a("v_and_b32 v7, 16, v%d" % vLane)
    a("v_add_u32 v6, v6, v7")
    a("v_mul_u32_u24 v7, 1152, v1")
    a("v_add_u32 v6, v6, v7")
    a("s_mul_i32 s28, s25, %d" % (8 * 1152))
    for q in range(3):
        x = X1 + 4 * q
        for k in range(4):
            a("v_mov_b32_dpp v%d, v%d row_ror:8 row_mask:0xf bank_mask:0xf" % (40 + k, x + k))
        o = 48 + 4 * q
        a("v_cndmask_b32 v%d, v42, v%d, vcc" % (o, x))
        a("v_cndmask_b32 v%d, v43, v%d, vcc" % (o + 1, x + 1))
        a("v_cndmask_b32 v%d, v%d, v40, vcc" % (o + 2, x + 2))
        a("v_cndmask_b32 v%d, v%d, v41, vcc" % (o + 3, x + 3))
        a("buffer_store_dwordx4 %s, v6, s[16:19], s28 offen offset:%d" % (vr(o, 4), 128 * q))

def gen_mega(a, name, opt=None):
    c = Ctx()
    c.a, c.opt = a, (opt or {})
    c.stamp = c.opt.get("stamp", False)
    c.maxpoll = c.opt.get("maxpoll", 200000)
    c.sigwave = c.opt.get("sigwave", 0)
    c.side = []
    c.NP = 8
    c.n = 0
    def lab(p):
        c.n += 1
        return "m_%s_%d" % (p, c.n)
    c.lab = lab
    c.endlab, c.looplab = "m_end", "m_layer"
    kernel_begin(a, name)
    a("s_cmp_ge_u32 s2, 256")
    a("s_cbranch_scc1 m_exit")
    a("s_load_dwordx4 s[36:39], s[0:1], 32")
    a("s_load_dwordx4 s[40:43], s[0:1], 48")
    a("s_load_dwordx2 s[24:25], s[0:1], 72")
    a("v_lshrrev_b32 v1, 6, v0")
    a("v_and_b32 v%d, 63, v0" % vLane)
    a("v_readfirstlane_b32 s%d, v1" % sW)
    xmap(a, c.opt.get("xmap", 4), sJ, sI, 26)
    a("v_lshlrev_b32 v%d, 4, v%d" % (vL16, vLane))
    a("v_add_u32 v%d, 18432, v%d" % (vL16b, vL16))
    a("s_mov_b32 s%d, 0" % sL)
    a("s_lshl_b32 s%d, s%d, 8" % (sFL, sI))
    a("s_add_u32 s%d, s%d, 0x%x" % (sFL, sFL, WS_FL))
    a("s_mov_b32 s%d, 0" % sSTI)
    a("s_waitcnt lgkmcnt(0)")
    srd(a, sWS, 24, WS_END + (0x40000 if c.stamp else 0))
    stamp(c)
    prefetch_A(c)
    if c.opt.get("warm"):
        a("s_lshl_b32 s24, s%d, 6" % sI)
        a("s_lshl_b32 s25, s%d, 2" % sJ)
        a("s_add_u32 s24, s24, s25")
        a("s_add_u32 s24, s24, s%d" % sW)
        a("s_mul_i32 s24, s24, %d" % HXS)
        a("s_add_u32 s24, s24, 0x%x" % WS_P)
        if c.opt["warm"] == "tlb":
            a("v_lshlrev_b32 v1, 12, v%d" % vLane)
            a("s_mov_b64 exec, 0x1f")
            a("buffer_load_dword v240, v1, s[4:7], s24 offen")
            a("s_mov_b64 exec, -1")
        else:
            a("v_lshlrev_b32 v1, 7, v%d" % vLane)
            for q in range(3):
                if q == 2: a("s_mov_b64 exec, 0xffffffff")
                a("buffer_load_dword v%d, v1, s[4:7], s24 offen" % (240 + q))
                a("s_add_u32 s24, s24, 8192")
            a("s_mov_b64 exec, -1")
    a.label(c.looplab)
    phase_A(c)
    gC = phase_C(c)
    next(gC)
    phase_B(c)
    next(gC)
    stamp(c)
    phase_D(c)
    a.label(c.endlab)
    if c.stamp:
        a("s_waitcnt vmcnt(0)")
        stamp(c)
        a("s_lshl_b32 s24, s2, 2")
        a("s_add_u32 s24, s24, s%d" % sW)
        a("s_lshl_b32 s24, s24, 8")
        a("s_add_u32 s24, s24, 0x%x" % WS_END)
        a("v_lshlrev_b32 v0, 2, v%d" % vLane)
        a("buffer_store_dword v%d, v0, s[4:7], s24 offen" % vST)
    if c.opt.get("dbg"):
        a("s_cmp_lg_u32 s2, %d" % c.opt.get("dbg_wg", 37))
        a("s_cbranch_scc1 m_exit")
        a("s_cmp_lg_u32 s%d, 0" % sW)
        a("s_cbranch_scc1 m_exit")
        a("s_load_dwordx2 s[24:25], s[0:1], 64")
        a("s_waitcnt lgkmcnt(0)")
        srd(a, 8, 24, 64)
        a("v_mov_b32 v0, 0x%x" % (WS_WBAR + 4000))
        a("buffer_load_dword v1, v0, s[4:7], 0 offen")
        a("v_mov_b32 v0, 0")
        a("s_waitcnt vmcnt(0)")
        a("buffer_store_dword v1, v0, s[8:11], 0 offen")
        a("s_nop 1")
        sel = [0, 1, 4, 5, 7, 8, 9, 10, 11, 12, 13, 20, 22, 23, 24]
        for k, x in enumerate(sel):
            a("v_readlane_b32 s26, v%d, %d" % (vST, x))
            a("s_nop 3")
            a("v_mov_b32 v1, s26")
            a("v_mov_b32 v0, %d" % (4 * k + 4))
            a("buffer_store_dword v1, v0, s[8:11], 0 offen")
            a("s_nop 1")
    a.label("m_exit")
    a("s_endpgm")
    for s_ in c.side:
        (a.label(s_[:-1]) if s_.endswith(":") else a(s_))
    return kernel_desc(name, 512, 256)
```

```python
from mcommon import *
WS_XN, WS_XR, WS_MEAN = L_XN, L_XR, L_MEAN

def unpack8(a, src, dst):
    for k in range(4):
        a("v_lshlrev_b32 v%d, 16, v%d" % (dst + 2 * k, src + k))
        a("v_and_b32 v%d, 0xffff0000, v%d" % (dst + 2 * k + 1, src + k))

def ln_tail(a, XB, XF, vOff, sWS, sBase, sRow, vTid, L, st_flags=""):
    unpack8(a, XB, XF)
    a("s_add_u32 s30, s%d, 0x%x" % (sBase, WS_XR))
    a("buffer_store_dwordx4 %s, v%d, s[%d:%d], s30 offen %s" % (vr(XB, 4), vOff, sWS, sWS + 3, st_flags))
    a("v_add_f32 v40, v%d, v%d" % (XF, XF + 1))
    a("v_mul_f32 v41, v%d, v%d" % (XF, XF))
    a("v_fmac_f32 v41, v%d, v%d" % (XF + 1, XF + 1))
    for k in range(2, 8):
        a("v_add_f32 v40, v40, v%d" % (XF + k))
        a("v_fmac_f32 v41, v%d, v%d" % (XF + k, XF + k))
    xl_sum(a, [40, 41], [42, 43], [8, 16, 32])
    a("v_and_b32 v44, 7, v%d" % vTid)
    a("v_mul_u32_u24 v44, 80, v44")
    a("v_lshrrev_b32 v45, 6, v%d" % vTid)
    a("v_lshl_add_u32 v45, v45, 3, v44")
    a("ds_write_b64 v45, v[40:41]")
    a("s_waitcnt lgkmcnt(0)")
    a("s_barrier")
    for q in range(4):
        a("ds_read_b128 %s, v44 offset:%d" % (vr(46 + 4 * q, 4), 16 * q))
    a("ds_read_b64 v[40:41], v44 offset:64")
    a("s_waitcnt lgkmcnt(0)")
    for q in range(8):
        a("v_add_f32 v40, v40, v%d" % (46 + 2 * q))
        a("v_add_f32 v41, v41, v%d" % (47 + 2 * q))
    a("s_mov_b32 s31, 0x%x" % f2u(1.0 / 576))
    a("v_mul_f32 v40, s31, v40")
    a("v_mul_f32 v42, v40, v40")
    a("v_fma_f32 v41, v41, s31, -v42")
    a("v_max_f32 v41, 0, v41")
    a("v_add_f32 v41, 0x%x, v41" % f2u(1e-5))
    a("v_rsq_f32 v41, v41")
    for k in range(8):
        a("v_sub_f32 v%d, v%d, v40" % (XF + k, XF + k))
    for k in range(8):
        a("v_mul_f32 v%d, v%d, v41" % (XF + k, XF + k))
    for k in range(4):
        a("v_cvt_pk_bf16_f32 v%d, v%d, v%d" % (46 + k, XF + 2 * k, XF + 2 * k + 1))
    a("s_add_u32 s30, s%d, 0x%x" % (sBase, WS_XN))
    a("buffer_store_dwordx4 v[46:49], v%d, s[%d:%d], s30 offen %s" % (vOff, sWS, sWS + 3, st_flags))
    a("v_lshlrev_b32 v44, 2, v%d" % vTid)
    a("v_cmp_gt_u32 vcc, 8, v%d" % vTid)
    a("s_lshl_b32 s30, s%d, 2" % sRow)
    a("s_add_u32 s30, s30, 0x%x" % WS_MEAN)
    a("s_and_saveexec_b64 s[32:33], vcc")
    a("s_cbranch_execz %s_nomean" % L)
    a("buffer_store_dword v40, v44, s[%d:%d], s30 offen %s" % (sWS, sWS + 3, st_flags))
    a.label("%s_nomean" % L)

import struct
def f2u(x): return struct.unpack("<I", struct.pack("<f", x))[0]

def gen_k0(a, name, opt=None):
    opt = opt or {}
    kernel_begin(a, name)
    L = name
    sWS, sIN = 4, 8
    a("s_cmp_ge_u32 s2, 616")
    a("s_cbranch_scc1 %s_end" % L)
    a("s_load_dwordx2 s[12:13], s[0:1], 72")
    a("s_load_dwordx4 s[24:27], s[0:1], 0")
    a("s_load_dwordx2 s[28:29], s[0:1], 16")
    K0T = opt.get("k0t")
    if K0T:
        a("s_mul_i32 s40, s2, 911")
        a("s_lshr_b32 s40, s40, 16")
        a("s_mul_i32 s41, s40, 72")
        a("s_sub_u32 s41, s2, s41")
        a("s_mul_i32 s41, s41, %d" % (576 * 128))
        a("s_cmp_ge_u32 s40, %d" % opt.get("k0n", 3))
        a("s_cselect_b32 s41, 0x7f000000, s41")
        a("s_min_u32 s40, s40, 2")
        a("s_lshl_b32 s40, s40, 3")
        a("s_add_u32 s42, s0, s40")
        a("s_addc_u32 s43, s1, 0")
        a("s_load_dwordx2 s[42:43], s[42:43], 32")
        a("v_lshlrev_b32 v30, 7, v0")
    def touch():
        srd(a, 44, 42, D * F * 2)
        a("buffer_load_dword v31, v30, s[44:47], s41 offen")
    if opt.get("dbg"):
        a("s_cmp_lg_u32 s2, 0")
        a("s_cbranch_scc1 %s_nd" % L)
        a("s_load_dwordx2 s[34:35], s[0:1], 72")
        a("s_memrealtime s[36:37]")
        a("s_waitcnt lgkmcnt(0)")
        srd(a, 48, 34, WS_END)
        a("v_mov_b32 v1, s36")
        a("v_mov_b32 v2, 0x%x" % (WS_WBAR + 4000))
        a("buffer_store_dword v1, v2, s[48:51], 0 offen")
        a("s_nop 1")
        a.label("%s_nd" % L)
    if opt.get("ct"):
        a("s_cmp_lt_u32 s2, %d" % (616 - opt["ct"]))
        a("s_cbranch_scc1 %s_nct" % L)
        a("s_getpc_b64 s[52:53]")
        a("s_and_b32 s53, s53, 0xffff")
        a("s_mov_b32 s54, m_exit-k0_kernel")
        a("s_mov_b32 s55, 0x20000")
        a("v_lshlrev_b32 v62, 7, v0")
        a("buffer_load_dword v63, v62, s[52:55], 0 offen")
        a.label("%s_nct" % L)
    a("v_lshrrev_b32 v1, 6, v0")
    a("v_and_b32 v2, 63, v0")
    a("v_readfirstlane_b32 s23, v1")
    a("s_cmp_ge_u32 s2, 256")
    a("s_cbranch_scc1 %s_pack" % L)
    a("v_and_b32 v1, 7, v0")
    a("v_lshrrev_b32 v2, 3, v0")
    a("v_lshlrev_b32 v3, 4, v1")
    a("v_lshl_add_u32 v3, v2, 8, v3")
    a("s_lshr_b32 s16, s2, 1")
    a("s_mul_i32 s16, s16, 18432")
    a("s_and_b32 s17, s2, 1")
    a("s_lshl_b32 s17, s17, 7")
    a("s_add_u32 s16, s16, s17")
    a("s_lshl_b32 s18, s2, 3")
    a("v_lshrrev_b32 v5, 2, v2")
    a("v_lshlrev_b32 v5, 6, v5")
    a("v_and_b32 v6, 3, v2")
    a("v_lshl_add_u32 v5, v6, 3, v5")
    a("v_mul_u32_u24 v6, 1152, v1")
    a("v_add_u32 v5, v5, v6")
    a("s_mul_i32 s22, s18, 1152")
    a("s_waitcnt lgkmcnt(0)")
    srd(a, sWS, 12, WS_END)
    srd(a, sIN, 24, ACT)
    a("buffer_load_dwordx2 v[8:9], v5, s[8:11], s22 offen")
    a("buffer_load_dwordx2 v[10:11], v5, s[8:11], s22 offen offset:32")
    if K0T == "e": touch()
    a("s_waitcnt vmcnt(%d)" % (1 if K0T == "e" else 0))
    if K0T == "m": touch()
    ln_tail(a, 8, 32, 3, sWS, 16, 18, 0, L, opt.get("st_flags", ""))
    if K0T == "l":
        a("s_mov_b64 exec, -1")
        touch()
    a("s_endpgm")
    a.label("%s_pack" % L)
    a("v_and_b32 v3, 15, v2")
    a("v_lshrrev_b32 v4, 4, v2")
    a("v_lshlrev_b32 v5, 4, v2")
    a("s_sub_u32 s16, s2, 256")
    a("s_mul_i32 s16, s16, 9")
    a("s_add_u32 s16, s16, s23")
    a("s_waitcnt lgkmcnt(0)")
    srd(a, sWS, 12, WS_END)
    a("s_cmp_ge_u32 s2, 480")
    a("s_cbranch_scc1 %s_wo" % L)
    srd(a, sIN, 26, 576 * 1728 * 2)
    a("s_mul_i32 s17, s16, 9363")
    a("s_lshr_b32 s17, s17, 16")
    a("s_mul_i32 s18, s17, 7")
    a("s_sub_u32 s18, s16, s18")
    a("s_mul_i32 s19, s17, 3641")
    a("s_lshr_b32 s19, s19, 16")
    a("s_mul_i32 s20, s19, 18")
    a("s_sub_u32 s20, s17, s20")
    a("s_lshr_b32 s21, s18, 1")
    a("s_add_u32 s21, s21, 1")
    a("s_cmp_eq_u32 s21, 3")
    a("s_cselect_b32 s21, 0, s21")
    a("s_mul_i32 s21, s21, 576")
    a("s_and_b32 s22, s18, 1")
    a("s_mul_i32 s22, s22, 18")
    a("s_add_u32 s21, s21, s22")
    a("v_add_u32 v6, s21, v3")
    a("v_bfe_u32 v7, v3, 1, 1")
    a("v_bfe_u32 v8, v3, 2, 1")
    a("v_mul_u32_u24 v9, 576, v7")
    a("v_mul_u32_u24 v8, 18, v8")
    a("v_add3_u32 v9, v9, v8, 576" if False else "v_add_u32 v9, v9, v8")
    a("v_add_u32 v9, 576, v9")
    a("v_mul_u32_u24 v8, 18, v7")
    a("v_cmp_gt_u32 vcc, 8, v3")
    a("s_nop 1")
    a("v_cndmask_b32 v9, v8, v9, vcc")
    a("v_and_b32 v8, 1, v3")
    a("v_add3_u32 v9, v9, v8, 16")
    a("v_mov_b32 v8, 0x1000000")
    a("v_cmp_gt_u32 vcc, 12, v3")
    a("s_nop 1")
    a("v_cndmask_b32 v9, v8, v9, vcc")
    a("s_cmp_eq_u32 s18, 6")
    a("s_cselect_b64 vcc, -1, 0")
    a("v_cndmask_b32 v6, v6, v9, vcc")
    a("v_lshlrev_b32 v6, 1, v6")
    a("s_movk_i32 s21, %d" % (4 * 3456))
    a("v_mad_u32_u24 v6, v4, s21, v6")
    a("s_mul_i32 s21, s20, %d" % (32 * 3456))
    a("s_mul_i32 s22, s19, 72")
    a("s_add_u32 s21, s21, s22")
    for e in range(8):
        row = e if e < 4 else 16 + e - 4
        a("s_add_u32 s22, s21, %d" % (row * 3456))
        a("buffer_load_ushort v%d, v6, s[8:11], s22 offen" % (20 + e))
    a("s_lshl_b32 s16, s16, 10")
    a("s_add_u32 s16, s16, 0x%x" % WS_WQ)
    a("s_waitcnt vmcnt(0)")
    for p in range(4):
        a("v_lshl_or_b32 v%d, v%d, 16, v%d" % (12 + p, 21 + 2 * p, 20 + 2 * p))
    a("buffer_store_dwordx4 v[12:15], v5, s[4:7], s16 offen %s" % opt.get("st_flags", ""))
    a("s_endpgm")
    a.label("%s_wo" % L)
    srd(a, sIN, 28, 576 * 576 * 2)
    a("s_cmp_ge_u32 s2, 552")
    a("s_cbranch_scc1 %s_wbar" % L)
    a("s_sub_u32 s16, s16, 2016")
    a("s_mul_i32 s17, s16, 10923")
    a("s_lshr_b32 s17, s17, 16")
    a("s_mul_i32 s18, s17, 6")
    a("s_sub_u32 s18, s16, s18")
    a("s_mul_i32 s19, s17, 3641")
    a("s_lshr_b32 s19, s19, 16")
    a("s_mul_i32 s20, s19, 18")
    a("s_sub_u32 s20, s17, s20")
    a("s_lshl_b32 s20, s20, 2")
    a("v_add_u32 v6, s20, v4")
    a("v_lshrrev_b32 v9, 1, v6")
    a("v_mul_u32_u24 v9, 18, v9")
    a("v_and_b32 v10, 1, v6")
    a("v_lshl_add_u32 v9, v10, 3, v9")
    a("v_mul_u32_u24 v10, 72, v6")
    a("v_subrev_u32 v10, %d, v10" % (64 * 72 - 16))
    a("v_cmp_le_u32 vcc, 64, v6")
    a("v_mov_b32 v11, %d" % (2 * 1152))
    a("v_mov_b32 v16, %d" % (18 * 1152))
    a("v_cndmask_b32 v9, v9, v10, vcc")
    a("v_cndmask_b32 v11, v11, v16, vcc")
    a("v_mul_u32_u24 v9, 1152, v9")
    a("v_lshl_add_u32 v9, v3, 1, v9")
    a("s_mul_i32 s21, s19, 6")
    a("s_add_u32 s21, s21, s18")
    a("s_lshl_b32 s21, s21, 5")
    for p in range(4):
        a("buffer_load_ushort v%d, v9, s[8:11], s21 offen" % (20 + 2 * p))
        a("buffer_load_ushort v%d, v9, s[8:11], s21 offen offset:1152" % (21 + 2 * p))
        if p < 3: a("v_add_u32 v9, v9, v11")
    a("s_lshl_b32 s16, s16, 10")
    a("s_add_u32 s16, s16, 0x%x" % WS_WO)
    a("s_waitcnt vmcnt(0)")
    for p in range(4):
        a("v_lshl_or_b32 v%d, v%d, 16, v%d" % (12 + p, 21 + 2 * p, 20 + 2 * p))
    a("buffer_store_dwordx4 v[12:15], v5, s[4:7], s16 offen %s" % opt.get("st_flags", ""))
    a("s_endpgm")
    a.label("%s_wbar" % L)
    a("s_sub_u32 s16, s16, 2664")
    FSH = opt.get("fsh", 2)
    a("s_cmp_lt_u32 s16, 128")
    a("s_cselect_b32 s18, %d, 7" % (2 + FSH))
    a("s_cselect_b32 s19, 0, 0x%x" % (WS_PF - WS_FL - 128 * 8192))
    a("s_add_u32 s17, s18, 6")
    a("s_lshl_b32 s17, s16, s17")
    a("s_add_u32 s17, s17, s19")
    a("s_add_u32 s17, s17, 0x%x" % WS_FL)
    a("s_cmp_lt_u32 s16, 160")
    a("s_cselect_b32 s17, s17, 0x7f000000")
    a("v_lshlrev_b32 v6, s18, v2")
    a("v_mov_b32 v32, 0")
    a("buffer_store_dword v32, v6, s[4:7], s17 offen")
    a("s_mul_i32 s21, s16, 1152")
    a("v_lshlrev_b32 v6, 5, v2")
    a("v_mov_b32 v7, 0x1000000")
    a("v_cmp_gt_u32 vcc, 36, v2")
    a("s_nop 1")
    a("v_cndmask_b32 v6, v7, v6, vcc")
    a("buffer_load_dwordx4 v[8:11], v6, s[8:11], s21 offen")
    a("buffer_load_dwordx4 v[12:15], v6, s[8:11], s21 offen offset:16")
    a("s_waitcnt vmcnt(0)")
    unpack8(a, 8, 16)
    unpack8(a, 12, 24)
    for k in range(1, 16):
        a("v_add_f32 v16, v16, v%d" % (16 + k))
    xl_sum(a, [16], [17], [8, 4, 2, 1, 16, 32])
    a("v_mul_f32 v16, 0x%x, v16" % f2u(1.0 / 576))
    a("s_lshl_b32 s16, s16, 2")
    a("s_add_u32 s16, s16, 0x%x" % WS_WBAR)
    a("v_mov_b32 v6, 0")
    a("s_mov_b64 exec, 1")
    a("buffer_store_dword v16, v6, s[4:7], s16 offen")
    a.label("%s_end" % L)
    a("s_endpgm")
    return kernel_desc(name, 64, 64)
```

```python
from mcommon import *
import math
SLOT = 36 * 1024

class Ctx: pass

def lstamp(c):
    if not c.opt.get("cst"): return
    a = c.a
    a("s_lshl_b64 exec, 1, s%d" % sSTI)
    a("v_mov_b32 v%d, s98" % vST)
    a("s_mov_b64 exec, -1")
    a("s_add_u32 s%d, s%d, 1" % (sSTI, sSTI))
    a("%s s[98:99]" % ("s_memtime" if c.opt["cst"] == 2 else "s_memrealtime"))

def stamp(c):
    if not c.stamp or c.opt.get("cst"): return
    a = c.a
    a("s_memrealtime s[98:99]")
    a("s_waitcnt lgkmcnt(0)")
    a("s_lshl_b64 exec, 1, s%d" % sSTI)
    a("v_mov_b32 v%d, s98" % vST)
    a("s_mov_b64 exec, -1")
    a("s_add_u32 s%d, s%d, 1" % (sSTI, sSTI))

PH = 4096
def signal(c, phase, nvm, sidx):
    a = c.a
    a("s_lshl_b32 s62, s%d, %d" % (sidx, c.fsh))
    a("s_add_u32 s62, s62, s%d" % sFL)
    F16 = c.opt.get("f16", 0) & 1
    a("v_mov_b32 v%d, 1" % (246 if F16 else 250))
    a("v_mov_b32 v251, %d" % ((phase * PH) << c.fsh))
    a("s_waitcnt vmcnt(%d)" % nvm)
    if c.opt.get("fine"): stamp(c)
    a("s_mov_b64 exec, 1")
    a("buffer_store_dwordx4 v[246:249], v251, s[4:7], s62 offen sc1" if F16 else "buffer_store_dword v250, v251, s[4:7], s62 offen sc1")
    a("s_mov_b64 exec, -1")

def wait_flags(c, phase, sidx, mask, halo=False, prev_layer=False, solo=None):
    a = c.a
    loop, done = c.lab("wf_loop"), c.lab("wf_done")
    off = phase * PH - (4 * PH if prev_layer else 0)
    solo = solo if str(phase) in c.opt.get("solo", "0123") else None
    c.solo_skip = None
    if solo:
        c.solo_skip = c.lab("wf_skip")
        a("s_cmp_lg_u32 s%d, %d" % (sW, solo[0]))
        a("s_cbranch_scc1 %s" % c.solo_skip)
        sidx, mask = solo[1], solo[2]
    a("v_lshlrev_b32 v250, 2, v%d" % vLane)
    a("s_add_u32 s62, s%d, 0x%x" % (sFL, ((off - 256) << c.fsh) & 0xffffffff))
    if sidx is None: a("s_movk_i32 s63, 256")
    else: a("s_add_u32 s63, s%d, 256" % sidx)
    if halo and solo:
        a("v_lshrrev_b32 v251, 2, v%d" % vLane)
        a("v_lshlrev_b32 v251, 2, v251")
        a("v_add_u32 v251, 224, v251")
        a("v_add_u32 v250, s63, v250")
        a("s_mov_b32 vcc_lo, 0x08880888")
        a("s_mov_b32 vcc_hi, 0")
        a("s_cmp_eq_u32 s%d, 0" % sI)
        a("s_cselect_b32 s64, 0, 0x08880888")
        a("v_cndmask_b32 v250, v250, v251, vcc")
        a("s_or_b32 s64, s64, 0x%x" % (mask & 0xffffffff))
    elif halo:
        a("v_add_u32 v251, 160, v250")
        a("v_add_u32 v250, s63, v250")
        a("v_cmp_gt_u32 vcc, 16, v%d" % vLane)
        a("s_cmp_eq_u32 s%d, 0" % sI)
        a("s_cselect_b32 s64, 0, 0x770000")
        a("v_cndmask_b32 v250, v251, v250, vcc")
        a("s_or_b32 s64, s64, 0x%x" % mask)
    else:
        a("v_add_u32 v250, s63, v250")
        a("s_mov_b32 s64, 0x%x" % (mask & 0xffffffff))
    if c.fsh: a("v_lshlrev_b32 v250, %d, v250" % c.fsh)
    a("s_mov_b32 s65, 0x%x" % (mask >> 32))
    a("s_mov_b64 exec, s[64:65]")
    a("s_mov_b32 s63, 0")
    PD, PS = c.opt.get("pd", 1), c.opt.get("ps", 2)
    ld = lambda k: "buffer_load_dword v%d, v250, s[4:7], s62 offen sc1" % (246 + k)
    for k in range(PD - 1):
        a(ld(k))
        if PS: a("s_sleep %d" % PS)
    a.label(loop)
    for k in range(PD):
        a(ld((k + PD - 1) % PD))
        a("s_waitcnt vmcnt(%d)" % (PD - 1))
        a("v_cmp_eq_u32 vcc, 1, v%d" % (246 + k))
        a("s_cmp_eq_u64 vcc, s[64:65]")
        a("s_cbranch_scc1 %s" % done)
    pl = c.opt.get("pls", 1) if solo else c.opt.get("pl", 8)
    if pl: a("s_sleep %d" % pl)
    a("s_add_u32 s63, s63, 1")
    a("s_cmp_lt_u32 s63, 0x%x" % c.maxpoll)
    a("s_cbranch_scc1 %s" % loop)
    a.label(done)
    a("s_mov_b64 exec, -1")
    if solo:
        a.label(c.solo_skip)
        a("s_barrier")

def sig_store(c, phase):
    pass

def linear_dma(c, src_sreg, ngroups, lab):
    a = c.a
    a("s_mov_b32 s63, 0")
    a.label(lab)
    for q in range(4):
        a("buffer_load_dwordx4 v%d, s[4:7], s%d offen offset:%d lds" % (vL16, src_sreg, q * 1024))
    a("s_add_u32 m0, m0, 4096")
    a("s_add_u32 s%d, s%d, 4096" % (src_sreg, src_sreg))
    a("s_add_u32 s63, s63, 1")
    a("s_cmp_lt_u32 s63, %d" % ngroups)
    a("s_cbranch_scc1 %s" % lab)

def prefetch_A(c, solo=False, split=0):
    a = c.a
    if solo: a("s_mov_b32 s24, 0")
    else: a("s_lshl_b32 s24, s%d, 15" % sW)
    a("s_mul_i32 s25, s%d, %d" % (sJ, 126 * 1024))
    a("s_add_u32 s25, s25, s24")
    a("s_add_u32 s25, s25, 0x%x" % WS_WQ)
    a("s_mov_b32 m0, s24")
    if not solo:
        linear_dma(c, 25, 8, c.lab("pfA")); return
    n1, n2 = split
    if n1: linear_dma(c, 25, n1, c.lab("pfA"))
    a("s_barrier")
    if n2: linear_dma(c, 25, n2, c.lab("pfA"))
    a("s_barrier")
    if 32 - n1 - n2: linear_dma(c, 25, 32 - n1 - n2, c.lab("pfA"))

def phase_A(c):
    a, opt = c.a, c.opt
    LD, ST = "sc1", "sc1"
    L = c.lab("A")
    B0, AF, NB = 0, 144, 12
    ACC, WB = 0, 196
    vLv = [218, 219, 220]; vHv = [221, 222, 223]
    P = 336
    HALO = 126 * 1024
    a("s_lshl_b32 s24, s%d, 10" % sW)
    a("s_lshl_b32 s27, s%d, 3" % sI)
    a("s_max_u32 s28, s27, 1")
    a("s_sub_u32 s28, s28, 1")
    a("s_mul_i32 s28, s28, 18432")
    a("s_add_u32 s28, s28, s%d" % sL)
    a("s_mul_i32 s29, s%d, 5120" % sW)
    a("s_add_u32 s28, s28, s29")
    a("s_add_u32 s29, s29, %d" % HALO)
    a("s_lshl_b32 s30, s%d, 1" % sW)
    a("s_add_u32 s30, s30, s27")
    a("s_mul_i32 s31, s30, 18432")
    a("s_add_u32 s31, s31, s%d" % sL)
    a("s_mov_b32 s32, s31")
    a("v_lshrrev_b32 v2, 5, v%d" % vLane)
    a("v_mul_u32_u24 v233, 72, v2")
    a("s_mul_i32 s33, s%d, 144" % sJ)
    a("s_add_u32 s33, s33, 0x%x" % WS_WBAR)
    LVL = 49152
    for lv in range(3):
        a("v_add_u32 v%d, 0x%x, v%d" % (vLv[lv], lv * LVL, vL16))
        a("v_add_u32 v%d, s24, v%d" % (vHv[lv], vLv[lv]))
    nos = c.lab("A_nosync")
    a("s_cmp_eq_u32 s%d, 0" % sL)
    a("s_cbranch_scc1 %s" % nos)
    a("s_lshl_b32 s34, s%d, 6" % sW)
    wait_flags(c, 3, 34, 0x7777, halo=True, prev_layer=True, solo=(0, None, 0x7777777777777777))
    a.label(nos)
    stamp(c)
    log = []
    def em(lst, tag):
        for s_ in lst:
            a(s_)
            if s_.startswith("buffer_"): log.append(tag)
    def need(tag):
        idx = max(k for k, t_ in enumerate(log) if t_ == tag)
        return min(63, len(log) - 1 - idx)
    def xl(t):
        o = []
        for mb in range(2):
            g = []
            if mb == 0 and t % 4 == 0 and t: g.append("s_add_u32 s32, s32, 4096")
            g.append("buffer_load_dwordx4 %s, v%d, s[4:7], s32 offen offset:%d %s" % (ar(B0 + 4 * (18 * mb + t), 4), (vL16, vL16b)[mb], (t % 4) * 1024, LD))
            o.append(g)
        return o
    PRE = opt.get("A_pre", 6)
    for t in range(PRE):
        for g in xl(t): em(g, t)
    a("s_waitcnt vmcnt(%d)" % len(log))
    a("s_barrier")
    pend = [(g, t) for t in range(PRE, 18) for g in xl(t)]
    pend += [(["s_mov_b32 m0, s29"], "h")]
    pend += [(["buffer_load_dwordx4 v%d, s[4:7], s28 offen offset:%d %s lds" % (vL16, q * 1024, LD)], "h") for q in range(4)]
    pend += [(["s_add_u32 m0, m0, 4096", "s_add_u32 s28, s28, 4096"], "h"), (["buffer_load_dwordx4 v%d, s[4:7], s28 offen %s lds" % (vL16, LD)], "h")]
    pend += [(["buffer_load_dwordx4 %s, v233, s[4:7], s33 offen offset:%d" % (vr(WB + 4 * q, 4), 16 * q)], "wb") for q in range(4)]
    pend += [(["buffer_load_dwordx2 %s, v233, s[4:7], s33 offen offset:64" % vr(WB + 16, 2)], "wb")]
    WPF = opt.get("wpf", 2)
    if WPF >= 2:
        a("s_lshl_b32 s34, s%d, 2" % sI)
        a("s_and_b32 s35, s%d, 3" % sJ)
        a("s_add_u32 s34, s34, s35")
        a("s_lshl_b32 s34, s34, 2")
        a("s_add_u32 s34, s34, s%d" % sW)
        a("s_mul_i32 s34, s34, 41")
        a("v_min_u32 v234, 40, v%d" % vLane)
        a("v_add_u32 v234, s34, v234")
        a("v_min_u32 v234, 0x287f, v234")
        a("v_mul_u32_u24 v235, 3641, v234")
        a("v_lshrrev_b32 v235, 16, v235")
        a("v_lshlrev_b32 v234, 7, v234")
        a("v_mul_u32_u24 v235, %d, v235" % (9216 - 18 * 128))
        a("v_add_u32 v234, v235, v234")
        a("s_lshr_b32 s35, s%d, 2" % sJ)
        a("s_mul_i32 s35, s35, 2304")
        a("s_cmp_eq_u32 s%d, 0" % sL)
        a("s_cselect_b32 s35, s35, 0x7f000000")
        srd(a, sDG, 36, D * F * 2)
        srd(a, sDU, 38, D * F * 2)
        tg, tu = (["buffer_load_dword v235, v234, s[%d:%d], s35 offen" % (sDG, sDG + 3)], "tw"), (["buffer_load_dword v235, v234, s[%d:%d], s35 offen" % (sDU, sDU + 3)], "tw")
        TWP = opt.get("twp", (99, 99))
        if TWP[0] is not None: pend.insert(min(len(pend), TWP[0]), tg)
        if TWP[1] is not None: pend.insert(min(len(pend), TWP[1]), tu)
        if opt.get("twd"):
            a("v_min_u32 v237, 40, v%d" % vLane)
            a("v_add_u32 v237, s34, v237")
            a("v_lshlrev_b32 v237, 7, v237")
            a("s_lshr_b32 s34, s%d, 2" % sJ)
            a("s_mul_i32 s34, s34, %d" % (1152 * 1152))
            a("s_cmp_eq_u32 s%d, 0" % sL)
            a("s_cselect_b32 s34, s34, 0x7f000000")
            srd(a, 84, 40, D * F * 2)
            pend.append((["buffer_load_dword v235, v237, s[84:87], s34 offen"], "tw"))
        c.ntw_late = sum(1 for k, (g, t_) in enumerate(pend) if t_ == "tw" and k > max(kk for kk, (g2, t2) in enumerate(pend) if t2 == "wb"))
        if opt.get("w64"):
            pend += [(["buffer_load_dword v235, v234, s[%d:%d], s35 offen offset:64" % (sDG, sDG + 3)], "tw"), (["buffer_load_dword v235, v234, s[%d:%d], s35 offen offset:64" % (sDU, sDU + 3)], "tw")]
    stream = [("m", f) for f in range(126)] + [(k, t) for t in range(18) for k in ("hb", "a6", "aw")]
    def rd(n):
        k, x = stream[n]
        vs = vLv
        if k == "m": o = x * 1024
        elif k == "hb": o = HALO + x * 1024
        elif k == "a6": o = (x * 7 + 6) * 1024
        else: o = x * 7168; vs = vHv
        lv = min(o // LVL, 2)
        return "ds_read_b128 %s, v%d offset:%d" % (ar(AF + 4 * (n % NB), 4), vs[lv], o - lv * LVL)
    def fb(n): return ar(AF + 4 * (n % NB), 4)
    DIST = NB - 4
    nxt = 0
    for _ in range(DIST):
        a(rd(nxt)); nxt += 1
    def mf(acc, A, B, first):
        return "v_mfma_f32_16x16x32_bf16 %s, %s, %s, %s" % (vr(acc, 4), A, B, "0" if first else vr(acc, 4))
    for f in range(126):
        t, k = f // 7, f % 7
        if k == 0: a("s_waitcnt vmcnt(%d)" % need(t))
        if nxt == 126:
            a("s_waitcnt vmcnt(%d)" % need("h"))
            a("s_barrier")
        if f % 2 == 0: a("s_waitcnt lgkmcnt(%d)" % (nxt - 1 - (f + 1)))
        a(mf(ACC + 4 * k, fb(f), ar(B0 + 4 * t, 4), t == 0))
        a(rd(nxt)); nxt += 1
        a(mf(ACC + 4 * (7 + k), fb(f), ar(B0 + 4 * (18 + t), 4), t == 0))
        if pend and f % 2 == 0:
            g, tag = pend.pop(0); em(g, tag)
    assert not pend
    for t in range(18):
        n = 126 + 3 * t
        a("s_waitcnt lgkmcnt(%d)" % (nxt - 1 - (n + 2)))
        a(mf(ACC + 60, fb(n + 1), fb(n), t == 0))
        for _ in range(2):
            if nxt < len(stream): a(rd(nxt)); nxt += 1
        a(mf(ACC + 56, fb(n + 2), fb(n), t == 0))
        if nxt < len(stream): a(rd(nxt)); nxt += 1
    stamp(c)
    a("s_lshr_b32 s46, s%d, 2" % sJ)
    a("s_sub_u32 s46, s%d, s46" % sJ)
    a("s_cmp_ge_u32 s46, 6")
    a("s_cselect_b32 s66, 6, 0")
    a("s_cselect_b32 s67, 4, 0")
    a("s_sub_u32 s66, s46, s66")
    a("s_add_u32 s67, s67, s27")
    a("s_add_u32 s67, s67, s%d" % sW)
    a("s_mul_i32 s46, s66, %d" % (108 * 1024))
    a("s_mul_i32 s47, s%d, %d" % (sW, 27 * 1024))
    a("s_add_u32 s46, s46, s47")
    a("s_add_u32 s46, s46, 0x%x" % WS_WO)
    a("s_and_b32 s75, s%d, 3" % sJ)
    a("s_cmp_eq_u32 s75, 3")
    a("s_cselect_b32 s46, 0x7f000000, s46")
    a("s_mov_b32 m0, s47")
    pf = []
    for g in range(7):
        for q in range(4):
            if g == 6 and q == 3: continue
            x = ["buffer_load_dwordx4 v%d, s[4:7], s46 offen offset:%d lds" % (vL16, q * 1024)]
            if q == 3: x += ["s_add_u32 m0, m0, 4096", "s_add_u32 s46, s46, 4096"]
            pf.append(x)
    cnt = [0]
    PFS = opt.get("A_pfs", 5)
    def v(s_):
        a(s_)
        cnt[0] += 1
        if pf and cnt[0] % PFS == 0:
            for x in pf.pop(0): a(x)
    a("v_and_b32 v64, 15, v%d" % vLane)
    a("v_lshrrev_b32 v65, 4, v%d" % vLane)
    a("v_mul_u32_u24 v64, %d, v64" % P)
    a("v_add_u32 v64, %d, v64" % LDS_STG)
    a("v_lshl_add_u32 v66, v65, 3, v64")
    a("v_lshl_add_u32 v67, v65, 4, v64")
    a("s_mul_i32 s34, s%d, %d" % (sW, 32 * P))
    a("s_add_u32 s34, s34, %d" % (16 * P))
    a("v_add_u32 v68, s34, v66")
    a("v_add_u32 v69, s34, v67")
    a("s_barrier")
    for mb in range(2):
        for nb, off in ((2, 128), (3, 192), (6, 256)):
            r = ACC + 4 * (7 * mb + nb)
            a("ds_write_b128 v69, %s offset:%d" % (vr(r, 4), off + mb * 16 * P))
        for nb, off in ((0, 0), (1, 32), (4, 64), (5, 96)):
            r = ACC + 4 * (7 * mb + nb)
            a("v_cvt_pk_bf16_f32 v%d, v%d, v%d" % (r, r, r + 1))
            a("v_cvt_pk_bf16_f32 v%d, v%d, v%d" % (r + 1, r + 2, r + 3))
            a("ds_write_b64 v68, %s offset:%d" % (vr(r, 2), off + mb * 16 * P))
    a("ds_write_b128 v67, v[60:63] offset:256")
    a("s_cmp_ge_u32 s%d, 2" % sW)
    a("s_cbranch_scc1 %s_hv" % L)
    a("s_lshl_b32 s35, s%d, 5" % sW)
    a("v_add_u32 v66, s35, v66")
    a("v_cvt_pk_bf16_f32 v56, v56, v57")
    a("v_cvt_pk_bf16_f32 v57, v58, v59")
    a("ds_write_b64 v66, v[56:57]")
    a("s_branch %s_hd" % L)
    a.label("%s_hv" % L)
    a("s_lshl_b32 s35, s%d, 6" % sW)
    a("v_add_u32 v67, s35, v67")
    a("ds_write_b128 v67, v[56:59]")
    a.label("%s_hd" % L)
    vK, vV, vTt, vQt, vGR = 225, 226, 227, 228, 229
    v("v_and_b32 v64, 31, v%d" % vLane)
    v("v_lshrrev_b32 v65, 5, v%d" % vLane)
    v("v_mul_u32_u24 v66, %d, v64" % P)
    v("s_add_u32 s34, s34, %d" % (LDS_STG - 14 * P))
    v("v_add_u32 v66, s34, v66")
    v("v_lshl_add_u32 v%d, v65, 5, v66" % vK)
    v("v_lshl_add_u32 v%d, v65, 6, v66" % vV)
    v("v_lshl_add_u32 v%d, v65, 4, v66" % vTt)
    v("v_lshl_add_u32 v%d, v65, 3, v66" % vQt)
    v("s_lshl_b32 s35, s30, 4")
    v("v_add_u32 v%d, s35, v64" % vGR)
    vO, vO2, vOB = 230, 231, 232
    v("v_lshrrev_b32 v66, 4, v64")
    v("v_mul_u32_u24 v66, 18432, v66")
    v("v_and_b32 v67, 15, v64")
    v("v_lshl_add_u32 v66, v67, 4, v66")
    v("v_lshl_add_u32 v%d, v65, 9, v66" % vO)
    v("v_lshrrev_b32 v66, 4, v64")
    v("v_lshlrev_b32 v66, 12, v66")
    v("v_lshl_add_u32 v%d, v67, 4, v66" % vOB)
    v("s_lshl_b32 s48, s%d, 10" % sJ)
    v("s_add_u32 s48, s48, s31")
    v("s_add_u32 s48, s48, 0x%x" % L_O)
    v("s_lshl_b32 s51, s%d, 8" % sJ)
    v("s_lshl_b32 s49, s30, 12")
    v("s_add_u32 s51, s51, s49")
    v("s_add_u32 s51, s51, s%d" % sL)
    v("s_add_u32 s51, s51, 0x%x" % L_OB)
    a("s_waitcnt lgkmcnt(0)")
    a("s_barrier")
    stamp(c)
    KR, TR, VA, Q, S_, O = 0, 64, 96, 160, 170, 178
    dl = []
    def ds(s_, tag):
        a(s_); dl.append(tag)
    def dwait(tag):
        idx = max(k for k, t_ in enumerate(dl) if t_ == tag)
        a("s_waitcnt lgkmcnt(%d)" % min(15, len(dl) - 1 - idx))
    ds("ds_read_b128 %s, v%d offset:%d" % (vr(Q, 4), vK, 14 * P + 64), "q")
    ds("ds_read_b128 %s, v%d offset:%d" % (vr(Q + 4, 4), vK, 14 * P + 80), "q")
    ds("ds_read_b64 %s, v%d offset:%d" % (vr(Q + 8, 2), vQt, 14 * P + 288), "q")
    def kread(j):
        o = (14 - 2 * j) * P
        ds("ds_read_b128 %s, v%d offset:%d" % (vr(KR + 8 * j, 4), vK, o), "k%d" % j)
        ds("ds_read_b128 %s, v%d offset:%d" % (vr(KR + 8 * j + 4, 4), vK, o + 16), "k%d" % j)
        ds("ds_read_b128 %s, v%d offset:%d" % (vr(TR + 4 * j, 4), vTt, o + 256), "k%d" % j)
    def vreg(j): return (VA + 16 * j) if j < 4 else (KR + 16 * (j - 4))
    def vread(j):
        o = (14 - 2 * j) * P + 128
        for q in range(4):
            ds("ds_read_b128 %s, v%d offset:%d" % (vr(vreg(j) + 4 * q, 4), vV, o + 16 * q), "v%d" % j)
    for j in range(4): kread(j)
    a("v_mov_b32 v%d, 0xff7fffff" % (O + 1))
    for j in range(8):
        dwait("k%d" % j)
        if j < 4: kread(j + 4)
        else: vread(j - 4)
        v("v_mul_f32 v%d, v%d, v%d" % (S_ + j, Q + 8, TR + 4 * j))
        v("v_fmac_f32 v%d, v%d, v%d" % (S_ + j, Q + 9, TR + 4 * j + 1))
        for p in range(8):
            v("v_dot2_f32_bf16 v%d, v%d, v%d, v%d" % (S_ + j, Q + p, KR + 8 * j + p, S_ + j))
        if j > 0:
            a("v_cmp_le_u32 vcc, %d, v%d" % (2 * j, vGR))
            a("s_nop 1")
            a("v_cndmask_b32 v%d, v%d, v%d, vcc" % (S_ + j, O + 1, S_ + j))
    for j in range(4, 8): vread(j)
    v("v_max3_f32 v%d, v%d, v%d, v%d" % (O, S_, S_ + 1, S_ + 2))
    v("v_max3_f32 v%d, v%d, v%d, v%d" % (O, O, S_ + 3, S_ + 4))
    v("v_max3_f32 v%d, v%d, v%d, v%d" % (O, O, S_ + 5, S_ + 6))
    v("v_max_f32 v%d, v%d, v%d" % (O, O, S_ + 7))
    a("s_mov_b32 s52, 0x%x" % f2u(18 ** -0.5 * math.log2(math.e)))
    for j in range(8): v("v_sub_f32 v%d, v%d, v%d" % (S_ + j, S_ + j, O))
    for j in range(8): v("v_mul_f32 v%d, s52, v%d" % (S_ + j, S_ + j))
    for j in range(8): v("v_exp_f32 v%d, v%d" % (S_ + j, S_ + j))
    SUM = Q
    v("v_add_f32 v%d, v%d, v%d" % (SUM, S_, S_ + 1))
    for j in range(2, 8): v("v_add_f32 v%d, v%d, v%d" % (SUM, SUM, S_ + j))
    a("v_rcp_f32 v%d, v%d" % (SUM, SUM))
    a("s_nop 0")
    for j in range(8): v("v_mul_f32 v%d, v%d, v%d" % (S_ + j, S_ + j, SUM))
    while pf:
        for x in pf.pop(0): a(x)
    for j in range(8):
        dwait("v%d" % j)
        pj = vr(S_ + (j & ~1), 2)
        sel = "op_sel:[0,%d,0] op_sel_hi:[1,%d,1]" % (j & 1, j & 1)
        for p in range(9):
            src = vr(vreg(j) + 2 * p, 2) if p < 8 else vr(TR + 4 * j + 2, 2)
            if j == 0:
                a("v_pk_mul_f32 %s, %s, %s op_sel:[0,0] op_sel_hi:[1,0]" % (vr(O + 2 * p, 2), src, pj))
            else:
                a("v_pk_fma_f32 %s, %s, %s, %s %s" % (vr(O + 2 * p, 2), src, pj, vr(O + 2 * p, 2), sel))
    for p in range(9):
        a("v_cvt_pk_bf16_f32 v%d, v%d, v%d" % (VA + p, O + 2 * p, O + 2 * p + 1))
    a("buffer_store_dwordx4 %s, v%d, s[4:7], s48 offen %s" % (vr(VA, 4), vO, ST))
    a("buffer_store_dwordx4 %s, v%d, s[4:7], s48 offen offset:256 %s" % (vr(VA + 4, 4), vO, ST))
    a("s_waitcnt vmcnt(%d)" % ((29 + c.ntw_late) if WPF >= 2 else 29))
    a("v_mul_f32 v%d, v%d, v%d" % (VA + 10, O, WB))
    a("v_mul_f32 v%d, v%d, v%d" % (VA + 11, O + 1, WB + 1))
    for p in range(2, 18):
        a("v_fmac_f32 v%d, v%d, v%d" % (VA + 10 + (p & 1), O + p, WB + p))
    a("v_mov_b32 v%d, v%d" % (VA + 9, VA + 8))
    a("v_add_f32 v%d, v%d, v%d" % (VA + 10, VA + 10, VA + 11))
    a("s_nop 0")
    a("v_permlane32_swap_b32 v%d, v%d" % (VA + 8, VA + 9))
    xl_sum(a, [VA + 10], [VA + 11], [32])
    a("s_mov_b64 exec, 0xffffffff")
    a("buffer_store_dwordx4 %s, v%d, s[4:7], s51 offen %s" % (vr(VA + 8, 4), vOB, ST))
    a("s_mov_b64 exec, -1")
    stamp(c)

def phase_B(c):
    a, opt = c.a, c.opt
    LD, ST = "sc1", "sc1"
    B0, AF, NB = 0, 72, 8
    ACC, XR, RC = 32, 56, 68
    idle, join = c.lab("B_idle"), c.lab("B_join")
    a("s_mul_i32 s68, s67, 18432")
    a("s_add_u32 s68, s68, s%d" % sL)
    a("s_add_u32 s69, s68, 0x%x" % L_O)
    a("s_mul_i32 s70, s66, 3072")
    a("s_add_u32 s68, s68, s70")
    a("v_and_b32 v4, 15, v%d" % vLane)
    a("v_lshrrev_b32 v5, 4, v%d" % vLane)
    a("v_lshlrev_b32 v6, 4, v4")
    a("v_lshl_add_u32 v6, v5, 9, v6")
    a("v_lshlrev_b32 v7, 2, v4")
    a("s_lshl_b32 s70, s67, 12")
    a("s_add_u32 s70, s70, s%d" % sL)
    a("s_add_u32 s70, s70, 0x%x" % L_OB)
    a("s_lshl_b32 s71, s67, 6")
    a("s_add_u32 s71, s71, s%d" % sL)
    a("s_add_u32 s71, s71, 0x%x" % L_MEAN)
    a("s_add_u32 s72, s68, 0x%x" % L_XR)
    a("s_lshl_b32 s73, s%d, 6" % sW)
    a("s_lshl_b32 s74, s%d, 2" % sJ)
    a("s_add_u32 s73, s73, s74")
    signal(c, 0, 0, 73)
    a("s_barrier")
    a("s_cmp_eq_u32 s75, 3")
    a("s_cbranch_scc1 %s" % idle)
    a("v_add_u32 v13, 0xd800, v%d" % vL16)
    def rd(i):
        o = i * 1024
        v = vL16
        if o >= 0xd800: v, o = 13, o - 0xd800
        return "ds_read_b128 %s, v%d offset:%d" % (ar(AF + 4 * (i % NB), 4), v, o)
    for i in range(NB - 1): a(rd(i))
    a("s_bfe_u32 s73, s67, 0x20001")
    a("s_lshl_b32 s73, s73, 6")
    a("s_and_b32 s74, s73, 0x80")
    wait_flags(c, 0, 73, 0xffff, solo=(0, 74, 0xffffffff))
    stamp(c)
    log = []
    def em(x, tag):
        a(x)
        if x.startswith("buffer_"): log.append(tag)
    def need(tag):
        idx = max(k for k, t_ in enumerate(log) if t_ == tag)
        return min(63, len(log) - 1 - idx)
    for t in range(16):
        if t % 4 == 0 and t: a("s_add_u32 s69, s69, 4096")
        em("buffer_load_dwordx4 %s, v%d, s[4:7], s69 offen offset:%d %s" % (ar(B0 + 4 * t, 4), vL16, (t % 4) * 1024, LD), t)
    for q in range(4):
        em("buffer_load_dwordx4 %s, v6, s[4:7], s70 offen offset:%d %s" % (vr(RC + 4 * q, 4), (q >> 1) * 2048 + (q & 1) * 256, LD), "rc")
    for u in range(3):
        em("buffer_load_dwordx4 %s, v%d, s[4:7], s72 offen offset:%d %s" % (vr(XR + 4 * u, 4), vL16, u * 1024, LD), "xr")
    em("buffer_load_dword v12, v7, s[4:7], s71 offen %s" % LD, "xr")
    slo = list(c.C_slo)
    for f in range(108):
        t, db = f // 6, f % 6
        if db == 0 and t < 16: a("s_waitcnt vmcnt(%d)" % need(t))
        if f == 90:
            a("s_waitcnt vmcnt(%d)" % need("rc"))
            a("v_add_f32 v8, v%d, v%d" % (RC + 2, RC + 6))
            a("v_add_f32 v9, v%d, v%d" % (RC + 10, RC + 14))
            for q in (0, 2):
                a("v_mov_b32 v%d, v%d" % (RC + 4 * q + 2, RC + 4 * q + 4))
                a("v_mov_b32 v%d, v%d" % (RC + 4 * q + 3, RC + 4 * q + 5))
            a("v_add_f32 v8, v8, v9")
            xl_sum(a, [8], [9], [16, 32])
        if f % 2 == 0: a("s_waitcnt lgkmcnt(%d)" % max(0, min(NB - 3, 106 - f)))
        cc = "0" if t == 0 else vr(ACC + 4 * db, 4)
        bop = ar(B0 + 4 * t, 4) if t < 16 else vr(RC + 8 * (t - 16), 4)
        a("v_mfma_f32_16x16x32_bf16 %s, %s, %s, %s" % (vr(ACC + 4 * db, 4), ar(AF + 4 * (f % NB), 4), bop, cc))
        if f + NB - 1 < 108: a(rd(f + NB - 1))
        if slo and f % 6 == 5 and f >= opt.get("B_slo", 5):
            for x in slo.pop(0): em(x, "slo")
        if f == 44:
            assert not slo
            a("s_barrier")
            slo = list(c.C_shi)
    assert not slo
    stamp(c)
    a("s_add_u32 s71, s68, 0x%x" % L_X1)
    a("s_add_u32 s72, s68, 0x%x" % L_XC)
    a("s_waitcnt vmcnt(%d)" % need("xr"))
    a("v_add_f32 v8, v8, v12")
    a("v_mov_b32 v9, 0")
    for u in range(3):
        for k in range(4):
            a("v_lshlrev_b32 v16, 16, v%d" % (XR + 4 * u + k))
            a("v_and_b32 v17, 0xffff0000, v%d" % (XR + 4 * u + k))
            a("v_add_f32 v16, v16, v%d" % (ACC + 8 * u + 2 * k))
            a("v_add_f32 v17, v17, v%d" % (ACC + 8 * u + 2 * k + 1))
            a("v_cvt_pk_bf16_f32 v%d, v16, v17" % (XR + 4 * u + k))
            a("v_lshlrev_b32 v16, 16, v%d" % (XR + 4 * u + k))
            a("v_and_b32 v17, 0xffff0000, v%d" % (XR + 4 * u + k))
            a("v_sub_f32 v%d, v16, v8" % (ACC + 8 * u + 2 * k))
            a("v_sub_f32 v%d, v17, v8" % (ACC + 8 * u + 2 * k + 1))
            a("v_cvt_pk_bf16_f32 v%d, v%d, v%d" % (20 + 4 * u + k, ACC + 8 * u + 2 * k, ACC + 8 * u + 2 * k + 1))
        a("buffer_store_dwordx4 %s, v%d, s[4:7], s72 offen offset:%d %s" % (vr(20 + 4 * u, 4), vL16, u * 1024, ST))
    a("s_and_b32 s73, s67, 7")
    a("s_lshl_b32 s73, s73, 5")
    a("s_lshl_b32 s74, s66, 2")
    a("s_add_u32 s73, s73, s74")
    for k in range(24):
        a("v_fmac_f32 v9, v%d, v%d" % (ACC + k, ACC + k))
    xl_sum(a, [9], [10], [16, 32])
    signal(c, 1, 0, 73)
    a("s_barrier")
    for g in c.C_rest:
        for x in g: a(x)
    for u in range(3):
        a("buffer_store_dwordx4 %s, v%d, s[4:7], s71 offen offset:%d %s" % (vr(XR + 4 * u, 4), vL16, u * 1024, ST))
    a("v_lshlrev_b32 v6, 5, v4")
    a("s_lshl_b32 s69, s67, 9")
    a("s_add_u32 s69, s69, s74")
    a("s_add_u32 s69, s69, s%d" % sL)
    a("s_add_u32 s69, s69, 0x%x" % L_SSQ)
    a("s_mov_b64 exec, 0xffff")
    a("buffer_store_dword v9, v6, s[4:7], s69 offen %s" % ST)
    a("s_mov_b64 exec, -1")
    a("s_branch %s" % join)
    a.label(idle)
    for g in c.C_slo + c.C_shi + c.C_rest:
        for x in g: a(x)
    nt = 0
    WPF = opt.get("wpf", 2)
    if WPF and not opt.get("ctw") and not opt.get("twd") and "D" not in opt.get("m0t", ""):
        nopf = c.lab("B_nopf")
        a("s_cmp_lg_u32 s%d, 0" % sL)
        a("s_cbranch_scc1 %s" % nopf)
        a("s_lshl_b32 s68, s%d, 2" % sI)
        a("s_add_u32 s68, s68, s%d" % sW)
        a("s_lshr_b32 s69, s%d, 2" % sJ)
        a("s_mul_i32 s70, s68, %d" % (9 * 9216))
        a("s_mul_i32 s71, s69, 2304")
        a("s_add_u32 s70, s70, s71")
        a("s_mul_i32 s71, s68, 20736")
        a("s_mul_i32 s72, s69, %d" % (1152 * 1152))
        a("s_add_u32 s71, s71, s72")
        srd(a, 84, 40, D * F * 2)
        for k in range(3):
            a("v_add_u32 v4, %d, v%d" % (64 * k, vLane))
            a("v_min_u32 v4, 161, v4")
            a("v_mul_u32_u24 v5, 3641, v4")
            a("v_lshrrev_b32 v5, 16, v5")
            a("v_lshlrev_b32 v%d, 7, v4" % (8 + k))
            a("v_mul_u32_u24 v5, %d, v5" % (9216 - 18 * 128))
            a("v_add_u32 v%d, v5, v%d" % (12 + k, 8 + k))
        for k in range(3 if WPF == 1 else 0):
            a("buffer_load_dword v%d, v%d, s[%d:%d], s70 offen" % (16 + k, 12 + k, sDG, sDG + 3))
            a("buffer_load_dword v%d, v%d, s[%d:%d], s70 offen" % (20 + k, 12 + k, sDU, sDU + 3))
        for k in range(3):
            a("buffer_load_dword v%d, v%d, s[84:87], s71 offen" % (24 + k, 8 + k))
            if opt.get("w64"): a("buffer_load_dword v%d, v%d, s[84:87], s71 offen offset:64" % (28 + k, 8 + k))
        a("s_waitcnt vmcnt(%d)" % (18 if WPF == 1 else (15 if opt.get("w64") else 12)))
        a("s_branch %s" % (nopf + "j"))
        a.label(nopf)
        a("s_waitcnt vmcnt(9)")
        a.label(nopf + "j")
    else:
        a("s_waitcnt vmcnt(9)")
    a("s_barrier")
    stamp(c); stamp(c)
    if c.opt.get("fine"): stamp(c)
    a.label(join)
    stamp(c)

def phase_C(c):
    a, opt = c.a, c.opt
    ST_FLAGS, LD_FLAGS = "sc1", "sc1"
    NB = opt.get("nb", 6)
    L = c.lab("C")
    T0, AG, AU, HB = 0, 32, 64, 96
    H0 = HB + 8
    vDX = [176, 177, 178, 179]
    vDW = [180, 181, 182, 183]
    vR = [[186 + 4 * lv + fb for fb in range(4)] for lv in range(3)]
    vN = [198, 199]
    NV = 200
    LVL = 49152
    X0, AF = 0, 144
    NA = AF + 4 * NB
    sWB = 24
    sRG, sRU = 25, 26
    sD0, sD1, sD2l, sD2h = 27, 28, 29, 30
    sCnt, sHI = 32, 33
    sSt, sStB = 34, 35
    sSlotN, sSlotD, sSlotC = 44, 45, 48
    sW0, sWd0 = 46, 47
    sT, sS, sX = 49, 50, 51

    a("s_mul_i32 s%d, s%d, 9216" % (sWB, sW))
    a("v_mov_b32 v2, v%d" % vLane)
    a("v_lshrrev_b32 v3, 3, v2")
    a("v_and_b32 v4, 7, v2")
    a("v_bfe_u32 v5, v2, 4, 2")
    a("v_lshlrev_b32 v5, 1, v5")
    a("v_xor_b32 v4, v4, v5")
    a("v_and_b32 v6, 3, v4")
    a("v_lshlrev_b32 v4, 4, v4")
    a("v_lshlrev_b32 v6, 4, v6")
    a("s_movk_i32 s%d, 9216" % sT)
    a("v_mad_u32_u24 v%d, v3, s%d, v4" % (vDX[0], sT))
    a("v_mad_u32_u24 v200, v3, s%d, v6" % sT)
    a("s_movk_i32 s%d, 1152" % sT)
    a("v_mad_u32_u24 v%d, v3, s%d, v4" % (vDW[0], sT))
    a("v_mad_u32_u24 v236, v3, s%d, v6" % sT)
    for q in (1, 2, 3):
        a("v_add_u32 v%d, 0x%x, v%d" % (vDX[q], q * (8 * 9216 - 1024), vDX[0]))
        a("v_add_u32 v%d, 0x%x, v200" % (200 + q, q * (8 * 9216 - 1024)))
        a("v_add_u32 v%d, 0x%x, v%d" % (vDW[q], q * (8 * 1152 - 1024), vDW[0]))
    a("v_lshrrev_b32 v3, 2, v2")
    a("v_and_b32 v4, 3, v2")
    a("v_lshlrev_b32 v4, 3, v4")
    a("v_lshl_add_u32 v4, v3, 7, v4")
    a("v_bfe_u32 v5, v2, 3, 2")
    a("v_lshl_add_u32 v%d, v5, 5, v4" % vR[0][0])
    for fb in (1, 2, 3):
        a("v_xor_b32 v%d, %d, v%d" % (vR[0][fb], fb << 5, vR[0][0]))
    for lv in (1, 2):
        for fb in range(4):
            a("v_add_u32 v%d, 0x%x, v%d" % (vR[lv][fb], lv * LVL, vR[0][fb]))
    a("s_mul_i32 s%d, s%d, 576" % (sRG, sJ))
    a("s_mul_i32 s%d, s%d, %d" % (sT, sW, 72 * 9216))
    a("s_add_u32 s%d, s%d, s%d" % (sRG, sRG, sT))
    sHXo, sHXp, sW0p, sD0p, sFo, sFp, sStH, sT2 = 76, 77, 78, 79, 80, 81, 82, 83
    a("s_mul_i32 s%d, s%d, %d" % (sW0, sJ, 288 * 1152))
    a("s_xor_b32 s%d, s%d, 1" % (sT2, sJ))
    a("s_mul_i32 s%d, s%d, %d" % (sW0p, sT2, 288 * 1152))
    a("s_mul_i32 s%d, s%d, %d" % (sT, sW, 72 * 1152))
    a("s_add_u32 s%d, s%d, s%d" % (sW0, sW0, sT))
    a("s_add_u32 s%d, s%d, s%d" % (sW0p, sW0p, sT))
    a("s_cmp_eq_u32 s%d, 0" % sW)
    a("s_cselect_b32 s52, 8, -1")
    a("s_cselect_b32 s53, -8, 1")
    a("s_mul_i32 s52, s52, %d" % (32 * 1152))
    a("s_mul_i32 s53, s53, %d" % (32 * 1152))
    a("s_bitcmp0_b32 s%d, 0" % sJ)
    a("s_cselect_b32 s%d, 512, 0" % sS)
    a("s_cselect_b32 s54, 0, 64")
    a("s_cselect_b32 s%d, s53, %d" % (sWd0, 32 * 1152))
    a("s_cselect_b32 s%d, %d, s53" % (sD0p, 32 * 1152))
    a("s_cselect_b32 s53, s52, 640")
    a("s_cselect_b32 s55, 0, 640")
    a("s_cselect_b32 s52, 0, s52")
    a("s_cselect_b32 s%d, 9, 1" % sStH)
    a("s_cselect_b32 s%d, 1, 2" % sSt)
    a("s_lshl_b32 s%d, s%d, 11" % (sStH, sStH))
    a("s_lshl_b32 s%d, s%d, 11" % (sSt, sSt))
    a("s_add_u32 s%d, s%d, s%d" % (sS, sS, sRG))
    a("s_add_u32 s%d, s%d, s54" % (sRG, sRG))
    a("s_mov_b32 s%d, s%d" % (sRU, sRG))
    a("s_add_u32 s%d, s%d, s53" % (sW0, sW0))
    a("s_add_u32 s%d, s%d, s52" % (sW0p, sW0p))
    a("s_add_u32 s%d, s%d, s55" % (sW0p, sW0p))
    a("s_lshl_b32 s%d, s%d, 6" % (sT, sI))
    a("s_add_u32 s%d, s%d, s%d" % (sT, sT, sW))
    a("s_lshl_b32 s52, s%d, 2" % sJ)
    a("s_lshl_b32 s53, s%d, 2" % sT2)
    a("s_add_u32 s%d, s%d, s52" % (sHXo, sT))
    a("s_add_u32 s%d, s%d, s53" % (sHXp, sT))
    a("s_mul_i32 s%d, s%d, %d" % (sHXo, sHXo, HXS))
    a("s_mul_i32 s%d, s%d, %d" % (sHXp, sHXp, HXS))
    a("s_add_u32 s%d, s%d, 0x%x" % (sHXo, sHXo, WS_P))
    a("s_add_u32 s%d, s%d, 0x%x" % (sHXp, sHXp, WS_P))
    a("s_add_u32 s%d, s%d, s%d" % (sSt, sSt, sHXp))
    a("s_add_u32 s%d, s%d, s%d" % (sStH, sStH, sHXp))
    a("s_add_u32 s%d, s%d, 2048" % (sHXp, sHXp))
    if opt.get("pfl", 1):
        a("s_cmp_eq_u32 s%d, 0" % sL)
        a("s_cselect_b32 s54, 0x%x, 0x%x" % (WS_PF >> 7, (WS_PF >> 7) + 1024) if False else "s_cselect_b32 s54, 0, 1024")
        a("s_add_u32 s%d, s%d, s54" % (sT, sT))
        a("s_add_u32 s%d, s%d, 0x%x" % (sT, sT, WS_PF >> 7))
        a("s_add_u32 s%d, s%d, s52" % (sFo, sT))
        a("s_add_u32 s%d, s%d, s53" % (sFp, sT))
        a("s_lshl_b32 s%d, s%d, 7" % (sFo, sFo))
        a("s_lshl_b32 s%d, s%d, 7" % (sFp, sFp))
    a("v_cmp_eq_u32 vcc, 0, v%d" % vLane)
    a("v_bfrev_b32 v240, 1")
    a("v_cndmask_b32 v240, v240, 0, vcc")
    a("v_mov_b32 v242, 0")
    a("s_mov_b32 s%d, 0x%x" % (sD0, 32 * 9216))
    a("s_mov_b32 s%d, 0x%x" % (sD1, 32 * 9216))
    a("s_mov_b32 s%d, 0x%x" % (sD2l, (288 - 64) * 9216))
    a("s_mov_b32 s%d, 0x%x" % (sD2h, (-(288 + 64) * 9216 + 128) & 0xffffffff))
    a("s_lshl_b32 s%d, s%d, 2" % (sT, sI))
    a("s_add_u32 s%d, s%d, s%d" % (sT, sT, sW))
    a("s_mul_i32 s%d, s%d, %d" % (sT, sT, 36 * 1024))
    a("s_add_u32 s%d, s%d, 0x%x" % (sX, sT, L_XC))
    a("s_add_u32 s%d, s%d, s%d" % (sX, sX, sL))
    a("s_mov_b32 s%d, 0" % sHI)
    a("s_mov_b32 s%d, -1" % sCnt)
    a("s_mov_b32 s56, 0x0f0f0f0f")
    a("s_mov_b32 s57, 0xf0f0f0f0")
    a("s_bitcmp0_b32 s%d, 0" % sJ)
    a("s_cselect_b32 s52, 8, -1")
    a("s_mul_i32 s52, s52, 64")
    a("v_add_u32 v236, s52, v236")
    a("v_mov_b32 v2, s%d" % sW0)
    a("v_mov_b32 v3, s%d" % sW0p)
    a("v_mov_b32 v4, s%d" % sWd0)
    a("v_mov_b32 v5, s%d" % sD0p)
    a("v_cndmask_b32 v2, v3, v2, s[56:57]")
    a("v_cndmask_b32 v4, v5, v4, s[56:57]")
    a("v_add_u32 v236, v236, v2")
    a("v_add_u32 v237, v236, v4")
    srd(a, sDG, 36, D * F * 2)
    srd(a, sDU, 38, D * F * 2)
    CTW = opt.get("ctw", 0)
    if CTW:
        srd(a, 88, 40, D * F * 2)
        a("s_lshl_b32 s92, s%d, 2" % sI)
        a("s_and_b32 s93, s%d, 3" % sJ)
        a("s_add_u32 s92, s92, s93")
        a("s_lshl_b32 s92, s92, 2")
        a("s_add_u32 s92, s92, s%d" % sW)
        a("s_mul_i32 s92, s92, %d" % (41 * 128))
        a("s_lshr_b32 s93, s%d, 2" % sJ)
        a("s_mul_i32 s93, s93, %d" % (1152 * 1152))
        a("s_add_u32 s92, s92, s93")
        a("s_cmp_eq_u32 s%d, 0" % sL)
        a("s_cselect_b32 s92, s92, 0x7f000000")
        if CTW == 1: a("s_and_b32 s93, s%d, 1" % sI)
        elif CTW == 2: a("s_mov_b32 s93, 0")
        else:
            a("s_and_b32 s93, s%d, 3" % sI)
            a("s_min_u32 s93, s93, 2")
        a("v_min_u32 v238, 40, v%d" % vLane)
        a("v_lshlrev_b32 v238, 7, v238")
    def dma_stage(vo, srdn, run, m0f, deltas):
        out = []
        for g in range(3):
            n = 4 if g < 2 else 1
            out.append([m0f(g)])
            for q in range(n):
                grp = ["buffer_load_dwordx4 v%d, s[%d:%d], s%d offen offset:%d lds" % (vo[q], srdn, srdn + 3, run, q * 1024)]
                if q == n - 1:
                    grp.append("s_add_u32 s%d, s%d, %s" % (run, run, deltas[g]))
                out.append(grp)
        return out
    def R(s_): return (s_ + 3) % 4

    def m0s(slot):
        return lambda g: "s_add_u32 m0, s%d, 0x%x" % (sWB, R(slot) * SLOT + g * 4096)
    def s_stage(slot, half):
        oo = []
        for g in range(3):
            n = 4 if g < 2 else 1
            o = []
            oo.append(o)
            o.append("s_add_u32 s55, s%d, 0x%x" % (sS, (288 * half + 32 * g) * 9216))
            o.append(m0s(slot)(g))
            for (srdn, ex) in ((sDG, "s_mov_b64 exec, s[56:57]"), (sDU, "s_not_b64 exec, s[56:57]")):
                o.append(ex)
                for q in range(n):
                    o.append("buffer_load_dwordx4 v%d, s[%d:%d], s55 offen offset:%d lds" % (200 + q, srdn, srdn + 3, q * 1024))
            o.append("s_mov_b64 exec, -1")
        return oo
    def xload(t):
        o = []
        if t % 4 == 0 and t:
            o.append("s_add_u32 s%d, s%d, 4096" % (sX, sX))
        for mb in range(2):
            o.append("buffer_load_dwordx4 %s, v%d, s[%d:%d], s%d offen offset:%d %s" % (ar(X0 + 4 * (18 * mb + t), 4), (vL16, vL16b)[mb], sWS, sWS + 3, sX, (t % 4) * 1024, LD_FLAGS))
        return o
    log = []
    def emit_logged(lst, tag, out=None):
        for s_ in lst:
            (out.append(s_) if out is not None else a(s_))
            if s_.startswith("buffer_"):
                log.append(tag)
    def need(tag):
        idx = max(k for k, t_ in enumerate(log) if t_ == tag)
        return min(63, len(log) - 1 - idx)

    def fr(i):
        return AF + 4 * (i % NB)
    def reads(i, desc):
        fb, t = desc[2](i)
        if desc[0] == "D":
            o = R(desc[1]) * SLOT + t * 4096
            lv = min(o // LVL, 2)
            v = vR[lv][fb]; o -= lv * LVL
        else:
            v = desc[1][fb]; o = t * 4096
        assert o + 2048 < 65536
        return ["ds_read_b64_tr_b16 %s, v%d offset:%d" % (ar(fr(i), 2), v, o),
                "ds_read_b64_tr_b16 %s, v%d offset:%d" % (ar(fr(i) + 2, 2), v, o + 2048)]
    DIST = NB - 1
    BAR = 36 - DIST
    assert 36 % NB == 0
    IDXSPAN = opt.get("idxspan", False)
    DSP = opt.get("dsp", 5)
    POS = [(i, g) for i in range(36) for g in ((0, 1) if i % 2 == 0 else (0,))]
    class Fill:
        def __init__(s): s.d = {}
        def free(s, p): return p not in s.d
        def put(s, k, grp):
            s.d.setdefault(POS[k], []).extend(grp)
        def seq(s, items, start, step=1):
            k = start
            for g in items:
                while k < len(POS) and POS[k] in s.d: k += 1
                if k >= len(POS):
                    k = len(POS) - 1
                s.d.setdefault(POS[k], []).extend(g)
                k += step
            return k
        def nvm(s, lo, hi):
            return sum(1 for (i, g), l in s.d.items() if lo <= i < hi for x in l if x.startswith("buffer_"))
    def kpos(i):
        return POS.index((i, 0))
    def place_dma(fill, groups, start, step):
        k = start
        pend = []
        for g in groups:
            if "m0" in g[0]:
                pend = g; continue
            if pend:
                fill.put(k - 1, pend); pend = []
            fill.put(k, g[:1])
            if len(g) > 1: fill.put(k + 1, g[1:])
            k += step
    o1 = lambda i: (i % 4, i // 4)
    o2 = lambda i: (2 * (i // 18) + (i % 2), (i % 18) // 2)
    def mf_g1(acc, kbase, first):
        def f(i):
            fb, t = o1(i)
            r = []
            for mb in range(2):
                ac = acc + (fb * 2 + mb) * 4
                c = "0" if (first and t == 0) else vr(ac, 4)
                r.append("v_mfma_f32_16x16x32_bf16 %s, %s, %s, %s" % (vr(ac, 4), ar(fr(i), 4), ar(X0 + 4 * (18 * mb + kbase + t), 4), c))
            return r
        return f
    def cvts(hbase, src):
        cv = []
        for u in range(2):
            for mb in range(2):
                for k in range(4):
                    t = src + ((2 * u + k // 2) * 2 + mb) * 4 + 2 * (k % 2)
                    cv.append("v_cvt_pk_bf16_f32 v%d, v%d, v%d" % (hbase + 8 * u + 4 * mb + k, t, t + 1))
        return cv
    def em(s_):
        if opt.get("nodma") and s_.endswith(" lds"): return
        if opt.get("nost") and s_.startswith("buffer_store"): return
        (a.label(s_[:-1]) if s_.endswith(":") else a(s_))
    def gstage(cur, nxt, mf, fill, barwait, em=em):
        for i in range(36):
            if i == 1: lstamp(c)
            if i == BAR and nxt is not None:
                for s_ in barwait: em(s_)
                a("s_barrier")
            if i % 2 == 0:
                a("s_waitcnt lgkmcnt(%d)" % (2 * (DIST - 2) if nxt is not None else max(0, min(2 * (DIST - 2), 2 * (34 - i)))))
            if i + DIST < 36: rd = reads(i + DIST, cur)
            elif nxt is not None: rd = reads(i + DIST - 36, nxt)
            else: rd = []
            m = mf(i)
            a(m[0])
            if rd: a(rd[0])
            for s_ in fill.d.get((i, 0), []): em(s_)
            a(m[1])
            if rd: a(rd[1])
            for s_ in fill.d.get((i, 1), []): em(s_)

    dl = ["s%d" % sD0, "s%d" % sD1, "s%d" % sD2l]
    dh = ["s%d" % sD0, "s%d" % sD1, "s%d" % sD2h]
    D_ = lambda s: ("D", s, o1)
    side = []

    c.C_slo = s_stage(0, 0)
    c.C_shi = s_stage(1, 1)
    c.C_rest = [(g + ["s_nop 0"] if "m0" in g[0] else g) for g in dma_stage(vDX, sDG, sRG, m0s(2), dl)]
    yield
    for i in range(DIST):
        for s_ in reads(i, D_(0)): a(s_)
    a("s_lshl_b32 s%d, s%d, 6" % (sT, sW))
    wait_flags(c, 1, sT, 0x3f3f, solo=(0, None, 0x3f3f3f3f3f3f3f3f))
    stamp(c)
    lstamp(c)
    CPRE = opt.get("C_pre", 6)
    for t in range(CPRE):
        emit_logged(xload(t), "x%d" % t)
    rest = list(range(CPRE, 18))
    sched = {}
    tt = 1
    while rest:
        sched[tt] = [(xload(t), "x%d" % t) for t in rest[:2]]; rest = rest[2:]; tt += 1
    a("s_mov_b64 vcc, -1")
    a("s_waitcnt vmcnt(%d)" % need("x0"))
    a("s_branch %s_C" % L)
    fillC, fillD = Fill(), Fill()
    for (nm, fill) in (("C", fillC), ("D", fillD)):
        for t in range(1, 10 if nm == "C" else 9):
            lab = "%s_s%s%d" % (L, nm, t)
            fill.d[(4 * t - 1, 0)] = ["s_cbranch_vccnz %s" % lab, lab + "r:"]
    place_dma(fillC, dma_stage(vDX, sDG, sRG, m0s(3), dh), 1, DSP)
    place_dma(fillD, dma_stage(vDX, sDU, sRU, m0s(0), dl), 1, DSP)
    POLLS = opt.get("polls", (((-1, 0), (0, 50), 3), ((2, 0), (2, 50), 5)))
    PV = [241, 243, 244]
    PFST = ("buffer_store_dwordx4 v[242:245], v240, s[4:7], s%d offen sc1" if opt.get("f16", 0) & 2 else "buffer_store_dword v242, v240, s[4:7], s%d offen sc1") % sFo
    LP = 1 if POLLS[0][0][0] == -1 else 0
    if LP: fillD.d[POS[0]].insert(0, "buffer_load_dword v241, v240, s[4:7], s%d offen sc1" % sFp)
    fillD.put(kpos(BAR), [PFST])
    fillD.put(kpos(BAR) + 2, ["v_add_u32 v242, 1, v242"])
    fillD.put(len(POS) - 2, ["s_add_u32 s%d, s%d, 1" % (sCnt, sCnt)])
    fillD.put(len(POS) - 1, ["s_cmp_lt_u32 s%d, 4" % sCnt])
    mx = [["v_max_f32 v%d, 0, v%d" % (T0 + r, AG + r)] for r in range(32)]
    fillC.seq(mx[:14], 4)
    fillD.seq(mx[14:], 0)
    bars = {}
    for (nm, fill, kb) in (("C", fillC, 0), ("D", fillD, 9)):
        for i in range(36):
            if i == BAR:
                lab = "%s_b%s" % (L, nm)
                bars[nm] = ["s_cbranch_vccnz %s" % lab, "s_waitcnt vmcnt(%d)" % ((13 + (1 if CTW else 0) if nm == "C" else fillC.nvm(0, 36)) + fill.nvm(0, BAR)), lab + "r:"]
                side.append(lab + ":")
                side.append("s_branch %sr" % lab)
            for g in (0, 1):
                for s_ in fill.d.get((i, g), []):
                    if s_.startswith("buffer_"): log.append("f" + nm)
                    if s_.startswith("s_cbranch_vccnz"):
                        t = (i + 1) // 4
                        lab = s_.split()[1]
                        side.append(lab + ":")
                        if nm == "C":
                            for (lst, tag) in sched.get(t, []):
                                emit_logged(lst, tag, side)
                        side.append("s_waitcnt vmcnt(%d)" % need("x%d" % (kb + t)))
                        side.append("s_branch %sr" % lab)
    def barw(fill, prevn=9):
        return ["s_waitcnt vmcnt(%d)" % (prevn + fill.nvm(0, BAR))]

    a.label("%s_g1" % L)
    fill = Fill()
    place_dma(fill, dma_stage(vDX, sDU, sRU, m0s(1), dh), 1, DSP)
    fill.put(3, ["s_cbranch_vccnz %s_fix" % L, "%s_fixr:" % L])
    fill.seq([["v_mul_f32 v%d, v%d, v%d" % (T0 + r, T0 + r, AU + r)] for r in range(32)], 4)
    side.append("%s_fix:" % L)
    for r in range(16):
        side.append("v_max_f32 v%d, 0, v%d" % (T0 + 16 + r, AU + r))
    side.append("s_mov_b64 vcc, 0")
    side.append("s_branch %s_fixr" % L)
    if CTW:
        fill.seq([["s_cmp_eq_u32 s%d, s93" % sCnt, "s_cselect_b32 s94, s92, 0x7f000000"], ["buffer_load_dword v239, v238, s[88:91], s94 offen"]], opt.get("ctwk", 44))
    nA = fill.nvm(0, 36)
    gstage(D_(2), D_(3), mf_g1(AG, 0, True), fill, barw(fill, 10 + LP))
    fill = Fill()
    cv = cvts(HB, T0)
    on, off = "s_set_gpr_idx_on s%d, 0x8" % sHI, "s_set_gpr_idx_off"
    fill.put(0, ["s_cmp_eq_u32 s%d, 3" % sCnt, "s_cbranch_scc1 %s_sw" % L, "%s_swr:" % L])
    k = fill.seq([[on] + cv[4 * q:4 * q + 4] + [off] for q in range(4)], 1, 2)
    place_dma(fill, dma_stage(vDX, sDG, sRG, m0s(2), dl), k + 1, opt.get("dspB", 4))
    STG = 204
    def hstores(base, soff):
        return [["buffer_store_dwordx4 %s, v%d, s[%d:%d], s%d offen offset:%d %s" % (vr(base + 4 * q, 4), vL16, sWS, sWS + 3, soff, q * 1024, ST_FLAGS)] for q in range(4)]
    cv2 = cvts(STG, T0)
    hs = hstores(STG, sHXo)
    items = []
    for q in range(4): items += [[x] for x in cv2[4 * q:4 * q + 4]] + [hs[q]]
    k = fill.seq(items, k)
    k = fill.seq([["s_add_u32 s%d, s%d, 16" % (sHI, sHI)], ["s_add_u32 s%d, s%d, 4096" % (sHXo, sHXo)]], k)
    assert fill.nvm(0, 36) == 13
    side.append("%s_sw:" % L)
    for q in range(4):
        side.append("v_mov_b32 v%d, v%d" % (vDX[q], vDW[q]))
    side += ["s_mov_b32 s%d, s40" % sDG, "s_and_b32 s%d, s41, 0xffff" % (sDG + 1),
             "s_mov_b32 s%d, s40" % sDU, "s_and_b32 s%d, s41, 0xffff" % (sDU + 1),
             "s_mov_b32 s%d, s%d" % (sRG, sW0), "s_add_u32 s%d, s%d, 256" % (sRU, sW0),
             "s_mov_b32 s%d, s%d" % (sD0, sWd0), "s_mov_b32 s%d, %d" % (sD1, 32 * 1152),
             "s_sub_u32 s%d, %d, s%d" % (sD2l, 128 - 32 * 1152, sWd0), "s_mov_b32 s%d, s%d" % (sD2h, sD2l),
             "s_branch %s_swr" % L]
    gstage(D_(3), D_(0), mf_g1(AG, 9, False), fill, barw(fill, nA))
    a.label("%s_C" % L)
    gstage(D_(0), D_(1), mf_g1(AU, 0, True), fillC, bars["C"])
    gstage(D_(1), D_(2), mf_g1(AU, 9, False), fillD, bars["D"])
    a("s_cbranch_scc1 %s_g1" % L)
    stamp(c)
    ACCS = [AG, AU, T0, STG]
    glog = ["c"] * fillC.nvm(0, 36) + ["W2"] * 9
    glog = ["W1"] * 9 + ["pl0"] * LP + ["W2"] * 9 + ["o"]
    def gneed(tag):
        idx = max(k for k, t_ in enumerate(glog) if t_ == tag)
        return min(63, len(glog) - 1 - idx)
    def tagd(groups, tag):
        return [[(x + " ;#" + tag if x.startswith("buffer_") else x) for x in g] for g in groups]
    def em2(s_):
        if s_.startswith("@need "):
            a("s_waitcnt vmcnt(%d)" % gneed(s_.split()[1])); return
        if s_.startswith("buffer_"): glog.append(s_.split(";#")[1] if ";#" in s_ else "o")
        (a.label(s_[:-1]) if s_.endswith(":") else a(s_))
    def mf2(s_):
        def f(i):
            fb, t = o1(i)
            r = []
            for mb in range(2):
                if s_ < 8:
                    ac = ACCS[s_ % 4] + (fb * 2 + mb) * 4
                    first = (s_ < 4 and t == 0)
                    own = s_ < 4
                else:
                    ac = AG + ((fb & 1) * 2 + mb) * 4
                    first = (t == 0 and fb < 2)
                    own = fb < 2
                b = vr(H0 + 8 * t + 4 * mb, 4) if own else ar(X0 + 8 * t + 4 * mb, 4)
                r.append("v_mfma_f32_16x16x32_bf16 %s, %s, %s, %s" % (vr(ac, 4), ar(fr(i), 4), b, "0" if first else vr(ac, 4)))
            return r
        return f
    def out_ep(acc, us, soff):
        g = []
        for u in us:
            for mb in range(2):
                tb = acc + ((2 * u) * 2 + mb) * 4
                for k in range(4):
                    s_ = acc + ((2 * u + k // 2) * 2 + mb) * 4 + 2 * (k % 2)
                    g.append(["v_cvt_pk_bf16_f32 v%d, v%d, v%d" % (tb + k, s_, s_ + 1)])
                g.append(["buffer_store_dwordx4 %s, v%d, s[%d:%d], s%d offen offset:%d %s" % (vr(tb, 4), vL16, sWS, sWS + 3, soff, u * 2048 + mb * 1024, ST_FLAGS)])
        return g
    dp = ["s%d" % sD0p, "s%d" % sD1, "s%d" % sD2h]
    HSPL = opt.get("hspl", (0, 5, 10, 18))
    for st_ in (1, 2, 3):
        assert max(thr for (ps, cs, thr) in POLLS if cs[0] < st_) >= (HSPL[st_] - 1 + 2) // 4 + 1
    for s_ in range(9):
        fill = Fill()
        bw = ["@need W%d" % (s_ + 1)]
        if s_ == 0:
            its = [["v_mul_f32 v%d, v%d, v%d" % (T0 + r, T0 + r, AU + r), "v_mul_f32 v%d, v%d, v%d" % (T0 + r + 1, T0 + r + 1, AU + r + 1)] for r in range(0, 32, 2)]
            cvf = cvts(HB + 64, T0)
            hs = tagd(hstores(HB + 64, sHXo), "hs")
            for q in range(4): its += [[x] for x in cvf[4 * q:4 * q + 4]] + [hs[q]]
            k = fill.seq(its, 2)
            assert k <= kpos(27), k
            place_dma(fill, tagd(dma_stage(vDX, sDU, sRU, m0s(5), dl), "W3"), k + 1, 1)
        elif s_ <= 4:
            if s_ == 1:
                fill.put(0, ["s_mov_b32 s%d, s%d" % (sRU, sW0p), "s_sub_u32 s%d, %d, s%d" % (sD2h, 128 - 32 * 1152, sD0p)])
                fill.put(opt.get("flag_k", 12), ["@need hs", PFST])
            place_dma(fill, tagd(dma_stage(vDX, sDU, sRU, m0s(5 + s_), dp), "W%d" % (s_ + 3)), 2, opt.get("dsp1", DSP) if s_ == 1 else DSP)
        NC5 = opt.get("nc5", 5)
        if s_ in (5, 6):
            k = 2
            for n in (range(NC5) if s_ == 5 else range(NC5, 9)):
                fill.put(k - 1, ["s_add_u32 m0, s%d, 0x%x" % (sWB, R(10) * SLOT + n * 1024), "s_mov_b32 s%d, %d" % (sRG, (n if n < 4 else n - 4) * 9216)])
                fill.put(k, ["buffer_load_dwordx4 v%d, s[%d:%d], s%d offen lds ;#W8" % (236 if n < 4 else 237, sDU, sDU + 3, sRG)])
                k += max(DSP, 45 // NC5)
        for n_, (ps, cs, thr) in enumerate(POLLS):
            if s_ == ps[0]:
                fill.put(ps[1], ["buffer_load_dword v%d, v240, s[4:7], s%d offen sc1 ;#pl%d" % (PV[n_], sFp, n_)])
            if s_ == cs[0]:
                fill.seq([["@need pl%d" % n_, "v_readfirstlane_b32 s%d, v%d" % (sT2, PV[n_])], ["s_cmp_lt_u32 s%d, %d" % (sT2, thr), "s_cbranch_scc1 %s_slow%d" % (L, n_), "%s_slowr%d:" % (L, n_)]], cs[1])
        if 1 <= s_ <= 3:
            its = []
            for n in range(HSPL[s_ - 1], HSPL[s_]):
                g = ["buffer_load_dwordx4 %s, v%d, s[4:7], s%d offen offset:%d %s ;#h%d" % (ar(X0 + 4 * n, 4), vL16, sHXp, (n % 4) * 1024, LD_FLAGS, n // 2)]
                if n % 4 == 3: g.append("s_add_u32 s%d, s%d, 4096" % (sHXp, sHXp))
                its.append(g)
            fill.seq(its, 4, opt.get("hst1", 6) if s_ == 1 else min(6, 44 // max(1, len(its))))
        if s_ == 3:
            fill.put(len(POS) - 1, ["@need h0"])
        if s_ == 4:
            for t in range(1, 9): fill.d.setdefault((4 * t - 1, 0), []).append("@need h%d" % t)
        if s_ >= 5:
            k = fill.seq(out_ep(ACCS[s_ - 5], (0, 1), sSt), 4, 2 if s_ > 5 else 1)
            fill.seq([["s_add_u32 s%d, s%d, 4096" % (sSt, sSt)]], k)
        em_save = em
        gstage(D_(2 + s_), D_(3 + s_) if s_ < 8 else None, mf2(s_), fill, bw, em2)
    for n_, (ps, cs, thr) in enumerate(POLLS):
        side += ["%s_slow%d:" % (L, n_), "s_mov_b32 s63, 0", "%s_slowl%d:" % (L, n_),
             "buffer_load_dword v%d, v240, s[4:7], s%d offen sc1" % (PV[n_], sFp), "s_add_u32 s63, s63, 1", "s_waitcnt vmcnt(0)",
             "v_readfirstlane_b32 s%d, v%d" % (sT2, PV[n_]), "s_cmp_ge_u32 s%d, %d" % (sT2, thr), "s_cbranch_scc1 %s_slowr%d" % (L, n_),
             "s_cmp_lt_u32 s63, 0x%x" % c.maxpoll, "s_cbranch_scc1 %s_slowl%d" % (L, n_), "s_branch %s_slowr%d" % (L, n_)]
    lstamp(c)
    a("s_nop 7")
    for grp in out_ep(AG, (0,), sStH):
        for s_ in grp: a(s_)
    if opt.get("cst"):
        a("s_waitcnt lgkmcnt(0)")
        lstamp(c)
    c.side += side
    yield

def unpack8(a, src, dst):
    for k in range(4):
        a("v_lshlrev_b32 v%d, 16, v%d" % (dst + 2 * k, src + k))
        a("v_and_b32 v%d, 0xffff0000, v%d" % (dst + 2 * k + 1, src + k))

def phase_D(c):
    a, opt = c.a, c.opt
    LD, ST = "sc1", "sc1"
    L = c.lab("D")
    P0 = 40
    X1, ACC, TM = 8, 232, 24
    a("v_and_b32 v1, 7, v%d" % vLane)
    a("v_lshrrev_b32 v2, 3, v%d" % vLane)
    a("s_mul_i32 s24, s%d, 24" % sW)
    a("v_add_u32 v2, s24, v2")
    a("v_lshlrev_b32 v3, 4, v1")
    a("v_lshl_add_u32 v3, v2, 8, v3")
    a("v_add_u32 v4, 4096, v3")
    a("s_lshl_b32 s25, s%d, 4" % sI)
    a("s_add_u32 s25, s25, s%d" % sJ)
    a("s_lshr_b32 s26, s25, 1")
    a("s_mul_i32 s26, s26, 18432")
    a("s_and_b32 s27, s25, 1")
    a("s_lshl_b32 s27, s27, 7")
    a("s_add_u32 s26, s26, s27")
    a("s_add_u32 s27, s26, s%d" % sL)
    a("s_add_u32 s28, s27, 0x%x" % L_X1)
    a("s_lshl_b32 s29, s25, 8")
    a("s_add_u32 s29, s29, s%d" % sL)
    a("s_add_u32 s29, s29, 0x%x" % L_SSQ)
    a("v_lshlrev_b32 v5, 5, v1")
    a("s_lshl_b32 s30, s%d, 6" % sI)
    a("s_lshr_b32 s31, s%d, 2" % sJ)
    a("s_add_u32 s30, s30, s31")
    a("s_mul_i32 s30, s30, %d" % HXS)
    a("s_bfe_u32 s31, s%d, 0x10001" % sJ)
    a("s_lshl_b32 s31, s31, 10")
    a("s_add_u32 s30, s30, s31")
    a("s_and_b32 s31, s%d, 1" % sJ)
    a("s_lshl_b32 s31, s31, 7")
    a("s_add_u32 s30, s30, s31")
    a("s_add_u32 s30, s30, 0x%x" % (WS_P + 2048))
    for q in range(3):
        a("v_add_u32 v6, %d, v2" % (8 * q))
        a("v_lshrrev_b32 v7, 2, v6")
        a("v_and_b32 v6, 3, v6")
        a("v_lshlrev_b32 v6, 8, v6")
        a("v_lshl_add_u32 v6, v1, 4, v6")
        a("v_lshl_add_u32 v6, v7, 11, v6")
        a("v_add_u32 v38, %d, v6" % (4 * HXS))
        a("v_subrev_u32 v6, %d, v6" % (9 * 2048))
        a("v_cmp_gt_u32 vcc, 9, v7")
        a("s_nop 1")
        a("v_cndmask_b32 v%d, v6, v38, vcc" % (200 + q))
    def ld3(dst, soff):
        a("buffer_load_dwordx4 %s, v3, s[4:7], s%d offen %s" % (vr(dst, 4), soff, LD))
        a("buffer_load_dwordx4 %s, v3, s[4:7], s%d offen offset:2048 %s" % (vr(dst + 4, 4), soff, LD))
        a("buffer_load_dwordx4 %s, v4, s[4:7], s%d offen %s" % (vr(dst + 8, 4), soff, LD))
    a("s_lshl_b32 s31, s%d, 6" % sW)
    a("s_lshl_b32 s32, s%d, 2" % sJ)
    a("s_add_u32 s31, s31, s32")
    a("s_barrier")
    signal(c, 2, 0, 31)
    w3 = c.lab("D_w3")
    a("s_cmp_eq_u32 s%d, 3" % sW)
    a("s_cbranch_scc1 %s" % w3)
    a("s_lshr_b32 s31, s%d, 2" % sJ)
    a("s_lshl_b32 s31, s31, 6")
    wait_flags(c, 2, 31, 0xffff, solo=(0, 31, 0xffff))
    stamp(c)
    NP = c.NP
    for j in range(NP):
        for q in range(3):
            a("buffer_load_dwordx4 %s, v%d, s[4:7], s30 offen %s" % (vr(P0 + 12 * j + 4 * q, 4), 200 + q, LD))
        if j < NP - 1: a("s_add_u32 s30, s30, 0x%x" % (8 * HXS))
    ld3(X1, 28)
    a("buffer_load_dwordx4 v[32:35], v5, s[4:7], s29 offen %s" % LD)
    a("buffer_load_dwordx2 v[36:37], v5, s[4:7], s29 offen offset:16 %s" % LD)
    AC = [232, 240, 24]
    T2 = 20
    for j in range(NP):
        for q in range(3):
            a("s_waitcnt vmcnt(%d)" % (3 * NP + 4 - 3 * j - q))
            src = P0 + 12 * j + 4 * q
            if j == 0:
                unpack8(a, src, AC[q])
            else:
                for k in range(4):
                    a("v_lshlrev_b32 v%d, 16, v%d" % (T2, src + k))
                    a("v_and_b32 v%d, 0xffff0000, v%d" % (T2 + 1, src + k))
                    a("v_add_f32 v%d, v%d, v%d" % (AC[q] + 2 * k, AC[q] + 2 * k, T2))
                    a("v_add_f32 v%d, v%d, v%d" % (AC[q] + 2 * k + 1, AC[q] + 2 * k + 1, T2 + 1))
    a("s_waitcnt vmcnt(0)")
    a("v_add_f32 v32, v32, v33")
    a("v_add_f32 v34, v34, v35")
    a("v_add_f32 v36, v36, v37")
    a("v_add_f32 v32, v32, v34")
    a("v_add_f32 v32, v32, v36")
    a("v_mov_b32 v33, 0x%x" % f2u(1e-5))
    a("s_mov_b32 s31, 0x%x" % f2u(1.0 / 576))
    a("v_fma_f32 v32, v32, s31, v33")
    a("v_rcp_f32 v32, v32")
    XF = 40
    for q in range(3):
        unpack8(a, X1 + 4 * q, XF + 8 * q)
        for k in range(8):
            a("v_fmac_f32 v%d, v%d, v32" % (XF + 8 * q + k, AC[q] + k))
        for k in range(4):
            a("v_cvt_pk_bf16_f32 v%d, v%d, v%d" % (X1 + 4 * q + k, XF + 8 * q + 2 * k, XF + 8 * q + 2 * k + 1))
    fin = c.lab("D_fin")
    a("s_cmp_lg_u32 s%d, 0" % sL)
    a("s_cbranch_scc1 %s" % fin)
    def st3(src, soff):
        a("buffer_store_dwordx4 %s, v3, s[4:7], s%d offen %s" % (vr(src, 4), soff, ST))
        a("buffer_store_dwordx4 %s, v3, s[4:7], s%d offen offset:2048 %s" % (vr(src + 4, 4), soff, ST))
        a("buffer_store_dwordx4 %s, v4, s[4:7], s%d offen %s" % (vr(src + 8, 4), soff, ST))
    for q in range(3): unpack8(a, X1 + 4 * q, XF + 8 * q)
    a("s_add_u32 s28, s26, 0x%x" % (LSTR + L_XR))
    st3(X1, 28)
    a("v_add_f32 v34, v%d, v%d" % (XF, XF + 1))
    a("v_mul_f32 v35, v%d, v%d" % (XF, XF))
    a("v_fmac_f32 v35, v%d, v%d" % (XF + 1, XF + 1))
    for k in range(2, 24):
        a("v_add_f32 v34, v34, v%d" % (XF + k))
        a("v_fmac_f32 v35, v%d, v%d" % (XF + k, XF + k))
    xl_sum(a, [34, 35], [36, 37], [8, 16, 32])
    a("v_lshlrev_b32 v36, 5, v1")
    a("v_add_u32 v36, %d, v36" % LDS_D)
    a("s_lshl_b32 s24, s%d, 3" % sW)
    a("v_add_u32 v37, s24, v36")
    a("ds_write_b64 v37, v[34:35]")
    a("s_waitcnt lgkmcnt(0)")
    a("s_barrier")
    a("ds_read_b128 v[64:67], v36")
    a("ds_read_b64 v[34:35], v36 offset:16")
    a("s_waitcnt lgkmcnt(0)")
    a("v_add_f32 v34, v34, v64")
    a("v_add_f32 v35, v35, v65")
    a("v_add_f32 v34, v34, v66")
    a("v_add_f32 v35, v35, v67")
    a("v_mul_f32 v34, s31, v34")
    a("v_mul_f32 v36, v34, v34")
    a("v_fma_f32 v35, v35, s31, -v36")
    a("v_max_f32 v35, 0, v35")
    a("v_add_f32 v35, 0x%x, v35" % f2u(1e-5))
    a("v_rsq_f32 v35, v35")
    for k in range(24): a("v_sub_f32 v%d, v%d, v34" % (XF + k, XF + k))
    for k in range(24): a("v_mul_f32 v%d, v%d, v35" % (XF + k, XF + k))
    for k in range(12): a("v_cvt_pk_bf16_f32 v%d, v%d, v%d" % (64 + k, XF + 2 * k, XF + 2 * k + 1))
    a("s_add_u32 s28, s26, 0x%x" % (LSTR + L_XN))
    st3(64, 28)
    a("v_lshlrev_b32 v36, 2, v1")
    a("s_lshl_b32 s28, s25, 5")
    a("s_add_u32 s28, s28, 0x%x" % (LSTR + L_MEAN))
    M1 = opt.get("m1", 1)
    def mst():
        a("s_mov_b64 exec, 0xff")
        a("buffer_store_dword v34, v36, s[4:7], s28 offen %s" % ST)
        a("s_mov_b64 exec, -1")
    if not M1: mst()
    a("s_lshl_b32 s33, s%d, 4" % sJ)
    a("s_lshl_b32 s32, s%d, 2" % sW)
    a("s_add_u32 s33, s33, s32")
    signal(c, 3, 0 if M1 else 1, 33)
    j2 = c.lab("D_j2")
    if M1:
        a("s_cmp_lg_u32 s%d, 1" % sW)
        a("s_cbranch_scc1 %s" % j2)
        mst()
    a("s_branch %s" % j2)
    a.label(w3)
    a("s_cmp_lg_u32 s%d, 0" % sL)
    a("s_cbranch_scc1 %s" % c.endlab)
    prefetch_A(c, solo=True, split=c.opt.get("dsplit", (0, 32)))
    a.label(j2)
    stamp(c)
    a("s_mov_b32 s%d, 0x%x" % (sL, LSTR))
    a("s_add_u32 s%d, s%d, %d" % (sFL, sFL, (4 * PH) << c.fsh))
    a("s_branch %s" % c.looplab)
    a.label(fin)
    srd(a, sOUT, 42, ACT)
    a("v_and_b32 v5, 8, v%d" % vLane)
    a("v_cmp_eq_u32 vcc, 0, v5")
    a("v_lshrrev_b32 v6, 2, v2")
    a("v_lshlrev_b32 v6, 6, v6")
    a("v_lshl_add_u32 v6, v5, 2, v6")
    a("v_and_b32 v7, 16, v%d" % vLane)
    a("v_add_u32 v6, v6, v7")
    a("v_mul_u32_u24 v7, 1152, v1")
    a("v_add_u32 v6, v6, v7")
    a("s_mul_i32 s28, s25, %d" % (8 * 1152))
    for q in range(3):
        x = X1 + 4 * q
        for k in range(4):
            a("v_mov_b32_dpp v%d, v%d row_ror:8 row_mask:0xf bank_mask:0xf" % (40 + k, x + k))
        o = 48 + 4 * q
        a("v_cndmask_b32 v%d, v42, v%d, vcc" % (o, x))
        a("v_cndmask_b32 v%d, v43, v%d, vcc" % (o + 1, x + 1))
        a("v_cndmask_b32 v%d, v%d, v40, vcc" % (o + 2, x + 2))
        a("v_cndmask_b32 v%d, v%d, v41, vcc" % (o + 3, x + 3))
        a("buffer_store_dwordx4 %s, v6, s[16:19], s28 offen offset:%d" % (vr(o, 4), 128 * q))

def gen_mega(a, name, opt=None):
    c = Ctx()
    c.a, c.opt = a, (opt or {})
    c.stamp = c.opt.get("stamp", False)
    c.maxpoll = c.opt.get("maxpoll", 200000)
    c.sigwave = c.opt.get("sigwave", 0)
    c.side = []
    c.fsh = c.opt.get("fsh", 2)
    c.NP = 8
    c.n = 0
    def lab(p):
        c.n += 1
        return "m_%s_%d" % (p, c.n)
    c.lab = lab
    c.endlab, c.looplab = "m_end", "m_layer"
    kernel_begin(a, name)
    a("s_cmp_ge_u32 s2, 256")
    a("s_cbranch_scc1 m_exit")
    a("s_load_dwordx4 s[36:39], s[0:1], 32")
    a("s_load_dwordx4 s[40:43], s[0:1], 48")
    a("s_load_dwordx2 s[24:25], s[0:1], 72")
    a("v_lshrrev_b32 v1, 6, v0")
    a("v_and_b32 v%d, 63, v0" % vLane)
    a("v_readfirstlane_b32 s%d, v1" % sW)
    xmap(a, c.opt.get("xmap", 4), sJ, sI, 26)
    a("v_lshlrev_b32 v%d, 4, v%d" % (vL16, vLane))
    a("v_add_u32 v%d, 18432, v%d" % (vL16b, vL16))
    a("s_mov_b32 s%d, 0" % sL)
    a("s_lshl_b32 s%d, s%d, %d" % (sFL, sI, 8 + c.fsh))
    a("s_add_u32 s%d, s%d, 0x%x" % (sFL, sFL, WS_FL))
    a("s_mov_b32 s%d, 0" % sSTI)
    a("s_waitcnt lgkmcnt(0)")
    srd(a, sWS, 24, WS_END + (0x40000 if c.stamp else 0))
    stamp(c)
    M0T = c.opt.get("m0t", "")
    if M0T:
        a("s_lshl_b32 s34, s%d, 2" % sI)
        a("s_and_b32 s35, s%d, 3" % sJ)
        a("s_add_u32 s34, s34, s35")
        a("s_lshl_b32 s34, s34, 2")
        a("s_add_u32 s34, s34, s%d" % sW)
        a("s_mul_i32 s34, s34, 41")
        a("v_min_u32 v234, 40, v%d" % vLane)
        a("v_add_u32 v234, s34, v234")
        a("v_min_u32 v234, 0x287f, v234")
        a("v_mul_u32_u24 v235, 3641, v234")
        a("v_lshrrev_b32 v235, 16, v235")
        a("v_lshlrev_b32 v233, 7, v234")
        a("v_mul_u32_u24 v235, %d, v235" % (9216 - 18 * 128))
        a("v_add_u32 v234, v235, v233")
        a("s_lshr_b32 s35, s%d, 2" % sJ)
        a("s_mul_i32 s33, s35, %d" % (1152 * 1152))
        a("s_mul_i32 s35, s35, 2304")
        srd(a, sDG, 36, D * F * 2)
        srd(a, sDU, 38, D * F * 2)
        srd(a, 84, 40, D * F * 2)
        def m0t():
            if "G" in M0T: a("buffer_load_dword v237, v234, s[%d:%d], s35 offen" % (sDG, sDG + 3))
            if "U" in M0T: a("buffer_load_dword v238, v234, s[%d:%d], s35 offen" % (sDU, sDU + 3))
            if "D" in M0T: a("buffer_load_dword v239, v233, s[84:87], s33 offen")
        if "a" not in M0T: m0t()
    prefetch_A(c)
    if "a" in M0T: m0t()
    if c.opt.get("warm"):
        a("s_lshl_b32 s24, s%d, 6" % sI)
        a("s_lshl_b32 s25, s%d, 2" % sJ)
        a("s_add_u32 s24, s24, s25")
        a("s_add_u32 s24, s24, s%d" % sW)
        a("s_mul_i32 s24, s24, %d" % HXS)
        a("s_add_u32 s24, s24, 0x%x" % WS_P)
        if c.opt["warm"] == "tlb":
            a("v_lshlrev_b32 v1, 12, v%d" % vLane)
            a("s_mov_b64 exec, 0x1f")
            a("buffer_load_dword v240, v1, s[4:7], s24 offen")
            a("s_mov_b64 exec, -1")
        else:
            a("v_lshlrev_b32 v1, 7, v%d" % vLane)
            for q in range(3):
                if q == 2: a("s_mov_b64 exec, 0xffffffff")
                a("buffer_load_dword v%d, v1, s[4:7], s24 offen" % (240 + q))
                a("s_add_u32 s24, s24, 8192")
            a("s_mov_b64 exec, -1")
    a.label(c.looplab)
    phase_A(c)
    gC = phase_C(c)
    next(gC)
    phase_B(c)
    next(gC)
    stamp(c)
    phase_D(c)
    a.label(c.endlab)
    if c.stamp:
        a("s_waitcnt vmcnt(0)")
        stamp(c)
        a("s_lshl_b32 s24, s2, 2")
        a("s_add_u32 s24, s24, s%d" % sW)
        a("s_lshl_b32 s24, s24, 8")
        a("s_add_u32 s24, s24, 0x%x" % WS_END)
        a("v_lshlrev_b32 v0, 2, v%d" % vLane)
        a("buffer_store_dword v%d, v0, s[4:7], s24 offen" % vST)
    if c.opt.get("dbg"):
        a("s_cmp_lg_u32 s2, %d" % c.opt.get("dbg_wg", 37))
        a("s_cbranch_scc1 m_exit")
        a("s_cmp_lg_u32 s%d, 0" % sW)
        a("s_cbranch_scc1 m_exit")
        a("s_load_dwordx2 s[24:25], s[0:1], 64")
        a("s_waitcnt lgkmcnt(0)")
        srd(a, 8, 24, 64)
        a("v_mov_b32 v0, 0x%x" % (WS_WBAR + 4000))
        a("buffer_load_dword v1, v0, s[4:7], 0 offen")
        a("v_mov_b32 v0, 0")
        a("s_waitcnt vmcnt(0)")
        a("buffer_store_dword v1, v0, s[8:11], 0 offen")
        a("s_nop 1")
        sel = [0, 1, 4, 5, 7, 8, 9, 10, 11, 12, 13, 20, 22, 23, 24]
        for k, x in enumerate(sel):
            a("v_readlane_b32 s26, v%d, %d" % (vST, x))
            a("s_nop 3")
            a("v_mov_b32 v1, s26")
            a("v_mov_b32 v0, %d" % (4 * k + 4))
            a("buffer_store_dword v1, v0, s[8:11], 0 offen")
            a("s_nop 1")
    a.label("m_exit")
    a("s_endpgm")
    for s_ in c.side:
        (a.label(s_[:-1]) if s_.endswith(":") else a(s_))
    return kernel_desc(name, 512, 256)
```
